```python
import torch

def _softmax(x, axis=-1):
    return torch.softmax(x, dim=axis)
def _gelu(x):
    return torch.nn.functional.gelu(x, approximate="tanh")
def _silu(x):
    return torch.nn.functional.silu(x)
def _sigmoid(x):
    return torch.sigmoid(x)
def _layernorm(x, axis=-1, eps=1e-5):
    m = x.mean(dim=axis, keepdim=True)
    v = x.var(dim=axis, keepdim=True, unbiased=False)
    return (x - m) / torch.sqrt(v + eps)
def _scatter_add(tgt, idx, src, axis=0):
    return tgt.clone().index_add_(axis, idx, src)
def _segment_sum(src, seg, n):
    out = torch.zeros((n,) + src.shape[1:], dtype=src.dtype)
    return out.index_add_(0, seg, src)
def _pad(x, pw):
    flat = tuple(v for pair in reversed(pw) for v in pair)
    return torch.nn.functional.pad(x, flat)

kernel_name = 'gated_mix__linear_kernel_hedgehog__geglu_ffn__prompt'

def setup_inputs():

    _w = (lambda a: (lambda t: t.to(torch.bfloat16) if t.is_floating_point() else t)(torch.as_tensor(a)))
    def _A_setup():
        B, S, D, H = 1, 2048, 640, 32
        Dh = D // H
        return {
            "x": _w((lambda *s: torch.randn(*s, dtype=torch.bfloat16) * 0.05)(B, S, D)),
            "wqkv": _w((lambda *s: torch.randn(*s, dtype=torch.bfloat16) * 0.8)(D, 3 * D)),
            "w_phi": _w((lambda *s: torch.randn(*s, dtype=torch.bfloat16) * 0.8)(H, Dh, Dh) * (Dh ** -0.5)),
            "wo": _w((lambda *s: torch.randn(*s, dtype=torch.bfloat16) * 0.05)(D, D)),
        }
    _A_in = _A_setup()

    def _B_setup():
        B, S, D, F = 1, 2048, 640, 1728
        return {
            "x": _w((lambda *s: torch.randn(*s, dtype=torch.bfloat16) * 0.05)(B, S, D)),
            "w_gate": _w((lambda *s: torch.randn(*s, dtype=torch.bfloat16) * 0.05)(D, F)),
            "w_up": _w((lambda *s: torch.randn(*s, dtype=torch.bfloat16) * 0.05)(D, F)),
            "w_down": _w((lambda *s: torch.randn(*s, dtype=torch.bfloat16) * 0.05)(F, D)),
        }
    _B_in = _B_setup()

    return {
        "A_x": _A_in["x"],
        "A_wqkv": _A_in["wqkv"],
        "A_w_phi": _A_in["w_phi"],
        "A_wo": _A_in["wo"],
        "B_x": _B_in["x"],
        "B_w_gate": _B_in["w_gate"],
        "B_w_up": _B_in["w_up"],
        "B_w_down": _B_in["w_down"],
        "gate_w": _w((lambda *s: torch.randn(*s, dtype=torch.bfloat16) * 0.05)(640) * 16.0),
    }

def reference(A_x, A_wqkv, A_w_phi, A_wo, B_x, B_w_gate, B_w_up, B_w_down, gate_w):
    def _A_ref(x, wqkv, w_phi, wo):
        B, S, D = x.shape
        H = 32; Dh = D // H
        qkv = (lambda x, *d: x.permute(*d))((x @ wqkv).reshape(B, S, 3, H, Dh), 2, 0, 3, 1, 4)
        q, k, v = qkv[0], qkv[1], qkv[2]
        pq = torch.einsum("bhsd,hdf->bhsf", q, w_phi)
        pk = torch.einsum("bhsd,hdf->bhsf", k, w_phi)
        phi_q = torch.concatenate([_softmax(pq, axis=-1), _softmax(-pq, axis=-1)], axis=-1)
        phi_k = torch.concatenate([_softmax(pk, axis=-1), _softmax(-pk, axis=-1)], axis=-1)
        kv = torch.einsum("bhsf,bhsd->bhfd", phi_k, v)
        z  = torch.einsum("bhsf->bhf", phi_k)
        num = torch.einsum("bhqf,bhfd->bhqd", phi_q, kv)
        den = torch.einsum("bhqf,bhf->bhq", phi_q, z)[..., None] + 1e-6
        o = num / den
        return (lambda x, *d: x.permute(*d))(o, 0, 2, 1, 3).reshape(B, S, D) @ wo

    def _B_ref(x, w_gate, w_up, w_down):
        return (_gelu(x @ w_gate) * (x @ w_up)) @ w_down

    x = A_x
    g = _sigmoid((x * gate_w).sum(-1, keepdims=True))
    a = _A_ref(x, A_wqkv, A_w_phi, A_wo)
    b = _B_ref(x, B_w_gate, B_w_up, B_w_down)
    return g * a + (1 - g) * b
```

```python
import re

TRANS = ("v_exp_f32", "v_log_f32", "v_rcp_f32", "v_rsq_f32", "v_sqrt_f32", "v_sin_f32", "v_cos_f32")

def regs_of(tok):
    tok = tok.strip()
    tok = tok.lstrip("-")
    if tok.startswith("abs(") or tok.startswith("neg("):
        tok = tok[4:-1]
    if tok.startswith("|"):
        tok = tok.strip("|")
    m = re.fullmatch(r"([vas])(\d+)", tok)
    if m:
        return [(m.group(1), int(m.group(2)))]
    m = re.fullmatch(r"([vas])\[(\d+):(\d+)\]", tok)
    if m:
        return [(m.group(1), i) for i in range(int(m.group(2)), int(m.group(3)) + 1)]
    if tok in ("vcc", "exec", "m0", "scc"):
        return [(tok, 0)]
    if tok in ("vcc_lo", "vcc_hi"):
        return [("vcc", 0)]
    if tok in ("exec_lo", "exec_hi"):
        return [("exec", 0)]
    return []

class I:
    __slots__ = ("text", "op", "cls", "w", "r", "passes", "ws", "ops", "mods", "srcc")
    def __init__(self, text):
        self.text = text
        t = text.split(";")[0].strip()
        parts = t.split(None, 1)
        self.op = parts[0]
        rest = parts[1] if len(parts) > 1 else ""
        ops = [o.strip() for o in rest.split(",")] if rest else []
        mods = []
        if ops:
            lastparts = ops[-1].split()
            ops[-1] = lastparts[0] if lastparts else ""
            mods = lastparts[1:]
        self.ops = ops
        self.mods = mods
        self.w = []
        self.r = []
        self.passes = 0
        self.ws = 1
        self.srcc = []
        op = self.op
        R = lambda k: regs_of(ops[k]) if k < len(ops) else []
        if op == "s_nop":
            self.cls = "nop"; self.ws = int(ops[0], 0) + 1
        elif op.startswith("v_mfma"):
            self.cls = "mfma"
            self.passes = 8 if "32x32" in op else 4
            self.w = R(0); self.r = R(1) + R(2) + R(3); self.srcc = R(3)
        elif op.startswith("v_cmp"):
            self.cls = "valu"; self.w = R(0); self.r = R(1) + R(2)
        elif op in ("v_readfirstlane_b32", "v_readlane_b32"):
            self.cls = "valu"; self.w = R(0); self.r = sum((R(k) for k in range(1, len(ops))), [])
        elif op.startswith("v_permlane"):
            self.cls = "valu"; self.w = R(0) + R(1); self.r = R(0) + R(1)
        elif op.startswith("v_"):
            self.cls = "valu"; self.w = R(0); self.r = sum((R(k) for k in range(1, len(ops))), [])
            if op.startswith("v_fmac") or op.startswith("v_pk_fmac") or op.startswith("v_dot2c"):
                self.r += R(0)
            if op.startswith("v_add_co") or op.startswith("v_addc_co") or op.startswith("v_sub_co"):
                self.w += R(1)
            if op.startswith("v_cndmask") and len(ops) == 3:
                self.r += [("vcc", 0)]
        elif op.startswith("ds_"):
            self.cls = "ds"
            if op.startswith("ds_read") or op.startswith("ds_bpermute") or "_rtn" in op or op.startswith("ds_swizzle"):
                self.w = R(0); self.r = sum((R(k) for k in range(1, len(ops))), [])
            else:
                self.r = sum((R(k) for k in range(len(ops))), [])
        elif op.startswith("buffer_") or op.startswith("global_"):
            self.cls = "vmem"
            lds = "lds" in mods
            if op.startswith("buffer_load") and not lds:
                self.w = R(0); self.r = sum((R(k) for k in range(1, len(ops))), [])
            elif op.startswith("global_load") and "lds" not in op:
                self.w = R(0); self.r = sum((R(k) for k in range(1, len(ops))), [])
            elif "atomic" in op and "sc0" in mods:
                self.w = R(0); self.r = sum((R(k) for k in range(0, len(ops))), [])
            else:
                self.r = sum((R(k) for k in range(len(ops))), [])
                if lds: self.r.append(("m0", 0))
        elif op.startswith("s_load") or op.startswith("s_memtime") or op.startswith("s_buffer_load"):
            self.cls = "smem"; self.w = R(0); self.r = sum((R(k) for k in range(1, len(ops))), [])
        elif op.startswith("s_"):
            self.cls = "salu"
            if op.startswith("s_cmp") or op.startswith("s_cbranch") or op.startswith("s_branch") or op in ("s_barrier", "s_waitcnt", "s_endpgm", "s_setprio", "s_sleep"):
                self.r = sum((R(k) for k in range(len(ops))), [])
            else:
                self.w = R(0); self.r = sum((R(k) for k in range(1, len(ops))), [])
                if "saveexec" in op: self.w.append(("exec", 0))
        else:
            self.cls = "other"

def need_ws(P, C):
    n = 0
    pw = set(P.w)
    cr = set(C.r); cw = set(C.w)
    if P.cls == "valu":
        vw = {x for x in pw if x[0] in "va"}
        sw = {x for x in pw if x[0] in ("s", "vcc")}
        if C.cls == "mfma" and vw & cr: n = max(n, 2)
        if P.op in TRANS and C.cls in ("valu",) and C.op not in TRANS and vw & cr: n = max(n, 1)
        if P.op in TRANS and C.cls in ("ds", "vmem", "mfma") and vw & cr: n = max(n, 2)
        if C.op in ("v_readfirstlane_b32", "v_readlane_b32") and vw & cr: n = max(n, 1)
        if C.op.startswith("v_permlane") and vw & (cr | cw): n = max(n, 2)
        if "dpp" in C.text or "row_" in C.text or "quad_perm" in C.text:
            if vw & cr: n = max(n, 2)
        if sw:
            if C.cls == "vmem" and sw & cr: n = max(n, 5)
            if C.cls == "valu" and sw & cr: n = max(n, 2)
            if C.op in ("v_readlane_b32", "v_writelane_b32") and sw & cr: n = max(n, 4)
            if C.cls in ("salu", "smem") and sw & cr: n = max(n, 1)
        if ("exec", 0) in pw:
            if C.cls == "mfma": n = max(n, 4)
            if C.op in ("v_readfirstlane_b32", "v_readlane_b32") or C.op.startswith("v_permlane"): n = max(n, 4)
    if P.cls == "mfma":
        pp = P.passes
        if C.cls == "mfma":
            ab = set(C.r) - set(C.srcc)
            if pw & ab: n = max(n, {4: 8, 8: 12}[pp])
            if pw & set(C.srcc):
                if set(C.srcc) == pw and C.passes == pp: pass
                else: n = max(n, {4: 6, 8: 10}[pp])
            elif pw & cw:
                n = max(n, {4: 6, 8: 10}[pp])
        elif C.cls in ("valu", "ds", "vmem"):
            if pw & (cr | cw): n = max(n, {4: 8, 8: 12}[pp])
            if C.cls == "valu" and set(P.srcc) & cw: n = max(n, {4: 3, 8: 7}[pp])
            if C.cls in ("ds", "vmem") and set(P.srcc) & cw: n = max(n, {4: 3, 8: 7}[pp])
    if P.cls == "vmem" and ("store" in P.op or "atomic" in P.op) and ("x4" in P.op or "x3" in P.op or "x2" in P.op):
        data = set(regs_of(P.ops[0])) if P.op.startswith("buffer") else set(regs_of(P.ops[1]))
        if data & cw: n = max(n, 2)
    if P.cls == "ds" and P.op.startswith("ds_write") and ("b128" in P.op or "b96" in P.op):
        data = set(regs_of(P.ops[1]))
        if data & cw: n = max(n, 2)
    if P.cls == "salu" and ("m0", 0) in pw and ("m0", 0) in cr and C.cls in ("vmem", "ds"):
        n = max(n, 1)
    if P.cls == "salu" and ("exec", 0) in pw and (C.cls in ("valu", "mfma", "ds", "vmem")):
        n = max(n, 0)
    return n

class Em:
    def __init__(self):
        self.items = []
        self.lds_n = 0; self.lds_done = 0
        self.vm_n = 0; self.vm_done = 0
    def raw(self, s):
        self.items.append(s)
    def label(self, s):
        self.items.append(s + ":")
    def e(self, text):
        for t in text.split("\n"):
            t = t.strip()
            if t: self.items.append(I(t))
    def lds(self, text):
        self.e(text); self.lds_n += 1; return self.lds_n - 1
    def vm(self, text):
        self.e(text); self.vm_n += 1; return self.vm_n - 1
    def wait(self, lds=None, vm=None):
        parts = []
        if vm is not None and vm >= self.vm_done:
            n = min(self.vm_n - vm - 1, 63)
            parts.append(f"vmcnt({n})"); self.vm_done = self.vm_n - n
        if lds is not None and lds >= self.lds_done:
            n = min(self.lds_n - lds - 1, 15)
            parts.append(f"lgkmcnt({n})"); self.lds_done = self.lds_n - n
        if parts:
            self.e("s_waitcnt " + " ".join(parts))
            return True
        return False
    def wait_all(self):
        self.e("s_waitcnt vmcnt(0) lgkmcnt(0)")
        self.vm_done = self.vm_n; self.lds_done = self.lds_n
    def wait_lgkm0(self):
        self.e("s_waitcnt lgkmcnt(0)"); self.lds_done = self.lds_n
    def finish(self):
        out = []
        hist = []
        pos = 0
        nops = 0
        for it in self.items:
            if isinstance(it, str):
                out.append(it)
                if it.endswith(":"):
                    pass
                continue
            req = 0
            for (P, ppos) in hist:
                d = pos - ppos
                n = need_ws(P, it)
                if n > d: req = max(req, n - d)
            while req > 0:
                k = min(req, 16)
                nop = I(f"s_nop {k-1}")
                out.append("    " + nop.text)
                pos += k; req -= k; nops += 1
            out.append("    " + it.text)
            pos += it.ws
            hist.append((it, pos))
            if len(hist) > 40: hist.pop(0)
        self.nops = nops
        return "\n".join(out)
```

```python
from asmlib import *
import math, struct

HF_OFF  = 0x0000000
PQF_OFF = 0x0700000
WDF_OFF = 0x0C00000
OF_OFF  = 0x0F00000
KVP_OFF = 0x1200000
G_OFF   = 0x1300000
WS_BYTES = 0x1400000

def f32bits(x):
    return "0x%08x" % struct.unpack("<I", struct.pack("<f", x))[0]

LOG2E = 1.4426950408889634
GC0 = -2.0 * math.sqrt(2.0 / math.pi) * LOG2E
GC1 = GC0 * 0.044715

S_X = 4
S_W0 = 8
S_W1 = 12
S_WS = 16
S_WV = 20
S_M = 21
S_C = 22
S_T0 = 24
S_XOFF = 32
S_WOFF = 33
S_HB = 34
S_MW = 35
S_MX = 36
S_TMP = 37

def srd(em, s, ptr_s, nbytes):
    em.e(f"s_mov_b32 s{s}, s{ptr_s}\ns_mov_b32 s{s+1}, s{ptr_s+1}\ns_mov_b32 s{s+2}, {nbytes}\ns_mov_b32 s{s+3}, 0x00020000")

STAMPS = False
PREFETCH = True
STAMP_OFF = 0x1380000
def stamp(em, k):
    if not STAMPS: return
    em.e(f"s_memtime s[60:61]")
    em.e("s_waitcnt lgkmcnt(0)"); em.lds_done = em.lds_n
    em.e(f"""
    s_lshl_b32 s62, s2, 8
    s_lshl_b32 s63, s{S_WV}, 6
    s_add_u32 s62, s62, s63
    s_add_u32 s62, s62, {STAMP_OFF + 4*k}
    v_mov_b32 v250, s60
    v_mov_b32 v251, 0
    """)
    em.vm(f"buffer_store_dword v250, v251, s[{S_WS}:{S_WS+3}], s62 offen")

class BG:
    def __init__(self): self.gens = []; self.blocked = False
    def add(self, g): self.gens.append(g)
    def barrier_passed(self): self.blocked = False
    def step(self, em, budget):
        while budget > 0 and self.gens and not self.blocked:
            try:
                c = next(self.gens[0])
            except StopIteration:
                self.gens.pop(0); continue
            if c == "BAR":
                self.blocked = True; break
            budget -= c
        return budget
    def drain(self, em):
        while self.gens:
            for c in self.gens[0]:
                if c == "BAR":
                    em.e("s_barrier")
            self.gens.pop(0)
        if self.blocked:
            em.e("s_barrier"); self.blocked = False

def engine(em, cfg):
    D = cfg.get("D", 3)
    KSW = cfg.get("KSW", 4); KSX = cfg.get("KSX", 4)
    NS = 40 // KSW
    NXS = 40 // KSX
    groups = cfg["groups"]
    wslots = cfg["wslots"]; xslots = cfg["xslots"]
    PW = wslots - 2
    PX = xslots - 1
    stages = [(gi, i) for gi in range(len(groups)) for i in range(NS)]
    xst = [(gi, i) for gi in range(len(groups)) if groups[gi]["loadx"] for i in range(NXS)]
    xidx = {s: n for n, s in enumerate(xst)}
    mf = []
    for sn, (gi, i) in enumerate(stages):
        T = groups[gi]["T"]
        for sp in range(KSW):
            for t in range(T):
                mf.append((sn, gi, i, sp, t))
    N = len(mf)
    wfr = cfg["wfrag"]; NB = len(wfr)
    pend = []
    w_last = {}; x_last = {}
    def queue_w(sn):
        if sn >= len(stages): return
        gi, i = stages[sn]
        cl = cfg["w_dma"](em, gi, i, sn % wslots)
        for k, c in enumerate(cl):
            pend.append((c, ("w", sn) if k == len(cl) - 1 else None))
    def queue_x(xn):
        if xn >= len(xst): return
        gi, i = xst[xn]
        cl = cfg["x_dma"](em, gi, i, xn % xslots)
        for k, c in enumerate(cl):
            pend.append((c, ("x", xn) if k == len(cl) - 1 else None))
    def issue_one():
        c, tag = pend.pop(0)
        vid = c()
        if tag:
            (w_last if tag[0] == "w" else x_last)[tag[1]] = vid
    nx = 0; nw = 0
    ratio = KSX // KSW
    while nx < PX or nw < PW:
        if nx < PX and nx * ratio <= nw: queue_x(nx); nx += 1
        elif nw < PW: queue_w(nw); nw += 1
        else: queue_x(nx); nx += 1
    while pend: issue_one()
    if cfg.get("after_prologue"): cfg["after_prologue"](em)
    bg = BG()
    rd = {}; xrd = {}
    cur_group = -1
    for idx in range(-D, N):
        budget = cfg.get("budget", 3)
        if idx >= 0:
            sn, gi, i, sp, t = mf[idx]
            g = groups[gi]
            if gi != cur_group:
                cur_group = gi
                bg.drain(em)
                if g.get("bg"): bg.add(g["bg"](em))
            k16 = KSW * i + sp
            em.wait(lds=max(rd[idx], xrd.get((gi, k16), -1)))
            b = wfr[idx % NB]
            acc = g["acc"][t]
            an = int(acc[1:]); accr = f"{acc[0]}[{an}:{an+15}]"
            c = "0" if k16 == 0 else accr
            em.e(f"v_mfma_f32_32x32x16_bf16 {accr}, v[{b}:{b+3}], {cfg['xreg'](gi, k16)}, {c}")
        j = idx + D
        if j < N:
            sn, gi, i, sp, t = mf[j]
            if sp == 0 and t == 0:
                k16 = KSW * i
                isx = groups[gi]["loadx"] and k16 % KSX == 0
                while pend: issue_one()
                need = w_last[sn]
                if isx: need = max(need, x_last[xidx[(gi, k16 // KSX)]])
                em.wait(vm=need)
                em.e("s_barrier")
                bg.barrier_passed()
                if cfg.get("stamp_at") and sn in cfg["stamp_at"]: stamp(em, cfg["stamp_at"][sn])
                queue_w(nw); nw += 1
                if isx:
                    queue_x(nx); nx += 1
                    xs = xidx[(gi, k16 // KSX)] % xslots
                    for q in range(KSX):
                        xrd[(gi, k16 + q)] = em.lds(cfg["xread"](gi, k16 + q, q, xs))
                budget -= 2
            b = wfr[j % NB]
            for hf in range(2):
                vr, off = cfg["tr"](t, sn % wslots, sp, hf)
                rd[j] = em.lds(f"ds_read_b64_tr_b16 v[{b+2*hf}:{b+2*hf+1}], v{vr} offset:{off}")
        if idx + 1 < N and idx + 1 >= 0:
            sn, gi, i, sp, t = mf[idx + 1]
            em.wait(lds=max(rd[idx + 1], xrd.get((gi, KSW * i + sp), -1)))
        if pend:
            issue_one(); budget -= 3
        if idx >= 0:
            bg.step(em, budget)
    bg.drain(em)

def f_epilogue_tile(em, acc, st_off, tmp, vst):
    t = tmp
    o = t + 12
    for p in range(4):
        g0, g1, u0, u1, a0, a1 = t, t + 1, t + 2, t + 3, t + 4, t + 5
        em.e(f"v_cvt_pk_bf16_f32 v{g1}, v{acc+2*p}, v{acc+2*p+1}"); yield 1
        em.e(f"v_cvt_pk_bf16_f32 v{u1}, v{acc+8+2*p}, v{acc+8+2*p+1}"); yield 1
        em.e(f"v_lshlrev_b32 v{g0}, 16, v{g1}"); yield 1
        em.e(f"v_and_b32 v{g1}, 0xffff0000, v{g1}"); yield 1
        em.e(f"v_mul_f32 v{a0}, v{g0}, v{g0}"); yield 1
        em.e(f"v_mul_f32 v{a1}, v{g1}, v{g1}"); yield 1
        em.e(f"v_fmamk_f32 v{a0}, v{a0}, {f32bits(GC1)}, v{V_GC0}"); yield 1
        em.e(f"v_fmamk_f32 v{a1}, v{a1}, {f32bits(GC1)}, v{V_GC0}"); yield 1
        em.e(f"v_mul_f32 v{a0}, v{a0}, v{g0}"); yield 1
        em.e(f"v_mul_f32 v{a1}, v{a1}, v{g1}"); yield 1
        em.e(f"v_exp_f32 v{a0}, v{a0}"); yield 2
        em.e(f"v_exp_f32 v{a1}, v{a1}"); yield 2
        em.e(f"v_lshlrev_b32 v{u0}, 16, v{u1}"); yield 1
        em.e(f"v_add_f32 v{a0}, 1.0, v{a0}"); yield 1
        em.e(f"v_add_f32 v{a1}, 1.0, v{a1}"); yield 1
        em.e(f"v_rcp_f32 v{a0}, v{a0}"); yield 2
        em.e(f"v_rcp_f32 v{a1}, v{a1}"); yield 2
        em.e(f"v_and_b32 v{u1}, 0xffff0000, v{u1}"); yield 1
        em.e(f"v_mul_f32 v{a0}, v{a0}, v{g0}"); yield 1
        em.e(f"v_mul_f32 v{a1}, v{a1}, v{g1}"); yield 1
        em.e(f"v_cvt_pk_bf16_f32 v{a1}, v{a0}, v{a1}"); yield 1
        em.e(f"v_lshlrev_b32 v{a0}, 16, v{a1}"); yield 1
        em.e(f"v_and_b32 v{a1}, 0xffff0000, v{a1}"); yield 1
        em.e(f"v_mul_f32 v{a0}, v{a0}, v{u0}"); yield 1
        em.e(f"v_mul_f32 v{a1}, v{a1}, v{u1}"); yield 1
        em.e(f"v_cvt_pk_bf16_f32 v{o+p}, v{a0}, v{a1}"); yield 1
    em.vm(f"buffer_store_dwordx4 v[{o}:{o+3}], v{vst}, s[{S_WS}:{S_WS+3}], s{S_HB} offen offset:{st_off}"); yield 3

V_GC0 = 30

def gen_F(em):
    WSL = 16384; NW = 6; XB = NW * WSL; NX = 4
    em.e(f"""
    v_and_b32 v1, 63, v0
    v_lshrrev_b32 v2, 3, v1
    v_and_b32 v3, 7, v1
    """)
    em.e(f"""
    v_lshrrev_b32 v6, 4, v1
    v_xor_b32 v7, v3, v6
    v_lshlrev_b32 v7, 4, v7
    s_lshl_b32 s{S_T0}, s{S_M}, 7
    s_lshl_b32 s{S_T0+1}, s{S_WV}, 5
    s_add_u32 s{S_T0}, s{S_T0}, s{S_T0+1}
    v_add_u32 v8, s{S_T0}, v2
    s_movk_i32 s{S_T0+2}, 1280
    v_mul_lo_u32 v8, v8, s{S_T0+2}
    v_add_u32 v4, v8, v7
    v_xor_b32 v7, 64, v7
    v_add_u32 v5, v8, v7
    v_add_u32 v5, {8*1280}, v5
    """)
    em.e(f"""
    v_bfe_u32 v9, v1, 4, 1
    v_lshlrev_b32 v9, 1, v9
    v_xor_b32 v9, v9, v3
    v_lshlrev_b32 v9, 4, v9
    s_lshl_b32 s{S_T0}, s{S_WV}, 4
    v_add_u32 v10, s{S_T0}, v2
    s_movk_i32 s{S_T0+2}, 3456
    v_mul_lo_u32 v10, v10, s{S_T0+2}
    s_mul_i32 s{S_T0+1}, s{S_C}, 384
    v_add_u32 v10, s{S_T0+1}, v10
    v_add_u32 v6, v10, v9
    v_xor_b32 v9, 64, v9
    v_add_u32 v7, v10, v9
    s_lshl_b32 s{S_MW}, s{S_WV}, 11
    s_lshl_b32 s{S_MX}, s{S_WV}, 12
    s_add_u32 s{S_MX}, s{S_MX}, {XB}
    """)
    em.e(f"""
    v_and_b32 v12, 31, v1
    v_lshrrev_b32 v13, 5, v1
    v_bfe_u32 v14, v1, 1, 3
    v_xor_b32 v14, v14, v13
    v_lshlrev_b32 v15, 7, v12
    v_add_u32 v15, s{S_MX}, v15
    """)
    for sp in range(4):
        em.e(f"v_xor_b32 v16, {2*sp}, v14\nv_lshl_add_u32 v{8+sp}, v16, 4, v15")
    em.e(f"""
    v_bfe_u32 v20, v1, 4, 1
    v_lshrrev_b32 v21, 5, v1
    v_bfe_u32 v22, v1, 2, 2
    v_and_b32 v23, 3, v1
    v_lshlrev_b32 v24, 13, v20
    v_lshl_add_u32 v24, v21, 10, v24
    v_lshl_add_u32 v24, v22, 7, v24
    v_lshl_add_u32 v24, v23, 3, v24
    v_lshrrev_b32 v25, 1, v22
    v_lshl_or_b32 v25, v20, 1, v25
    """)
    for t in range(4):
        em.e(f"v_xor_b32 v26, {t}, v25\nv_lshl_add_u32 v{12+t}, v26, 5, v24\nv_add_u32 v{16+t}, 0x10000, v{12+t}")
    em.e(f"""
    v_bfe_u32 v21, v1, 4, 1
    s_lshl_b32 s{S_T0}, s{S_WV}, 1
    v_add_u32 v21, s{S_T0}, v21
    s_mov_b32 s{S_T0+1}, {54*1024}
    v_mul_lo_u32 v21, v21, s{S_T0+1}
    v_and_b32 v22, 15, v1
    v_lshrrev_b32 v23, 5, v1
    v_lshl_add_u32 v22, v23, 4, v22
    v_lshl_add_u32 v20, v22, 4, v21
    s_mul_i32 s{S_HB}, s{S_M}, {8*54*1024}
    s_mul_i32 s{S_T0}, s{S_C}, {12*512}
    s_add_u32 s{S_HB}, s{S_HB}, s{S_T0}
    s_add_u32 s{S_HB}, s{S_HB}, {HF_OFF}
    v_mov_b32 v{V_GC0}, {f32bits(GC0)}
    """)
    ACC = [[f"v{64+16*t}" for t in range(4)], [f"v{128+16*t}" for t in range(4)]]
    TMP = 32
    def w_dma(em, gi, i, slot):
        cl = []
        for mat in range(2):
            for bb in range(2):
                def c(mat=mat, bb=bb):
                    em.e(f"s_add_u32 m0, s{S_MW}, {slot*WSL + mat*8192 + bb*1024}")
                    em.e(f"s_mov_b32 s{S_TMP}, {(i*64 + bb*8)*3456 + gi*128}")
                    return em.vm(f"buffer_load_dwordx4 v{6+mat}, s[{S_W0+4*mat}:{S_W0+4*mat+3}], s{S_TMP} offen lds")
                cl.append(c)
        return cl
    def x_dma(em, gi, i, slot):
        cl = []
        for n in range(4):
            def c(n=n):
                em.e(f"s_add_u32 m0, s{S_MX}, {slot*WSL + n*1024}")
                em.e(f"s_mov_b32 s{S_TMP}, {i*128 + (n>>1)*16*1280}")
                return em.vm(f"buffer_load_dwordx4 v{4+(n&1)}, s[{S_X}:{S_X+3}], s{S_TMP} offen lds")
            cl.append(c)
        return cl
    def tr(t, slot, sp, hf):
        off = slot * WSL + sp * 2048 + hf * 512
        if off >= 65536: return (16 + t, off - 65536)
        return (12 + t, off)
    def xread(gi, k, sp, slot):
        return f"ds_read_b128 a[{4*k}:{4*k+3}], v{8+sp} offset:{slot*WSL}"
    def xreg(gi, k):
        return f"a[{4*k}:{4*k+3}]"
    def mk_bg(gi):
        def bgf(em):
            for t in range(4):
                yield from f_epilogue_tile(em, int(ACC[gi % 2][t][1:]), t * 512, TMP + 16 * (t & 1), 20)
            em.e(f"s_add_u32 s{S_HB}, s{S_HB}, 2048"); yield 1
        return bgf
    groups = []
    for gi in range(3):
        groups.append(dict(T=4, acc=ACC[gi % 2], loadx=(gi == 0), bg=(mk_bg(gi - 1) if gi > 0 else None)))
    def prefetch(em):
        if not PREFETCH: return
        em.e(f"""
        s_lshl_b32 s{S_T0}, s{S_WV}, 6
        v_add_u32 v21, s{S_T0}, v1
        s_mov_b32 s{S_T0+1}, {(1<<32)//3+1}
        v_mul_hi_u32 v22, v21, s{S_T0+1}
        v_mul_u32_u24 v23, 3, v22
        v_sub_u32 v23, v21, v23
        s_and_b32 s{S_T0+2}, s{S_M}, 7
        s_mul_i32 s{S_T0+2}, s{S_T0+2}, 80
        v_add_u32 v22, s{S_T0+2}, v22
        s_movk_i32 s{S_T0+3}, 3456
        v_mul_lo_u32 v22, v22, s{S_T0+3}
        v_lshl_add_u32 v22, v23, 7, v22
        s_mul_i32 s{S_T0+1}, s{S_C}, 384
        v_add_u32 v22, s{S_T0+1}, v22
        v_cmp_gt_u32 vcc, 240, v21
        v_mov_b32 v23, 0x80000000
        s_nop 0
        v_cndmask_b32 v22, v23, v22, vcc
        """)
        em.vm(f"buffer_load_dword v24, v22, s[{S_W0}:{S_W0+3}], 0 offen")
        em.vm(f"buffer_load_dword v24, v22, s[{S_W1}:{S_W1+3}], 0 offen")
        em.e(f"""
        s_and_b32 s{S_T0}, s{S_C}, 1
        s_lshl_b32 s{S_T0+1}, s{S_M}, 1
        s_add_u32 s{S_T0}, s{S_T0}, s{S_T0+1}
        s_mul_i32 s{S_T0}, s{S_T0}, {64*1280}
        v_lshlrev_b32 v22, 7, v0
        """)
        for n in range(3):
            if n == 2:
                em.e(f"v_cmp_gt_u32 vcc, 128, v0\nv_mov_b32 v23, 0x80000000\ns_nop 0\nv_cndmask_b32 v22, v23, v22, vcc")
            em.vm(f"buffer_load_dword v24, v22, s[{S_X}:{S_X+3}], s{S_T0} offen")
            em.e(f"s_add_u32 s{S_T0}, s{S_T0}, 32768")
    cfg = dict(after_prologue=prefetch, groups=groups, wslots=NW, xslots=NX, w_dma=w_dma, x_dma=x_dma, tr=tr, xread=xread, xreg=xreg,
               wfrag=[192 + 4 * k for k in range(6)], D=3, budget=3,
               stamp_at={0:1, 1:8, 5:2, 10:3, 15:4, 20:5, 25:6})
    engine(em, cfg)
    stamp(em, 9)
    for _ in mk_bg(2)(em): pass
    stamp(em, 10)

def k1_prologue(em):
    em.e(f"""
    s_load_dwordx4 s[40:43], s[0:1], 0
    s_load_dwordx4 s[44:47], s[0:1], 16
    s_load_dwordx4 s[48:51], s[0:1], 40
    s_load_dwordx4 s[52:55], s[0:1], 56
    s_load_dwordx2 s[56:57], s[0:1], 88
    v_lshrrev_b32 v1, 6, v0
    s_nop 0
    v_readfirstlane_b32 s{S_WV}, v1
    """)
    em.wait_lgkm0()
    srd(em, S_X, 40, 2048 * 1280)
    srd(em, S_WS, 56, WS_BYTES)
    stamp(em, 0)

KD = """.section .rodata,"a"
.p2align 6
.amdhsa_kernel {name}
  .amdhsa_next_free_vgpr {nv}
  .amdhsa_next_free_sgpr 96
  .amdhsa_accum_offset {ao}
  .amdhsa_group_segment_fixed_size 0
  .amdhsa_kernarg_size 96
  .amdhsa_user_sgpr_count 2
  .amdhsa_user_sgpr_kernarg_segment_ptr 1
  .amdhsa_system_sgpr_workgroup_id_x 1
.end_amdhsa_kernel
"""

def gen_k1(types=("F",)):
    em = Em()
    em.raw(".text\n.globl k1_kernel\n.p2align 8\n.type k1_kernel,@function\nk1_kernel:")
    em.e("s_cmp_ge_u32 s2, 256\ns_cbranch_scc1 L_k1_done")
    k1_prologue(em)
    em.e(f"""
    s_and_b32 s{S_T0}, s2, 1
    s_bfe_u32 s{S_T0+1}, s2, 0x20001
    s_lshr_b32 s{S_T0+2}, s2, 3
    s_cmp_ge_u32 s{S_T0+2}, 18
    s_cbranch_scc1 L_k1_notF
    s_lshl_b32 s{S_M}, s{S_T0}, 3
    s_cmp_ge_u32 s{S_T0+2}, 16
    s_cbranch_scc1 L_k1_F8
    s_and_b32 s{S_T0+3}, s{S_T0+2}, 7
    s_add_u32 s{S_M}, s{S_M}, s{S_T0+3}
    s_lshr_b32 s{S_T0+3}, s{S_T0+2}, 3
    s_lshl_b32 s{S_C}, s{S_T0+1}, 1
    s_add_u32 s{S_C}, s{S_C}, s{S_T0+3}
    s_branch L_k1_F
    """)
    em.label("L_k1_F8")
    em.e(f"""
    s_lshl_b32 s{S_T0+3}, s{S_T0+1}, 1
    s_add_u32 s{S_M}, s{S_M}, s{S_T0+3}
    s_add_u32 s{S_M}, s{S_M}, s{S_T0+2}
    s_sub_u32 s{S_M}, s{S_M}, 16
    s_mov_b32 s{S_C}, 8
    """)
    em.label("L_k1_F")
    srd(em, S_W0, 48, 640 * 3456)
    srd(em, S_W1, 50, 640 * 3456)
    gen_F(em)
    em.e("s_endpgm")
    em.label("L_k1_notF")
    em.label("L_k1_done")
    em.e("s_endpgm")
    return em.finish(), em

if __name__ == "__main__":
    import sys
    if len(sys.argv) > 1: STAMPS = True
    body, em = gen_k1()
    hdr = "; @launch kernel=k1_kernel grid=(256,1,1) block=(256,1,1) lds=163840\n.amdgcn_target \"amdgcn-amd-amdhsa--gfx950\"\n"
    open("k1_test.s", "w").write(hdr + body + "\n" + KD.format(name="k1_kernel", nv=512, ao=256))
    print("nops inserted", em.nops, "instrs", len(em.items))
```

```python
from asmlib import *
import k1
from k1 import *

S_PHI = 64
S_L2E = 68
S_OB = 69

V_XD0, V_XD1 = 4, 5
V_WD = 6
V_XR = 11
V_TR = 15
V_WBD = 17
V_PW = 18
V_PR = 19
V_OUT = 20
V_VWA, V_VWB = 21, 22
V_PHT, V_VT = 23, 24
V_T = 25
WFR = [32 + 4 * k for k in range(6)]
V_AF = 56
ACC0 = 64
V_CH = 144
V_SM = 176
PITCH = 328

def qkv_setup(em, kind, XB, WSL_X, wbd_base, p_base, v_base=None):
    em.e(f"""
    v_and_b32 v1, 63, v0
    v_lshrrev_b32 v2, 3, v1
    v_and_b32 v3, 7, v1
    v_lshrrev_b32 v26, 4, v1
    v_xor_b32 v27, v3, v26
    v_lshlrev_b32 v27, 4, v27
    s_lshl_b32 s{S_T0}, s{S_M}, 7
    s_lshl_b32 s{S_T0+1}, s{S_WV}, 5
    s_add_u32 s{S_T0}, s{S_T0}, s{S_T0+1}
    v_add_u32 v28, s{S_T0}, v2
    s_movk_i32 s{S_T0+2}, 1280
    v_mul_lo_u32 v28, v28, s{S_T0+2}
    v_add_u32 v{V_XD0}, v28, v27
    v_xor_b32 v27, 64, v27
    v_add_u32 v{V_XD1}, v28, v27
    v_add_u32 v{V_XD1}, {8*1280}, v{V_XD1}
    s_lshl_b32 s{S_MW}, s{S_WV}, 10
    s_lshl_b32 s{S_MX}, s{S_WV}, 12
    s_add_u32 s{S_MX}, s{S_MX}, {XB}
    """)
    if kind == "Q":
        em.e(f"s_mul_i32 s{S_T0+3}, s{S_C}, 640")
    else:
        em.e(f"s_mul_i32 s{S_T0+3}, s{S_C}, 160\ns_add_u32 s{S_T0+3}, s{S_T0+3}, 1280")
    em.e(f"s_movk_i32 s{S_T0+2}, 3840")
    nj = 5 if kind == "Q" else 3
    for j in range(nj):
        em.e(f"""
        v_add_u32 v26, {256*j}, v0
        v_mul_u32_u24 v27, 3277, v26
        v_lshrrev_b32 v27, 16, v27
        v_mul_u32_u24 v28, 20, v27
        v_sub_u32 v28, v26, v28
        v_mul_lo_u32 v27, v27, s{S_T0+2}
        v_lshl_add_u32 v27, v28, 4, v27
        v_add_u32 v{V_WD+j}, s{S_T0+3}, v27
        """)
        if kind == "KV":
            em.e(f"""
            v_cmp_le_u32 vcc, 10, v28
            v_add_u32 v27, 1120, v{V_WD+j}
            s_nop 0
            v_cndmask_b32 v{V_WD+j}, v{V_WD+j}, v27, vcc
            """)
            if j == 2:
                em.e(f"""
                v_cmp_gt_u32 vcc, 640, v26
                v_mov_b32 v27, 0x80000000
                s_nop 0
                v_cndmask_b32 v{V_WD+j}, v27, v{V_WD+j}, vcc
                """)
    em.e(f"""
    v_and_b32 v26, 31, v1
    v_lshrrev_b32 v27, 5, v1
    v_bfe_u32 v28, v1, 1, 3
    v_xor_b32 v28, v28, v27
    v_lshlrev_b32 v29, 7, v26
    v_add_u32 v29, s{S_MX}, v29
    """)
    for sp in range(4):
        em.e(f"v_xor_b32 v30, {2*sp}, v28\nv_lshl_add_u32 v{V_XR+sp}, v30, 4, v29")
    em.e(f"""
    s_mul_i32 s{S_T0}, s{S_WV}, {32*PITCH}
    s_add_u32 s{S_T0}, s{S_T0}, {p_base}
    v_mul_u32_u24 v29, {PITCH}, v26
    v_add_u32 v29, s{S_T0}, v29
    v_lshl_add_u32 v{V_PW}, v27, 3, v29
    """)
    if v_base is not None:
        em.e(f"""
        s_mul_i32 s{S_T0+1}, s{S_WV}, {32*200}
        s_add_u32 s{S_T0+1}, s{S_T0+1}, {v_base}
        v_mul_u32_u24 v29, 200, v26
        v_add_u32 v29, s{S_T0+1}, v29
        v_lshl_add_u32 v{V_VWA}, v27, 3, v29
        v_lshl_add_u32 v{V_VWB}, v27, 4, v29
        """)
    em.e(f"""
    v_and_b32 v26, 15, v1
    v_lshrrev_b32 v27, 4, v1
    v_mul_u32_u24 v28, {PITCH}, v26
    v_add_u32 v28, s{S_T0}, v28
    v_mul_u32_u24 v29, 40, v27
    v_add_u32 v{V_PR}, v28, v29
    """)
    if kind == "Q":
        em.e(f"v_mul_u32_u24 v29, 1280, v27\nv_lshl_add_u32 v{V_OUT}, v26, 4, v29")
    else:
        em.e(f"v_mul_u32_u24 v29, 80, v27\nv_add_u32 v{V_OUT}, v28, v29")
    em.e(f"""
    v_bfe_u32 v26, v1, 4, 1
    v_lshrrev_b32 v27, 5, v1
    v_bfe_u32 v28, v1, 2, 2
    v_and_b32 v29, 3, v1
    v_lshlrev_b32 v30, 5, v26
    v_lshl_add_u32 v30, v29, 3, v30
    v_lshl_add_u32 v31, v27, 3, v28
    v_mul_u32_u24 v31, 320, v31
    v_add_u32 v{V_TR}, v31, v30
    v_add_u32 v{V_TR+1}, 0x10000, v{V_TR}
    v_lshl_add_u32 v31, v27, 2, v28
    v_lshl_add_u32 v31, v31, 6, v30
    v_add_u32 v{V_WBD}, {wbd_base}, v31
    """)
    if v_base is not None:
        em.e(f"""
        v_lshrrev_b32 v26, 4, v1
        v_lshl_add_u32 v26, v26, 3, v28
        v_mul_u32_u24 v27, {PITCH}, v26
        v_lshl_add_u32 v27, v29, 3, v27
        v_add_u32 v{V_PHT}, s{S_T0}, v27
        v_mul_u32_u24 v27, 200, v26
        v_lshl_add_u32 v27, v29, 3, v27
        v_add_u32 v{V_VT}, s{S_T0+1}, v27
        """)
    em.e(f"s_mov_b32 s{S_L2E}, {f32bits(LOG2E)}")

def build_wbd(em, nblk, s_head0, wbd_base, T):
    n_it = (nblk * 128 + 255) // 256
    ids = []
    em.e(f"s_mul_i32 s{S_TMP+1}, s{s_head0}, 800"); yield 1
    em.e(f"v_lshlrev_b32 v{T+5}, 3, v0"); yield 1
    em.e(f"v_add_u32 v{T+5}, {wbd_base}, v{T+5}"); yield 1
    for n in range(n_it):
        a = T
        em.e(f"v_add_u32 v{a}, {256*n}, v0"); yield 1
        em.e(f"v_lshrrev_b32 v{a+1}, 7, v{a}"); yield 1
        em.e(f"v_add_u32 v{a+2}, 1, v{a+1}"); yield 1
        em.e(f"v_lshrrev_b32 v{a+2}, 2, v{a+2}"); yield 1
        em.e(f"v_lshlrev_b32 v{a+3}, 1, v{a+2}"); yield 1
        em.e(f"v_sub_u32 v{a+1}, v{a+1}, v{a+3}"); yield 1
        em.e(f"v_bfe_u32 v{a+3}, v{a}, 3, 4"); yield 1
        em.e(f"v_lshl_add_u32 v{a+1}, v{a+1}, 4, v{a+3}"); yield 1
        em.e(f"v_and_b32 v{a+3}, 7, v{a}"); yield 1
        em.e(f"v_lshlrev_b32 v{a+3}, 2, v{a+3}"); yield 1
        em.e(f"v_lshl_add_u32 v{a+2}, v{a+2}, 5, v{a+3}"); yield 1
        em.e(f"v_mul_u32_u24 v{a+3}, 3277, v{a+1}"); yield 1
        em.e(f"v_lshrrev_b32 v{a+3}, 16, v{a+3}"); yield 1
        em.e(f"v_mul_u32_u24 v{a+4}, 3277, v{a+2}"); yield 1
        em.e(f"v_lshrrev_b32 v{a+4}, 16, v{a+4}"); yield 1
        em.e(f"v_cmp_eq_u32 vcc, v{a+3}, v{a+4}"); yield 1
        em.e(f"v_mul_u32_u24 v{a+1}, 40, v{a+1}"); yield 1
        em.e(f"v_lshl_add_u32 v{a+1}, v{a+2}, 1, v{a+1}"); yield 1
        em.e(f"v_mul_u32_u24 v{a+4}, 40, v{a+4}"); yield 1
        em.e(f"v_sub_u32 v{a+1}, v{a+1}, v{a+4}"); yield 1
        em.e(f"v_mov_b32 v{a+4}, 0x80000000"); yield 1
        em.e(f"v_cndmask_b32 v{a+1}, v{a+4}, v{a+1}, vcc"); yield 1
        d = T + 6 + 2 * (n % 2)
        vid = em.vm(f"buffer_load_dwordx2 v[{d}:{d+1}], v{a+1}, s[{S_PHI}:{S_PHI+3}], s{S_TMP+1} offen"); yield 3
        if n > 0:
            pd = T + 6 + 2 * ((n - 1) % 2)
            em.wait(vm=pvid)
            ids.append(em.lds(f"ds_write_b64 v{T+5}, v[{pd}:{pd+1}] offset:{2048*(n-1)}")); yield 2
        pvid = vid
    n = n_it
    pd = T + 6 + 2 * ((n - 1) % 2)
    em.wait(vm=pvid)
    ids.append(em.lds(f"ds_write_b64 v{T+5}, v[{pd}:{pd+1}] offset:{2048*(n-1)}")); yield 2
    em.wait(lds=ids[-1]); yield 1

def chain(em, ntile_out, nsteps, nquads_last):
    def qf(s):
        r = ACC0 + 16 * (s >> 1) + 8 * (s & 1); return f"v[{r}:{r+3}]"
    jobs = []
    for o in range(ntile_out):
        lo = max(0, 2 * o - 1); hi = min(nsteps - 1, 2 * o + 2)
        for s in range(lo, hi + 1): jobs.append((o, s, s == lo, s == hi))
    rid = {}
    def issue(n):
        o, s, _, _ = jobs[n]
        b = V_AF + 4 * (n % 2)
        blk = s + 2 * o
        em.lds(f"ds_read_b64_tr_b16 v[{b}:{b+1}], v{V_WBD} offset:{blk*1024}")
        rid[n] = em.lds(f"ds_read_b64_tr_b16 v[{b+2}:{b+3}], v{V_WBD} offset:{blk*1024+512}")
    def flush(o):
        a = V_CH + 16 * (o % 2)
        nq = nquads_last if o == ntile_out - 1 else 4
        for q in range(nq):
            em.e(f"v_cvt_pk_bf16_f32 v{a+4*q}, v{a+4*q}, v{a+4*q+1}"); yield 1
            em.e(f"v_cvt_pk_bf16_f32 v{a+4*q+1}, v{a+4*q+2}, v{a+4*q+3}"); yield 1
            em.last_p = em.lds(f"ds_write_b64 v{V_PW}, v[{a+4*q}:{a+4*q+1}] offset:{(32*o + 8*q)*2}"); yield 2
    issue(0); yield 2
    pending_flush = None
    for n, (o, s, first, last) in enumerate(jobs):
        if n + 1 < len(jobs): issue(n + 1); yield 2
        em.wait(lds=rid[n])
        a = V_CH + 16 * (o % 2); b = V_AF + 4 * (n % 2)
        c = "0" if first else f"v[{a}:{a+15}]"
        em.e(f"v_mfma_f32_32x32x16_bf16 v[{a}:{a+15}], v[{b}:{b+3}], {qf(s)}, {c}"); yield 8
        if pending_flush is not None and not first:
            yield from flush(pending_flush); pending_flush = None
        if last:
            if pending_flush is not None:
                yield from flush(pending_flush)
            pending_flush = o
    yield 8
    yield from flush(pending_flush)

def softmax_rounds(em, rounds, out_fn):
    R = V_SM
    PK = R; P = R + 10; E = R + 30; T = R + 50; O = R + 56
    def issue(off):
        return [em.lds(f"ds_read_b64 v[{PK+2*i}:{PK+2*i+1}], v{V_PR} offset:{off+8*i}") for i in range(5)]
    em.wait(lds=em.last_p)
    ids = issue(rounds[0]); yield 5
    for ri, off in enumerate(rounds):
        em.wait(lds=ids[-1])
        for i in range(10):
            em.e(f"v_lshlrev_b32 v{P+2*i}, 16, v{PK+i}"); yield 1
            em.e(f"v_and_b32 v{P+2*i+1}, 0xffff0000, v{PK+i}"); yield 1
        if ri + 1 < len(rounds) and not out_fn.inplace:
            ids = issue(rounds[ri + 1]); yield 5
        mx, mn, mx2, mn2 = T, T + 1, T + 2, T + 3
        em.e(f"v_max3_f32 v{mx}, v{P}, v{P+1}, v{P+2}"); yield 1
        em.e(f"v_min3_f32 v{mn}, v{P}, v{P+1}, v{P+2}"); yield 1
        em.e(f"v_max3_f32 v{mx2}, v{P+3}, v{P+4}, v{P+5}"); yield 1
        em.e(f"v_min3_f32 v{mn2}, v{P+3}, v{P+4}, v{P+5}"); yield 1
        for i in range(6, 18, 4):
            em.e(f"v_max3_f32 v{mx}, v{mx}, v{P+i}, v{P+i+1}"); yield 1
            em.e(f"v_min3_f32 v{mn}, v{mn}, v{P+i}, v{P+i+1}"); yield 1
            em.e(f"v_max3_f32 v{mx2}, v{mx2}, v{P+i+2}, v{P+i+3}"); yield 1
            em.e(f"v_min3_f32 v{mn2}, v{mn2}, v{P+i+2}, v{P+i+3}"); yield 1
        em.e(f"v_max3_f32 v{mx}, v{mx}, v{P+18}, v{P+19}"); yield 1
        em.e(f"v_min3_f32 v{mn}, v{mn}, v{P+18}, v{P+19}"); yield 1
        em.e(f"v_max_f32 v{mx}, v{mx}, v{mx2}"); yield 1
        em.e(f"v_min_f32 v{mn}, v{mn}, v{mn2}"); yield 1
        em.e(f"v_mul_f32 v{mx}, s{S_L2E}, v{mx}"); yield 1
        em.e(f"v_mul_f32 v{mn}, s{S_L2E}, v{mn}"); yield 1
        for i in range(20):
            em.e(f"v_fma_f32 v{E+i}, -v{P+i}, s{S_L2E}, v{mn}"); yield 1
            em.e(f"v_fma_f32 v{P+i}, v{P+i}, s{S_L2E}, -v{mx}"); yield 1
            em.e(f"v_exp_f32 v{E+i}, v{E+i}"); yield 2
            em.e(f"v_exp_f32 v{P+i}, v{P+i}"); yield 2
        sp, sn_, sp2, sn2 = T, T + 1, T + 2, T + 3
        em.e(f"v_add_f32 v{sp}, v{P}, v{P+1}"); yield 1
        em.e(f"v_add_f32 v{sn_}, v{E}, v{E+1}"); yield 1
        em.e(f"v_add_f32 v{sp2}, v{P+2}, v{P+3}"); yield 1
        em.e(f"v_add_f32 v{sn2}, v{E+2}, v{E+3}"); yield 1
        for i in range(4, 20, 2):
            em.e(f"v_add_f32 v{sp}, v{sp}, v{P+i}"); yield 1
            em.e(f"v_add_f32 v{sn_}, v{sn_}, v{E+i}"); yield 1
            em.e(f"v_add_f32 v{sp2}, v{sp2}, v{P+i+1}"); yield 1
            em.e(f"v_add_f32 v{sn2}, v{sn2}, v{E+i+1}"); yield 1
        em.e(f"v_add_f32 v{sp}, v{sp}, v{sp2}"); yield 1
        em.e(f"v_add_f32 v{sn_}, v{sn_}, v{sn2}"); yield 1
        em.e(f"v_rcp_f32 v{sp}, v{sp}"); yield 2
        em.e(f"v_rcp_f32 v{sn_}, v{sn_}"); yield 2
        for i in range(10):
            em.e(f"v_mul_f32 v{P+2*i}, v{P+2*i}, v{sp}"); yield 1
            em.e(f"v_mul_f32 v{P+2*i+1}, v{P+2*i+1}, v{sp}"); yield 1
            em.e(f"v_mul_f32 v{E+2*i}, v{E+2*i}, v{sn_}"); yield 1
            em.e(f"v_mul_f32 v{E+2*i+1}, v{E+2*i+1}, v{sn_}"); yield 1
            em.e(f"v_cvt_pk_bf16_f32 v{O+i}, v{P+2*i}, v{P+2*i+1}"); yield 1
            em.e(f"v_cvt_pk_bf16_f32 v{O+10+i}, v{E+2*i}, v{E+2*i+1}"); yield 1
        yield from out_fn(em, ri, O)
        if ri + 1 < len(rounds) and out_fn.inplace:
            ids = issue(rounds[ri + 1]); yield 5

def conv_qf(em, nsteps):
    for s in range(nsteps):
        r = ACC0 + 16 * (s >> 1) + 8 * (s & 1)
        for i in range(4):
            em.e(f"v_cvt_pk_bf16_f32 v{r+i}, v{r+2*i}, v{r+2*i+1}"); yield 1

def copy_acc(em, abase, n):
    for i in range(n):
        em.e(f"v_accvgpr_read_b32 v{ACC0+i}, a{abase+i}"); yield 1

def gen_Q(em):
    WSL = 20480; NW = 5; XB = NW * WSL; NX = 3; XSL = 16384
    WBD = XB; PB = XB + 18432
    qkv_setup(em, "Q", XB, XSL, WBD, PB)
    em.e(f"""
    s_lshl_b32 s{S_T0}, s{S_M}, 3
    s_lshl_b32 s{S_T0+1}, s{S_WV}, 1
    s_add_u32 s{S_T0}, s{S_T0}, s{S_T0+1}
    s_mul_i32 s{S_OB}, s{S_T0}, 40960
    s_mul_i32 s{S_T0}, s{S_C}, {4*5120}
    s_add_u32 s{S_OB}, s{S_OB}, s{S_T0}
    s_add_u32 s{S_OB}, s{S_OB}, {PQF_OFF}
    s_lshl_b32 s{S_XOFF}, s{S_C}, 4
    s_add_u32 s{S_WOFF}, s{S_XOFF}, 8
    """)
    def w_dma(em, gi, i, slot):
        cl = []
        for j in range(5):
            def c(j=j):
                em.e(f"s_add_u32 m0, s{S_MW}, {slot*WSL + j*4096}")
                em.e(f"s_mov_b32 s{S_TMP}, {i*64*3840 + gi*320}")
                return em.vm(f"buffer_load_dwordx4 v{V_WD+j}, s[{S_W0}:{S_W0+3}], s{S_TMP} offen lds")
            cl.append(c)
        return cl
    def x_dma(em, gi, i, slot):
        cl = []
        for n in range(4):
            def c(n=n):
                em.e(f"s_add_u32 m0, s{S_MX}, {slot*XSL + n*1024}")
                em.e(f"s_mov_b32 s{S_TMP}, {i*128 + (n>>1)*16*1280}")
                return em.vm(f"buffer_load_dwordx4 v{V_XD0+(n&1)}, s[{S_X}:{S_X+3}], s{S_TMP} offen lds")
            cl.append(c)
        return cl
    def tr(t, slot, sp, hf):
        off = slot * WSL + (16 * sp + 4 * hf) * 320 + t * 64
        if off >= 65536: return (V_TR + 1, off - 65536)
        return (V_TR, off)
    def xread(gi, k, sp, slot):
        return f"ds_read_b128 a[{4*k}:{4*k+3}], v{V_XR+sp} offset:{slot*XSL}"
    def xreg(gi, k): return f"a[{4*k}:{4*k+3}]"
    def epi(em, gi):
        yield from conv_qf(em, 10)
        yield from chain(em, 5, 10, 4)
        def out_fn(em, ri, O):
            tr_, hh = ri >> 1, ri & 1
            em.e(f"s_add_u32 s{S_TMP+1}, s{S_OB}, {tr_*40960 + (2*gi+hh)*5120}"); yield 1
            for c in range(5):
                em.vm(f"buffer_store_dwordx4 v[{O+4*c}:{O+4*c+3}], v{V_OUT}, s[{S_WS}:{S_WS+3}], s{S_TMP+1} offen offset:{c*256}"); yield 3
        out_fn.inplace = False
        yield from softmax_rounds(em, [(ri >> 1) * 16 * PITCH + (ri & 1) * 160 for ri in range(4)], out_fn)
    def bg1(em):
        yield from build_wbd(em, 18, S_XOFF, WBD, V_SM)
        yield "BAR"
        yield from epi(em, 0)
        yield "BAR"
        yield from build_wbd(em, 18, S_WOFF, WBD, V_SM)
    groups = [dict(T=5, acc=[f"v{ACC0+16*t}" for t in range(5)], loadx=True, bg=None),
              dict(T=5, acc=[f"a{160+16*t}" for t in range(5)], loadx=False, bg=bg1)]
    cfg = dict(groups=groups, wslots=NW, xslots=NX, w_dma=w_dma, x_dma=x_dma, tr=tr, xread=xread, xreg=xreg,
               wfrag=WFR, D=3, budget=3, stamp_at={0: 1, 1: 8, 5: 2, 10: 3, 15: 4})
    engine(em, cfg)
    stamp(em, 9)
    em.e("s_barrier")
    for _ in copy_acc(em, 160, 80): pass
    for _ in epi(em, 1): pass
    stamp(em, 10)

def gen_KV(em):
    WSL = 10240; NW = 5; XB = NW * WSL; NX = 2; XSL = 16384
    WBD = XB + NX * XSL; PB = WBD + 10240; VB = PB + 4 * 32 * PITCH
    assert VB + 4 * 32 * 200 <= 163840
    A_X = 0; A_ACC1 = 32; A_KV = 112
    qkv_setup(em, "KV", XB, XSL, WBD, PB, VB)
    em.e(f"s_lshl_b32 s{S_XOFF}, s{S_C}, 2")
    assert VB + 4 * 32 * 200 + 2048 <= 163840
    em.e(f"s_add_u32 s{S_OB}, s{S_MW}, {VB + 4*32*200 - 2048}")
    def w_dma(em, gi, i, slot):
        cl = []
        for j in range(3):
            def c(j=j):
                if j == 2:
                    em.e(f"s_add_u32 s{S_TMP}, s{S_MW}, {slot*WSL + j*4096}")
                    em.e(f"s_cmp_lt_u32 s{S_WV}, 2")
                    em.e(f"s_cselect_b32 m0, s{S_TMP}, s{S_OB}")
                else:
                    em.e(f"s_add_u32 m0, s{S_MW}, {slot*WSL + j*4096}")
                em.e(f"s_mov_b32 s{S_TMP}, {i*32*3840}")
                return em.vm(f"buffer_load_dwordx4 v{V_WD+j}, s[{S_W0}:{S_W0+3}], s{S_TMP} offen lds")
            cl.append(c)
        return cl
    def x_dma(em, gi, i, slot):
        cl = []
        for n in range(4):
            def c(n=n):
                em.e(f"s_add_u32 m0, s{S_MX}, {slot*XSL + n*1024}")
                em.e(f"s_mov_b32 s{S_TMP}, {i*128 + (n>>1)*16*1280 + gi*128*1280}")
                return em.vm(f"buffer_load_dwordx4 v{V_XD0+(n&1)}, s[{S_X}:{S_X+3}], s{S_TMP} offen lds")
            cl.append(c)
        return cl
    def tr(t, slot, sp, hf):
        return (V_TR, slot * WSL + (16 * sp + 4 * hf) * 320 + t * 64)
    def xread(gi, k, sp, slot):
        r = A_X + 4 * (k % 8)
        return f"ds_read_b128 a[{r}:{r+3}], v{V_XR+sp} offset:{slot*XSL}"
    def xreg(gi, k):
        r = A_X + 4 * (k % 8); return f"a[{r}:{r+3}]"
    def epi(em, gi):
        for (t, a) in [(2, 2), (2, 3)] + [(t, a) for t in (3, 4) for a in range(4)]:
            c0 = 32 * t + 8 * a - 80
            p0 = c0 + 4 * (c0 // 20); p1 = (c0 + 4) + 4 * ((c0 + 4) // 20)
            va = V_VWA if p1 - p0 == 4 else V_VWB
            assert p1 - p0 in (4, 8)
            r = ACC0 + 16 * t + 4 * a
            em.e(f"v_cvt_pk_bf16_f32 v{r}, v{r}, v{r+1}"); yield 1
            em.e(f"v_cvt_pk_bf16_f32 v{r+1}, v{r+2}, v{r+3}"); yield 1
            em.lds(f"ds_write_b64 v{va}, v[{r}:{r+1}] offset:{p0*2}"); yield 2
        yield from conv_qf(em, 5)
        yield from chain(em, 3, 5, 2)
        def out_fn(em, ri, O):
            for c in range(5):
                em.last_p = em.lds(f"ds_write_b128 v{V_OUT}, v[{O+4*c}:{O+4*c+3}] offset:{ri*16*PITCH + 16*c}"); yield 3
        out_fn.inplace = True
        yield from softmax_rounds(em, [ri * 16 * PITCH for ri in range(2)], out_fn)
        em.wait(lds=em.last_p)
        def issue(h):
            b = V_SM + 20 * (h % 2)
            for a in range(3):
                for hf in range(2):
                    em.lds(f"ds_read_b64_tr_b16 v[{b+4*a+2*hf}:{b+4*a+2*hf+1}], v{V_PHT} offset:{4*hf*PITCH + (40*h+16*a)*2}")
            for bb in range(2):
                for hf in range(2):
                    last = em.lds(f"ds_read_b64_tr_b16 v[{b+12+4*bb+2*hf}:{b+12+4*bb+2*hf+1}], v{V_VT} offset:{4*hf*200 + (24*h+16*bb)*2}")
            return last
        l0 = issue(0); yield 10
        for h in range(4):
            if h < 3: l1 = issue(h + 1); yield 10
            em.wait(lds=l0)
            b = V_SM + 20 * (h % 2)
            for a in range(3):
                for bb in range(2):
                    r = A_KV + 24 * h + 8 * a + 4 * bb
                    c = "0" if gi == 0 else f"a[{r}:{r+3}]"
                    em.e(f"v_mfma_f32_16x16x32_bf16 a[{r}:{r+3}], v[{b+4*a}:{b+4*a+3}], v[{b+12+4*bb}:{b+12+4*bb+3}], {c}"); yield 4
            l0 = l1
    def pro(em):
        for _ in build_wbd(em, 9, S_XOFF, WBD, V_SM): pass
        em.e(f"""
        v_lshrrev_b32 v26, 5, v1
        v_mul_u32_u24 v26, 88, v26
        v_add_u32 v26, v26, v{V_VWA}
        v_mov_b32 v28, 0x3f803f80
        v_mov_b32 v29, 0x3f803f80
        """)
        em.lds(f"ds_write_b64 v26, v[28:29] offset:40")
        em.lds(f"ds_write_b64 v26, v[28:29] offset:88")
    groups = [dict(T=5, acc=[f"v{ACC0+16*t}" for t in range(5)], loadx=True, bg=None),
              dict(T=5, acc=[f"a{A_ACC1+16*t}" for t in range(5)], loadx=True, bg=lambda em: epi(em, 0))]
    cfg = dict(groups=groups, wslots=NW, xslots=NX, w_dma=w_dma, x_dma=x_dma, tr=tr, xread=xread, xreg=xreg,
               wfrag=WFR, D=3, budget=3, KSW=2, KSX=4, after_prologue=pro, stamp_at={0: 1, 2: 8, 10: 2, 20: 3, 30: 4})
    engine(em, cfg)
    stamp(em, 9)
    for _ in copy_acc(em, A_ACC1, 80): pass
    for _ in epi(em, 1): pass
    em.e("s_barrier")
    em.e(f"""
    v_lshlrev_b32 v26, 4, v1
    s_mul_i32 s{S_T0}, s{S_WV}, 24576
    v_add_u32 v26, s{S_T0}, v26
    """)
    for tl in range(24):
        r = A_KV + 4 * tl
        em.lds(f"ds_write_b128 v26, a[{r}:{r+3}] offset:{tl*1024}")
    em.wait_lgkm0()
    em.e("s_barrier")
    em.e(f"""
    v_lshlrev_b32 v26, 4, v1
    s_lshl_b32 s{S_T0}, s{S_WV}, 10
    v_add_u32 v26, s{S_T0}, v26
    v_add_u32 v31, 49152, v26
    v_and_b32 v27, 15, v1
    v_lshrrev_b32 v28, 4, v1
    s_lshr_b32 s{S_T0+1}, s{S_M}, 1
    s_lshl_b32 s{S_T0+1}, s{S_T0+1}, 5
    s_add_u32 s{S_T0+1}, s{S_T0+1}, s{S_XOFF}
    s_mul_i32 s{S_T0+1}, s{S_T0+1}, 3840
    s_add_u32 s{S_T0+1}, s{S_T0+1}, {KVP_OFF}
    """)
    for n in range(6):
        b = 64 + 16 * n
        for w in range(4):
            em.lds(f"ds_read_b128 v[{b+4*w}:{b+4*w+3}], v{26 if w < 2 else 31} offset:{(w%2)*24576 + n*4096}")
    for n in range(6):
        b = 64 + 16 * n
        em.e(f"""
        s_add_u32 s{S_T0+2}, s{S_WV}, {4*n}
        s_mul_hi_u32 s{S_T0+3}, s{S_T0+2}, {(1<<32)//6+1}
        s_mul_i32 s{S_T0+4}, s{S_T0+3}, 6
        s_sub_u32 s{S_T0+4}, s{S_T0+2}, s{S_T0+4}
        s_and_b32 s{S_T0+5}, s{S_T0+4}, 1
        s_lshr_b32 s{S_T0+4}, s{S_T0+4}, 1
        s_lshl_b32 s{S_T0+5}, s{S_T0+5}, 4
        s_lshl_b32 s{S_T0+4}, s{S_T0+4}, 4
        v_add_u32 v29, s{S_T0+5}, v27
        v_lshlrev_b32 v30, 2, v28
        v_add_u32 v30, s{S_T0+4}, v30
        v_cmp_ge_u32 vcc, 20, v29
        v_cmp_gt_u32 s[70:71], 40, v30
        v_mul_u32_u24 v29, 160, v29
        v_lshl_add_u32 v29, v30, 2, v29
        s_and_b64 vcc, vcc, s[70:71]
        v_mov_b32 v30, 0x80000000
        s_mul_i32 s{S_T0+3}, s{S_T0+3}, 3840
        s_add_u32 s{S_T0+3}, s{S_T0+3}, s{S_T0+1}
        v_cndmask_b32 v29, v30, v29, vcc
        """)
        em.wait(lds=em.lds_n - 1 - 4 * (5 - n))
        for i in range(4):
            em.e(f"v_add_f32 v{b+i}, v{b+i}, v{b+4+i}\nv_add_f32 v{b+8+i}, v{b+8+i}, v{b+12+i}")
        for i in range(4):
            em.e(f"v_add_f32 v{b+i}, v{b+i}, v{b+8+i}")
        em.vm(f"buffer_store_dwordx4 v[{b}:{b+3}], v29, s[{S_WS}:{S_WS+3}], s{S_T0+3} offen")
    stamp(em, 10)

def gen_T(em):
    SL = 40960
    S_A = S_W0; S_B = S_W1
    em.e(f"""
    v_and_b32 v1, 63, v0
    v_lshlrev_b32 v2, 4, v0
    s_cmp_lt_u32 s{S_M}, 6
    s_cselect_b32 s72, s{S_A}, s{S_B}
    s_cselect_b32 s73, s{S_A+1}, s{S_B+1}
    s_cselect_b32 s74, s{S_A+2}, s{S_B+2}
    s_mov_b32 s75, 0x00020000
    s_lshl_b32 s{S_MW}, s{S_WV}, 10
    s_mul_i32 s{S_XOFF}, s{S_M}, {SL}
    """)
    def dma(n, slot):
        if n < 3:
            em.e(f"s_add_u32 s{S_T0}, s{S_XOFF}, {16*n*SL}"); sr = S_A
        elif n == 3:
            em.e(f"""
            s_add_u32 s{S_T0}, s{S_XOFF}, {48*SL}
            s_sub_u32 s{S_T0+1}, s{S_XOFF}, {6*SL}
            s_cmp_lt_u32 s{S_M}, 6
            s_cselect_b32 s{S_T0}, s{S_T0}, s{S_T0+1}
            """); sr = 72
        else:
            em.e(f"s_add_u32 s{S_T0}, s{S_XOFF}, {10*SL}"); sr = S_B
        for j in range(10):
            em.e(f"s_add_u32 m0, s{S_MW}, {slot*SL + j*4096}")
            em.e(f"s_add_u32 s{S_T0+1}, s{S_T0}, {j*4096}")
            last = em.vm(f"buffer_load_dwordx4 v2, s[{sr}:{sr+3}], s{S_T0+1} offen lds")
        return last
    lasts = [dma(n, n) for n in range(4)]
    em.e(f"""
    v_lshrrev_b32 v3, 4, v1
    v_bfe_u32 v4, v1, 2, 2
    v_and_b32 v5, 3, v1
    v_lshrrev_b32 v6, 1, v3
    v_and_b32 v7, 1, v3
    v_lshlrev_b32 v6, 4, v6
    v_lshl_add_u32 v6, v7, 2, v6
    v_add_u32 v6, v6, v4
    v_lshl_add_u32 v7, v3, 3, v4
    s_movk_i32 s{S_T0}, 1280
    v_mul_lo_u32 v6, v6, s{S_T0}
    v_mul_lo_u32 v7, v7, s{S_T0}
    s_mul_i32 s{S_T0+1}, s{S_WV}, 320
    v_lshlrev_b32 v5, 3, v5
    v_add_u32 v5, s{S_T0+1}, v5
    v_add_u32 v6, v6, v5
    v_add_u32 v7, v7, v5
    v_add_u32 v8, {8*1280}, v6
    v_add_u32 v9, {4*1280}, v7
    v_lshlrev_b32 v10, 4, v1
    """)
    em.e(f"""
    s_lshl_b32 s{S_T0}, s{S_M}, 7
    s_lshl_b32 s{S_T0+1}, s{S_WV}, 5
    s_add_u32 s{S_T0}, s{S_T0}, s{S_T0+1}
    v_and_b32 v11, 31, v1
    v_add_u32 v12, s{S_T0}, v11
    s_movk_i32 s{S_T0+2}, 1280
    v_mul_lo_u32 v13, v12, s{S_T0+2}
    v_lshrrev_b32 v14, 5, v1
    v_mul_u32_u24 v14, 640, v14
    v_add_u32 v13, v13, v14
    v_mov_b32 v15, 0
    v_mov_b32 v16, 0
    """)
    XB_, WB_ = 32, 112
    for half in range(2):
        ld = []
        for c in range(20):
            cc = 20 * half + c
            em.vm(f"buffer_load_dwordx4 v[{XB_+4*c}:{XB_+4*c+3}], v13, s[{S_X}:{S_X+3}], 0 offen offset:{cc*16}")
            ld.append(em.vm(f"buffer_load_dwordx4 v[{WB_+4*c}:{WB_+4*c+3}], v14, s[76:79], 0 offen offset:{cc*16}"))
        for c in range(20):
            em.wait(vm=ld[c])
            for i in range(4):
                x = XB_ + 4 * c + i; w = WB_ + 4 * c + i
                em.e(f"""
                v_lshlrev_b32 v17, 16, v{x}
                v_and_b32 v18, 0xffff0000, v{x}
                v_lshlrev_b32 v19, 16, v{w}
                v_and_b32 v20, 0xffff0000, v{w}
                v_mul_f32 v17, v17, v19
                v_mul_f32 v18, v18, v20
                v_cvt_pk_bf16_f32 v17, v17, v18
                v_lshlrev_b32 v18, 16, v17
                v_and_b32 v17, 0xffff0000, v17
                v_add_f32 v15, v15, v18
                v_add_f32 v16, v16, v17
                """)
    em.e(f"""
    v_add_f32 v15, v15, v16
    v_mov_b32 v16, v15
    s_nop 1
    v_permlane32_swap_b32 v15, v16
    s_nop 1
    v_add_f32 v15, v15, v16
    v_cvt_pk_bf16_f32 v15, v15, v15
    v_lshlrev_b32 v15, 16, v15
    v_mul_f32 v15, {f32bits(-LOG2E)}, v15
    v_exp_f32 v15, v15
    s_nop 0
    v_add_f32 v15, 1.0, v15
    v_rcp_f32 v15, v15
    s_nop 0
    v_cvt_pk_bf16_f32 v15, v15, v15
    v_lshlrev_b32 v15, 16, v15
    v_lshlrev_b32 v12, 2, v12
    s_mov_b32 s{S_T0}, {G_OFF}
    """)
    em.vm(f"buffer_store_dword v15, v12, s[{S_WS}:{S_WS+3}], s{S_T0} offen")
    def process(n, slot):
        em.e(f"""
        s_mul_i32 s{S_T0}, s{S_WV}, {2*74*5120}
        s_mul_i32 s{S_T0+1}, s{S_M}, 5120
        s_add_u32 s{S_T0}, s{S_T0}, s{S_T0+1}
        s_add_u32 s{S_T0}, s{S_T0}, {WDF_OFF + 16*n*5120}
        """)
        if n < 3: a0, a1 = 6, 8
        elif n == 4: a0, a1 = 7, 9
        else:
            em.e(f"""
            s_cmp_lt_u32 s{S_M}, 6
            s_cselect_b64 vcc, -1, 0
            s_nop 1
            v_cndmask_b32 v21, v7, v6, vcc
            v_cndmask_b32 v22, v9, v8, vcc
            """); a0, a1 = 21, 22
        if slot * SL >= 65536 - 400:
            em.e(f"v_add_u32 v23, {slot*SL}, v{a0}\nv_add_u32 v24, {slot*SL}, v{a1}"); b0, b1, so = 23, 24, 0
        else:
            b0, b1, so = a0, a1, slot * SL
        ids = []
        for i in range(10):
            r = 32 + 4 * i
            em.lds(f"ds_read_b64_tr_b16 v[{r}:{r+1}], v{b0} offset:{so + i*32}")
            ids.append(em.lds(f"ds_read_b64_tr_b16 v[{r+2}:{r+3}], v{b1} offset:{so + i*32}"))
        for i in range(10):
            r = 32 + 4 * i
            em.wait(lds=ids[i])
            em.e(f"s_add_u32 s{S_T0+1}, s{S_T0}, {(i//5)*74*5120 + (i%5)*1024}")
            em.vm(f"buffer_store_dwordx4 v[{r}:{r+3}], v10, s[{S_WS}:{S_WS+3}], s{S_T0+1} offen")
    em.wait(vm=lasts[0]); em.e("s_barrier")
    process(0, 0)
    em.e("s_barrier")
    em.e(f"s_cmp_ge_u32 s{S_M}, 10\ns_cbranch_scc1 L_T_no5")
    l4 = dma(4, 0)
    em.label("L_T_no5")
    em.wait_all(); em.e("s_barrier")
    for n in range(1, 4): process(n, n)
    em.e(f"s_cmp_ge_u32 s{S_M}, 10\ns_cbranch_scc1 L_T_end")
    process(4, 0)
    em.label("L_T_end")

def gen_k1_full():
    em = Em()
    em.raw(".text\n.globl k1_kernel\n.p2align 8\n.type k1_kernel,@function\nk1_kernel:")
    em.e("s_cmp_ge_u32 s2, 256\ns_cbranch_scc1 L_k1_done")
    k1_prologue(em)
    T0 = S_T0
    em.e(f"""
    s_and_b32 s{T0}, s2, 1
    s_bfe_u32 s{T0+1}, s2, 0x20001
    s_lshr_b32 s{T0+2}, s2, 3
    s_lshl_b32 s{S_M}, s{T0}, 3
    s_cmp_ge_u32 s{T0+2}, 18
    s_cbranch_scc1 L_k1_notF
    s_cmp_ge_u32 s{T0+2}, 16
    s_cbranch_scc1 L_k1_F8
    s_and_b32 s{T0+3}, s{T0+2}, 7
    s_add_u32 s{S_M}, s{S_M}, s{T0+3}
    s_lshr_b32 s{T0+3}, s{T0+2}, 3
    s_lshl_b32 s{S_C}, s{T0+1}, 1
    s_add_u32 s{S_C}, s{S_C}, s{T0+3}
    s_branch L_k1_F
    """)
    em.label("L_k1_F8")
    em.e(f"""
    s_lshl_b32 s{T0+3}, s{T0+1}, 1
    s_add_u32 s{S_M}, s{S_M}, s{T0+3}
    s_add_u32 s{S_M}, s{S_M}, s{T0+2}
    s_sub_u32 s{S_M}, s{S_M}, 16
    s_mov_b32 s{S_C}, 8
    """)
    em.label("L_k1_F")
    srd(em, S_W0, 48, 640 * 3456)
    srd(em, S_W1, 50, 640 * 3456)
    gen_F(em)
    em.e("s_endpgm")
    def fresh():
        em.lds_done = em.lds_n; em.vm_done = em.vm_n
    em.label("L_k1_notF"); fresh()
    em.e(f"s_cmp_ge_u32 s{T0+2}, 30\ns_cbranch_scc1 L_k1_T")
    srd(em, S_W0, 42, 640 * 3840)
    srd(em, S_PHI, 44, 32 * 800)
    em.e(f"s_cmp_ge_u32 s{T0+2}, 22\ns_cbranch_scc1 L_k1_KV")
    em.e(f"""
    s_and_b32 s{S_C}, s{T0+1}, 1
    s_lshr_b32 s{T0+3}, s{T0+1}, 1
    s_lshl_b32 s{T0+3}, s{T0+3}, 2
    s_add_u32 s{S_M}, s{S_M}, s{T0+3}
    s_add_u32 s{S_M}, s{S_M}, s{T0+2}
    s_sub_u32 s{S_M}, s{S_M}, 18
    """)
    gen_Q(em)
    em.e("s_endpgm")
    em.label("L_k1_KV"); fresh()
    em.e(f"""
    s_sub_u32 s{T0+2}, s{T0+2}, 22
    s_lshr_b32 s{T0+3}, s{T0+2}, 2
    s_lshl_b32 s{S_C}, s{T0+1}, 1
    s_add_u32 s{S_C}, s{S_C}, s{T0+3}
    s_and_b32 s{T0+3}, s{T0+2}, 3
    s_lshl_b32 s{T0+3}, s{T0+3}, 1
    s_add_u32 s{S_M}, s{S_M}, s{T0+3}
    """)
    gen_KV(em)
    em.e("s_endpgm")
    em.label("L_k1_T"); fresh()
    em.e(f"""
    s_and_b32 s{S_M}, s2, 7
    s_lshl_b32 s{S_M}, s{S_M}, 1
    s_add_u32 s{S_M}, s{S_M}, s{T0+2}
    s_sub_u32 s{S_M}, s{S_M}, 30
    """)
    srd(em, S_W0, 52, 1728 * 1280)
    srd(em, S_W1, 46, 640 * 1280)
    srd(em, 76, 54, 1280)
    gen_T(em)
    em.label("L_k1_done")
    em.e("s_endpgm")
    return em.finish(), em

if __name__ == "__main__":
    import sys
    if len(sys.argv) > 1: k1.STAMPS = True
    body, em = gen_k1_full()
    hdr = "; @launch kernel=k1_kernel grid=(256,1,1) block=(256,1,1) lds=163840\n.amdgcn_target \"amdgcn-amd-amdhsa--gfx950\"\n"
    open("k1_test.s", "w").write(hdr + body + "\n" + KD.format(name="k1_kernel", nv=512, ao=256))
    print("nops inserted", em.nops, "instrs", len(em.items))
```

```python
from asmlib import *
import k1
from k1 import *

S_WS2 = 4
S_OUT = 8
S_DBG = 12
S_WV2 = 16; S_MT = 17; S_NT = 18
S_A0 = 19
S_B0 = 20
S_U = 21
T = 24

ACC = 16
BUF = 96
NBUF = 4

def stream(em, nsteps, a_step_bytes, b_tt_stride, b_sc1, pre_issued=None, gate=None):
    ids = {}
    def issue_a(s):
        b = BUF + 36 * (s % NBUF)
        em.e(f"s_add_u32 s{T}, s{S_A0}, {s*a_step_bytes}")
        for j in range(4):
            em.vm(f"buffer_load_dwordx4 v[{b+4*j}:{b+4*j+3}], v2, s[{S_WS2}:{S_WS2+3}], s{T} offen offset:{j*1024}")
        em.e(f"s_add_u32 s{T}, s{T}, 4096")
        return em.vm(f"buffer_load_dwordx4 v[{b+16}:{b+19}], v2, s[{S_WS2}:{S_WS2+3}], s{T} offen")
    def issue_b(s):
        b = BUF + 36 * (s % NBUF) + 20
        for tt in range(4):
            em.e(f"s_add_u32 s{T}, s{S_B0}, {s*1024 + tt*b_tt_stride}")
            last = em.vm(f"buffer_load_dwordx4 v[{b+4*tt}:{b+4*tt+3}], v2, s[{S_WS2}:{S_WS2+3}], s{T} offen{' sc1' if b_sc1 else ''}")
        return last
    npre = min(NBUF - 0, nsteps)
    if gate is None:
        for s in range(npre):
            issue_a(s); ids[s] = issue_b(s)
    else:
        for s in range(npre): issue_a(s)
        gate(em)
        for s in range(npre): ids[s] = issue_b(s)
    for s in range(nsteps):
        em.wait(vm=ids[s])
        b = BUF + 36 * (s % NBUF)
        for j in range(5):
            for tt in range(4):
                a = ACC + 4 * (4 * j + tt)
                c = "0" if s == 0 else f"v[{a}:{a+3}]"
                em.e(f"v_mfma_f32_16x16x32_bf16 v[{a}:{a+3}], v[{b+4*j}:{b+4*j+3}], v[{b+20+4*tt}:{b+20+4*tt+3}], {c}")
        if s + NBUF < nsteps:
            issue_a(s + NBUF); ids[s + NBUF] = issue_b(s + NBUF)

def gen_k2():
    em = Em()
    em.raw(".text\n.globl k2_kernel\n.p2align 8\n.type k2_kernel,@function\nk2_kernel:")
    em.e("s_cmp_ge_u32 s2, 256\ns_cbranch_scc1 L_k2_done")
    em.e(f"""
    s_load_dwordx4 s[40:43], s[0:1], 72
    s_load_dwordx2 s[44:45], s[0:1], 88
    v_lshrrev_b32 v1, 6, v0
    v_and_b32 v3, 63, v0
    v_readfirstlane_b32 s{S_WV2}, v1
    v_lshlrev_b32 v2, 4, v3
    s_and_b32 s{T}, s2, 7
    s_lshr_b32 s{T+1}, s2, 3
    s_and_b32 s{S_NT}, s{T+1}, 7
    s_lshr_b32 s{T+1}, s{T+1}, 3
    s_lshl_b32 s{S_MT}, s{T}, 2
    s_add_u32 s{S_MT}, s{S_MT}, s{T+1}
    """)
    em.wait_lgkm0()
    srd(em, S_OUT, 40, 2048 * 1280)
    srd(em, S_DBG, 42, 256)
    srd(em, S_WS2, 44, WS_BYTES)
    CNT = 6 * 20480 + 19968
    em.e(f"""
    s_mul_i32 s{S_A0}, s{S_NT}, {74*5120}
    s_add_u32 s{S_A0}, s{S_A0}, {WDF_OFF}
    s_cmp_ge_u32 s{S_WV2}, 6
    s_cbranch_scc1 L_k2_owave
    """)
    em.e(f"""
    s_mul_i32 s{T}, s{S_WV2}, {9*5120}
    s_add_u32 s{S_A0}, s{S_A0}, s{T}
    s_mul_i32 s{S_B0}, s{S_MT}, {4*54*1024}
    s_mul_i32 s{T}, s{S_WV2}, {9*1024}
    s_add_u32 s{S_B0}, s{S_B0}, s{T}
    s_add_u32 s{S_B0}, s{S_B0}, {HF_OFF}
    """)
    def gate_h(em):
        pass
    first = {"done": False}
    def h_stream():
        stream(em, 9, 5120, 54 * 1024, False, gate=lambda em: None)
    stream(em, 9, 5120, 54 * 1024, False, gate=lambda em: em.e("s_barrier"))
    em.e("s_branch L_k2_final")
    em.label("L_k2_owave")
    em.lds_done = em.lds_n; em.vm_done = em.vm_n
    MP = 208
    em.e(f"""
    s_sub_u32 s{S_U}, s{S_WV2}, 6
    s_mul_i32 s{T+2}, s{S_WV2}, 20480
    v_mov_b32 v4, 0
    v_mov_b32 v5, 0
    v_mov_b32 v6, 0
    v_mov_b32 v7, 0
    v_add_u32 v8, s{T+2}, v2
    """)
    em.e(f"""
    s_mul_i32 s{T}, s{S_MT}, {4*40960}
    s_mul_i32 s{T+1}, s{S_NT}, 5120
    s_add_u32 s{T}, s{T}, s{T+1}
    s_lshl_b32 s{T+1}, s{S_U}, 11
    s_add_u32 s{T}, s{T}, s{T+1}
    s_add_u32 s{T}, s{T}, {PQF_OFF}
    """)
    PF = 176
    for tt in range(4):
        for s in range(3):
            r = PF + 4 * (3 * tt + s)
            pf_last = em.vm(f"buffer_load_dwordx4 v[{r}:{r+3}], v2, s[{S_WS2}:{S_WS2+3}], s{T} offen offset:{s*1024}")
        em.e(f"s_add_u32 s{T}, s{T}, 40960")
    em.e(f"""
    s_lshl_b32 s{T}, s{S_NT}, 2
    s_lshl_b32 s{T+1}, s{S_U}, 1
    s_add_u32 s{T}, s{T}, s{T+1}
    s_mul_i32 s{T}, s{T}, 3840
    s_add_u32 s{T}, s{T}, {KVP_OFF}
    """)
    SUM = 144
    def kv_loads(p0):
        last = None
        for p in range(4):
            em.e(f"s_add_u32 s{T+1}, s{T}, {(p0+p)*32*3840}")
            em.e(f"s_add_u32 s{T+3}, s{T+1}, 3840")
            for hh in range(2):
                for i in range(4):
                    r = 16 + 32 * p + 16 * hh + 4 * i
                    last = em.vm(f"buffer_load_dwordx4 v[{r}:{r+3}], v2, s[{S_WS2}:{S_WS2+3}], s{T+1 if hh == 0 else T+3} offen offset:{i*1024}")
        return last
    l0 = kv_loads(0)
    for i in range(20):
        em.lds(f"ds_write_b128 v8, v[4:7] offset:{i*1024}")
    em.wait_lgkm0()
    em.e("s_barrier")
    em.wait(vm=l0)
    for k in range(32):
        em.e(f"v_add_f32 v{SUM+k}, v{16+k}, v{48+k}\nv_add_f32 v{80+k}, v{80+k}, v{112+k}")
    for k in range(32):
        em.e(f"v_add_f32 v{SUM+k}, v{SUM+k}, v{80+k}")
    l1 = kv_loads(4)
    em.e(f"s_lshl_b32 s{T+4}, s{S_U}, 5\ns_add_u32 s{T+4}, s{T+4}, s{T+2}")
    for i in range(4):
        em.e(f"""
        v_add_u32 v9, {64*i}, v3
        v_mul_u32_u24 v10, 6554, v9
        v_lshrrev_b32 v10, 16, v10
        v_mul_u32_u24 v11, 10, v10
        v_sub_u32 v11, v9, v11
        v_mul_u32_u24 v12, {MP}, v10
        v_lshl_add_u32 v12, v11, 3, v12
        v_add_u32 v{224+i}, s{T+4}, v12
        """)
        if i == 3:
            em.e(f"""
            v_lshlrev_b32 v12, 3, v11
            v_add_u32 v228, s{T+4}, v12
            v_cmp_eq_u32 s[46:47], 20, v10
            v_cmp_gt_u32 s[48:49], 20, v10
            """)
    em.wait(vm=l1)
    for k in range(32):
        em.e(f"v_add_f32 v{16+k}, v{16+k}, v{48+k}\nv_add_f32 v{80+k}, v{80+k}, v{112+k}")
    for k in range(32):
        em.e(f"v_add_f32 v{16+k}, v{16+k}, v{80+k}")
    for k in range(32):
        em.e(f"v_add_f32 v{SUM+k}, v{SUM+k}, v{16+k}")
    for hh in range(2):
        for i in range(4):
            r = SUM + 16 * hh + 4 * i
            em.e(f"v_cvt_pk_bf16_f32 v{r}, v{r}, v{r+1}\nv_cvt_pk_bf16_f32 v{r+1}, v{r+2}, v{r+3}")
    for hh in range(2):
        for i in range(3):
            r = SUM + 16 * hh + 4 * i
            em.lds(f"ds_write_b64 v{224+i}, v[{r}:{r+1}] offset:{20*hh*MP + 80*hh}")
    em.e("s_mov_b64 s[50:51], exec\ns_mov_b64 exec, s[48:49]")
    for hh in range(2):
        r = SUM + 16 * hh + 12
        em.lds(f"ds_write_b64 v227, v[{r}:{r+1}] offset:{20*hh*MP + 80*hh}")
    em.e("s_mov_b64 exec, s[46:47]")
    for hh in range(2):
        r = SUM + 16 * hh + 12
        for d in range(20):
            em.lds(f"ds_write_b64 v228, v[{r}:{r+1}] offset:{(48 + 20*hh + d)*MP + 80*hh}")
    em.e("s_mov_b64 exec, s[50:51]")
    em.e(f"""
    v_and_b32 v9, 15, v3
    v_lshrrev_b32 v10, 4, v3
    v_mul_u32_u24 v11, {MP}, v9
    v_lshl_add_u32 v11, v10, 4, v11
    v_add_u32 v11, s{T+2}, v11
    """)
    em.wait_lgkm0()
    pairs = [(0, 0), (0, 1), (1, 0), (1, 1), (1, 2), (2, 1), (2, 2)]
    AF = 16
    for mi in range(2):
        for n, (t, s) in enumerate(pairs):
            r = AF + 4 * (7 * mi + n)
            em.lds(f"ds_read_b128 v[{r}:{r+3}], v11 offset:{(48*mi + 16*t)*MP + 64*s}")
    em.e(f"""
    s_mul_i32 s{T}, s{S_NT}, 10
    s_mul_i32 s{T+1}, s{S_U}, 5
    s_add_u32 s{T}, s{T}, s{T+1}
    s_lshl_b32 s{T}, s{T}, 8
    s_mul_i32 s{T+1}, s{S_MT}, {4*20480}
    s_add_u32 s{T}, s{T}, s{T+1}
    s_add_u32 s{T}, s{T}, {OF_OFF}
    v_lshrrev_b32 v12, 1, v10
    v_lshlrev_b32 v12, 8, v12
    v_lshl_add_u32 v12, v9, 4, v12
    v_and_b32 v13, 1, v10
    v_lshl_add_u32 v12, v13, 3, v12
    v_mov_b32 v13, 0x80000000
    v_cmp_gt_u32 vcc, 2, v10
    s_nop 1
    v_cndmask_b32 v13, v13, v12, vcc
    """)
    em.wait_lgkm0()
    em.wait(vm=pf_last)
    OA = 72
    for tt in range(4):
        for mi in range(2):
            seen = set()
            for n, (t, s) in enumerate(pairs):
                a = OA + 24 * tt + 12 * mi + 4 * t
                c = f"v[{a}:{a+3}]" if t in seen else "0"
                seen.add(t)
                r = AF + 4 * (7 * mi + n); p = PF + 4 * (3 * tt + s)
                em.e(f"v_mfma_f32_16x16x32_bf16 v[{a}:{a+3}], v[{r}:{r+3}], v[{p}:{p+3}], {c}")
    for tt in range(4):
        for t in range(3):
            nu = OA + 24 * tt + 4 * t; de = nu + 12
            em.e(f"""
            v_cvt_pk_bf16_f32 v4, v{nu}, v{nu+1}
            v_cvt_pk_bf16_f32 v5, v{nu+2}, v{nu+3}
            v_cvt_pk_bf16_f32 v6, v{de}, v{de}
            v_lshlrev_b32 v6, 16, v6
            v_add_f32 v6, {f32bits(1e-6)}, v6
            v_cvt_pk_bf16_f32 v6, v6, v6
            v_lshlrev_b32 v6, 16, v6
            v_rcp_f32 v6, v6
            v_lshlrev_b32 v{nu}, 16, v4
            v_and_b32 v{nu+1}, 0xffff0000, v4
            v_lshlrev_b32 v{nu+2}, 16, v5
            v_and_b32 v{nu+3}, 0xffff0000, v5
            v_mul_f32 v{nu}, v{nu}, v6
            v_mul_f32 v{nu+1}, v{nu+1}, v6
            v_mul_f32 v{nu+2}, v{nu+2}, v6
            v_mul_f32 v{nu+3}, v{nu+3}, v6
            v_cvt_pk_bf16_f32 v{nu}, v{nu}, v{nu+1}
            v_cvt_pk_bf16_f32 v{nu+1}, v{nu+2}, v{nu+3}
            """)
            em.vm(f"buffer_store_dwordx2 v[{nu}:{nu+1}], v{13 if t == 2 else 12}, s[{S_WS2}:{S_WS2+3}], s{T} offen offset:{t*512} sc1")
        em.e(f"s_add_u32 s{T}, s{T}, 20480")
    em.e(f"""
    s_mul_i32 s{T}, s{S_U}, {10*5120}
    s_add_u32 s{S_A0}, s{S_A0}, s{T}
    s_add_u32 s{S_A0}, s{S_A0}, {54*5120}
    s_mul_i32 s{S_B0}, s{S_MT}, {4*20480}
    s_mul_i32 s{T}, s{S_U}, {10*1024}
    s_add_u32 s{S_B0}, s{S_B0}, s{T}
    s_add_u32 s{S_B0}, s{S_B0}, {OF_OFF}
    """)
    em.wait_all()
    em.e(f"v_mov_b32 v4, {CNT}\nv_mov_b32 v5, 1")
    em.e("s_mov_b64 s[50:51], exec\ns_mov_b64 exec, 1")
    em.lds("ds_add_rtn_u32 v6, v4, v5")
    em.wait_lgkm0()
    em.e(f"""
    v_readfirstlane_b32 s{T}, v6
    s_lshl_b32 s{T+1}, s{S_MT}, 2
    v_mov_b32 v4, s{T+1}
    s_cmp_eq_u32 s{T}, 0
    s_cbranch_scc1 L_k2_nosig
    """)
    em.vm(f"buffer_atomic_add v5, v4, s[{S_DBG}:{S_DBG+3}], 0 offen sc1")
    em.label("L_k2_nosig")
    em.e("s_mov_b64 exec, s[50:51]")
    def gate(em):
        em.label("L_k2_poll")
        em.e(f"buffer_load_dword v6, v4, s[{S_DBG}:{S_DBG+3}], 0 offen sc1")
        em.e("s_waitcnt vmcnt(0)")
        em.vm_done = em.vm_n
        em.e(f"""
        v_readfirstlane_b32 s{T}, v6
        s_cmp_ge_u32 s{T}, 8
        s_cbranch_scc1 L_k2_go
        s_sleep 2
        s_branch L_k2_poll
        """)
        em.label("L_k2_go")
    em.e(f"v_mov_b32 v4, s{T+1}")
    stream(em, 10, 5120, 20480, True, gate=gate)
    em.label("L_k2_final")
    em.e("s_nop 7\ns_nop 7")
    em.lds_done = em.lds_n; em.vm_done = em.vm_n
    em.e(f"s_mul_i32 s{T}, s{S_WV2}, 20480\nv_add_u32 v8, s{T}, v2")
    for k in range(20):
        em.lds(f"ds_write_b128 v8, v[{ACC+4*k}:{ACC+4*k+3}] offset:{k*1024}")
    em.e(f"""
    v_and_b32 v9, 15, v3
    v_lshrrev_b32 v10, 4, v3
    s_lshl_b32 s{T}, s{S_MT}, 6
    s_lshl_b32 s{T+1}, s{S_WV2}, 4
    s_add_u32 s{T}, s{T}, s{T+1}
    v_add_u32 v11, s{T}, v9
    v_lshlrev_b32 v12, 2, v11
    s_mov_b32 s{T+2}, {G_OFF}
    """)
    gl = em.vm(f"buffer_load_dword v13, v12, s[{S_WS2}:{S_WS2+3}], s{T+2} offen")
    em.wait_lgkm0()
    em.e("s_barrier")
    em.e(f"s_cmp_ge_u32 s{S_WV2}, 4\ns_cbranch_scc1 L_k2_done")
    em.e(f"""
    s_lshl_b32 s{T+1}, s{S_WV2}, 10
    v_add_u32 v8, s{T+1}, v2
    v_add_u32 v14, 61440, v8
    v_add_u32 v15, 122880, v8
    s_movk_i32 s{T+3}, 1280
    v_mul_lo_u32 v11, v11, s{T+3}
    v_lshl_add_u32 v11, v10, 3, v11
    s_mul_i32 s{T+4}, s{S_NT}, 160
    """)
    R0 = 16
    ids = []
    for j in range(5):
        for p in range(8):
            r = R0 + 32 * j + 4 * p
            ids.append(em.lds(f"ds_read_b128 v[{r}:{r+3}], v{[8,14,15][p//3]} offset:{(p%3)*20480 + j*4096}"))
        if j == 0:
            em.wait(vm=gl)
            em.e(f"""
            v_sub_f32 v12, 1.0, v13
            v_cvt_pk_bf16_f32 v12, v12, v12
            v_lshlrev_b32 v12, 16, v12
            """)
    for j in range(5):
        em.wait(lds=ids[8 * j + 7])
        r = R0 + 32 * j
        for i in range(4):
            em.e(f"""
            v_add_f32 v{r+i}, v{r+i}, v{r+4+i}
            v_add_f32 v{r+8+i}, v{r+8+i}, v{r+12+i}
            v_add_f32 v{r+16+i}, v{r+16+i}, v{r+20+i}
            v_add_f32 v{r+24+i}, v{r+24+i}, v{r+28+i}
            """)
        for i in range(4):
            em.e(f"v_add_f32 v{r+i}, v{r+i}, v{r+8+i}")
        for i in range(4):
            em.e(f"v_add_f32 v{r+i}, v{r+i}, v{r+16+i}")
        for h in range(2):
            b0, a0 = r + 2 * h, r + 24 + 2 * h
            em.e(f"""
            v_cvt_pk_bf16_f32 v4, v{b0}, v{b0+1}
            v_cvt_pk_bf16_f32 v5, v{a0}, v{a0+1}
            v_lshlrev_b32 v{b0}, 16, v4
            v_and_b32 v{b0+1}, 0xffff0000, v4
            v_lshlrev_b32 v{a0}, 16, v5
            v_and_b32 v{a0+1}, 0xffff0000, v5
            v_mul_f32 v{b0}, v{b0}, v12
            v_mul_f32 v{b0+1}, v{b0+1}, v12
            v_mul_f32 v{a0}, v{a0}, v13
            v_mul_f32 v{a0+1}, v{a0+1}, v13
            v_cvt_pk_bf16_f32 v4, v{b0}, v{b0+1}
            v_cvt_pk_bf16_f32 v5, v{a0}, v{a0+1}
            v_lshlrev_b32 v{b0}, 16, v4
            v_and_b32 v{b0+1}, 0xffff0000, v4
            v_lshlrev_b32 v{a0}, 16, v5
            v_and_b32 v{a0+1}, 0xffff0000, v5
            v_add_f32 v{b0}, v{b0}, v{a0}
            v_add_f32 v{b0+1}, v{b0+1}, v{a0+1}
            v_cvt_pk_bf16_f32 v{r+4+h}, v{b0}, v{b0+1}
            """)
        em.vm(f"buffer_store_dwordx2 v[{r+4}:{r+5}], v11, s[{S_OUT}:{S_OUT+3}], s{T+4} offen offset:{j*32}")
    em.label("L_k2_done")
    em.e("s_endpgm")
    return em.finish(), em
```

```python
import sys
import k1, k1b, k2
if "stamps" in sys.argv: k1.STAMPS = True
b1, e1 = k1b.gen_k1_full()
b2, e2 = k2.gen_k2()
hdr = open("gated_mix__linear_kernel_hedgehog__geglu_ffn__prompt.s.ref").read().split("; Override launch geometry")[0]
hdr += "; @launch kernel=k1_kernel grid=(256,1,1) block=(256,1,1) lds=163840\n"
hdr += "; @launch kernel=k2_kernel grid=(256,1,1) block=(512,1,1) lds=163840\n"
hdr += '.amdgcn_target "amdgcn-amd-amdhsa--gfx950"\n'
out = hdr + b1 + "\n" + b2 + "\n" + k1.KD.format(name="k1_kernel", nv=512, ao=256) + k1.KD.format(name="k2_kernel", nv=256, ao=256)
dst = "full_test.s" if "test" in sys.argv else "gated_mix__linear_kernel_hedgehog__geglu_ffn__prompt.s"
open(dst, "w").write(out)
print("k1 nops", e1.nops, "instrs", len(e1.items), "k2 nops", e2.nops, "instrs", len(e2.items), "bytes", len(out))
```

```python
from asmlib import *
import math, struct

HF_OFF  = 0x0000000
PQF_OFF = 0x0700000
WDF_OFF = 0x0C00000
OF_OFF  = 0x0F00000
KVP_OFF = 0x1200000
G_OFF   = 0x1400000
FLAG_OFF = 0x1410000
STAMP_OFF = 0x1480000
WS_BYTES = 0x1500000

def f32bits(x):
    return "0x%08x" % struct.unpack("<I", struct.pack("<f", x))[0]
LOG2E = 1.4426950408889634
GC0 = -2.0 * math.sqrt(2.0 / math.pi) * LOG2E
GC1 = GC0 * 0.044715

OPT = dict(stamps=False, exact_round=True, budget=3, D=4, touch=3, LA=4)

S_X, S_G, S_U, S_WS, S_QKV, S_PHI = 4, 8, 12, 16, 64, 68
S_WV, S_M, S_C, S_FG = 20, 21, 22, 23
S_T0 = 24
S_H0 = 32; S_HB = 34; S_MW = 35; S_MX = 36; S_TMP = 37; S_TMP2 = 38; S_MW1 = 39
S_L2E = 72; S_OB = 73; S_DUM = 74; S_D2 = 75; S_HB2 = 33; S_FG2 = 96; S_TOFF = 97
S_TA = 76
S_DBG = 92

V_XD = 2; V_XR = 4; V_WD = 8; V_TR = 13; V_FD = 15; V_FT = 17; V_FS = 25; V_GC0 = 26
V_WBD = 27; V_PW = 28; V_PR = 29; V_OUT = 30; V_VWA = 31; V_VWB = 32; V_PHT = 33; V_VT = 34
VT = 35
V_F2T = 252
WFR = [40 + 4 * k for k in range(6)]
ACC0 = 64; V_CH = 144; V_SM = 176; V_AF = V_SM + 56
PITCH = 336

def srd(em, s, ptr_s, nbytes):
    em.e(f"s_mov_b32 s{s}, s{ptr_s}\ns_mov_b32 s{s+1}, s{ptr_s+1}\ns_mov_b32 s{s+2}, {nbytes}\ns_mov_b32 s{s+3}, 0x00020000")

def stamp(em, k):
    if not OPT["stamps"]: return
    if OPT.get("fine") and k in (9, 10) and not getattr(em, "in_engine", False): k += 5
    em.e(f"s_memtime s[60:61]")
    em.e("s_waitcnt lgkmcnt(0)"); em.lds_done = em.lds_n
    em.e(f"""
    s_lshl_b32 s62, s2, 8
    s_lshl_b32 s63, s{S_WV}, 6
    s_add_u32 s62, s62, s63
    s_add_u32 s62, s62, {STAMP_OFF + 4*k}
    v_mov_b32 v{VT+3}, s60
    v_mov_b32 v{VT+4}, 0
    """)
    em.vm(f"buffer_store_dword v{VT+3}, v{VT+4}, s[{S_WS}:{S_WS+3}], s62 offen")

class BG:
    def __init__(self): self.gens = []; self.blocked = False; self.cost_left = 0
    def add(self, g): self.gens.append(g)
    def barrier_passed(self): self.blocked = False
    def step(self, em, budget):
        while budget >= 1 and self.gens and not self.blocked:
            try:
                c = next(self.gens[0])
            except StopIteration:
                self.gens.pop(0); continue
            if c == "BAR":
                self.blocked = True; break
            budget -= c; self.cost_left -= c
        return budget
    def remaining(self): return bool(self.gens)
    def drain(self, em):
        if self.blocked:
            em.e("s_barrier"); self.blocked = False
        while self.gens:
            for c in self.gens[0]:
                if c == "BAR":
                    em.e("s_barrier")
            self.gens.pop(0)

def engine(em, cfg):
    D = OPT["D"]
    groups = cfg["groups"]
    wslots = cfg["wslots"]; xslots = cfg["xslots"]
    KSX = 4; NXS = 10
    PW = wslots - 2; PX = xslots - 1
    stages = []
    for gi, g in enumerate(groups):
        for i in range(40 // g["KSW"]): stages.append((gi, i))
    xst = [(gi, i) for gi in range(len(groups)) if groups[gi]["loadx"] for i in range(NXS)]
    xidx = {s: n for n, s in enumerate(xst)}
    mf = []
    for sn, (gi, i) in enumerate(stages):
        g = groups[gi]
        for sp in range(g["KSW"]):
            for t in range(g["T"]):
                mf.append((sn, gi, i, sp, t))
    N = len(mf)
    wfr = cfg["wfrag"]; NB = len(wfr)
    assert NB >= D + 2
    pend = []; w_last = {}; x_last = {}
    def queue_w(sn):
        if sn >= len(stages): return
        gi, i = stages[sn]
        cl = groups[gi]["w_dma"](em, i, sn % wslots)
        for k, c in enumerate(cl): pend.append((c, ("w", sn) if k == len(cl) - 1 else None))
    def queue_x(xn):
        if xn >= len(xst): return
        gi, i = xst[xn]
        cl = cfg["x_dma"](em, gi, i, xn % xslots)
        for k, c in enumerate(cl): pend.append((c, ("x", xn) if k == len(cl) - 1 else None))
    def issue_one():
        c, tag = pend.pop(0)
        if OPT.get("nodma") and em.vm_n > 60: vid = 0
        else: vid = c()
        if tag: (w_last if tag[0] == "w" else x_last)[tag[1]] = vid
    nx = 0; nw = 0
    ratio = KSX // groups[0]["KSW"]
    while nx < PX or nw < PW:
        if nx < PX and nx * ratio <= nw: queue_x(nx); nx += 1
        elif nw < PW: queue_w(nw); nw += 1
        else: queue_x(nx); nx += 1
    while pend: issue_one()
    if cfg.get("after_prologue"): cfg["after_prologue"](em)
    bg = BG()
    em.in_engine = True
    rd = {}; xrd = {}
    cur_group = -1
    def need_of(k):
        sn, gi, i, sp, t = mf[k]
        return max(rd[k], xrd.get((gi, groups[gi]["KSW"] * i + sp), -1))
    gbudget = OPT["budget"] + 1; frac = 0.0
    for idx in range(-D, N):
        if idx >= 0:
            sn, gi, i, sp, t = mf[idx]
            g = groups[gi]
            if gi != cur_group:
                cur_group = gi
                if not g.get("nodrain"): bg.drain(em); bg.cost_left = 0
                if g.get("bg") and not (OPT.get("nobg") and gi > 0):
                    dry = Em(); dry.last_p = 0
                    dry.vm_n = dry.vm_done = em.vm_n + 1000
                    bg.cost_left += sum(c for c in g["bg"](dry) if c != "BAR")
                    bg.add(g["bg"](em))
                span = [gi]
                while span[-1] + 1 < len(groups) and groups[span[-1] + 1].get("nodrain"): span.append(span[-1] + 1)
                nm = sum(1 for m_ in mf if m_[1] in span)
                fut = sum(groups[k].get("bg_est", 0) for k in span[1:])
                gbudget = max(OPT["budget"] + 1, (bg.cost_left + fut) / (nm * 0.93) + 1.4)
                frac = 0.0
            k16 = g["KSW"] * i + sp
            em.wait(lds=need_of(idx))
            b = wfr[idx % NB]
            acc = g["acc"][t]
            an = int(acc[1:]); accr = f"{acc[0]}[{an}:{an+15}]"
            c = "0" if k16 == 0 else accr
            em.e(f"v_mfma_f32_32x32x16_bf16 {accr}, v[{b}:{b+3}], {cfg['xreg'](gi, k16)}, {c}")
        budget = gbudget + frac
        j = idx + D
        if j < N:
            sn, gi, i, sp, t = mf[j]
            g = groups[gi]
            if sp == 0 and t == 0:
                k16 = g["KSW"] * i
                isx = g["loadx"] and k16 % KSX == 0
                while pend: issue_one()
                need = w_last[sn]
                if isx: need = max(need, x_last[xidx[(gi, k16 // KSX)]])
                if not OPT.get("novm"): em.wait(vm=need)
                if not OPT.get("nobar"): em.e("s_barrier")
                bg.barrier_passed()
                if OPT.get("fine"):
                    if 10 <= sn <= 22: stamp(em, sn - 9)
                elif cfg.get("stamp_at") and sn in cfg["stamp_at"]: stamp(em, cfg["stamp_at"][sn])
                queue_w(nw); nw += 1
                if isx:
                    queue_x(nx); nx += 1
                    xs = xidx[(gi, k16 // KSX)] % xslots
                    for q in range(KSX):
                        xrd[(gi, k16 + q)] = em.lds(cfg["xread"](gi, k16 + q, q, xs))
                    budget -= 4
                if cfg.get("on_stage"): budget -= cfg["on_stage"](em, sn)
                budget -= 2
            b = wfr[j % NB]
            for hf in range(2):
                vr, off = g["tr"](t, sn % wslots, sp, hf)
                rd[j] = em.lds(f"ds_read_b64_tr_b16 v[{b+2*hf}:{b+2*hf+1}], v{vr} offset:{off}")
        if 0 <= idx + 1 < N:
            k = min(idx + 2, N - 1) if (idx % 2 == 1) else idx + 1
            if em.lds_done <= need_of(idx + 1):
                if em.wait(lds=need_of(k)): budget -= 1
        if pend:
            issue_one(); budget -= 3
        if idx >= 0:
            left = bg.step(em, budget)
            frac = left if (left < 0 or (0 < left < 1)) else 0.0
    bg.drain(em)
    em.in_engine = False

def setup_common(em, XB):
    em.e(f"""
    v_and_b32 v1, 63, v0
    v_lshrrev_b32 v{VT}, 3, v1
    v_and_b32 v{VT+1}, 7, v1
    v_lshrrev_b32 v{VT+2}, 4, v1
    v_xor_b32 v{VT+2}, v{VT+1}, v{VT+2}
    v_lshlrev_b32 v{VT+2}, 4, v{VT+2}
    s_lshl_b32 s{S_T0}, s{S_M}, 7
    s_lshl_b32 s{S_T0+1}, s{S_WV}, 5
    s_add_u32 s{S_T0}, s{S_T0}, s{S_T0+1}
    v_add_u32 v{VT+3}, s{S_T0}, v{VT}
    s_movk_i32 s{S_T0+2}, 1280
    v_mul_lo_u32 v{VT+3}, v{VT+3}, s{S_T0+2}
    v_add_u32 v{V_XD}, v{VT+3}, v{VT+2}
    v_xor_b32 v{VT+2}, 64, v{VT+2}
    v_add_u32 v{V_XD+1}, v{VT+3}, v{VT+2}
    v_add_u32 v{V_XD+1}, {8*1280}, v{V_XD+1}
    s_lshl_b32 s{S_MW}, s{S_WV}, 10
    s_lshl_b32 s{S_MW1}, s{S_WV}, 11
    s_lshl_b32 s{S_MX}, s{S_WV}, 12
    s_add_u32 s{S_MX}, s{S_MX}, {XB}
    v_and_b32 v{VT}, 31, v1
    v_lshrrev_b32 v{VT+1}, 5, v1
    v_bfe_u32 v{VT+2}, v1, 1, 3
    v_xor_b32 v{VT+2}, v{VT+2}, v{VT+1}
    v_lshlrev_b32 v{VT+3}, 7, v{VT}
    v_add_u32 v{VT+3}, s{S_MX}, v{VT+3}
    """)
    for sp in range(4):
        em.e(f"v_xor_b32 v{VT+4}, {2*sp}, v{VT+2}\nv_lshl_add_u32 v{V_XR+sp}, v{VT+4}, 4, v{VT+3}")

def x_dma_fn(em, XSL):
    def x_dma(em, gi, i, slot, tok_off=0):
        cl = []
        for n in range(4):
            def c(n=n):
                em.e(f"s_add_u32 m0, s{S_MX}, {slot*XSL + n*1024}")
                em.e(f"s_mov_b32 s{S_TMP}, {i*128 + (n>>1)*16*1280 + tok_off*1280}")
                return em.vm(f"buffer_load_dwordx4 v{V_XD+(n&1)}, s[{S_X}:{S_X+3}], s{S_TMP} offen lds")
            cl.append(c)
        return cl
    return x_dma

def setup_F(em):
    a, b, c, d, e = VT, VT + 1, VT + 2, VT + 3, VT + 4
    em.e(f"""
    v_lshrrev_b32 v{a}, 3, v1
    v_and_b32 v{b}, 7, v1
    v_bfe_u32 v{c}, v1, 4, 1
    v_lshlrev_b32 v{c}, 1, v{c}
    v_xor_b32 v{c}, v{c}, v{b}
    v_lshlrev_b32 v{c}, 4, v{c}
    s_lshl_b32 s{S_T0}, s{S_WV}, 4
    v_add_u32 v{d}, s{S_T0}, v{a}
    s_movk_i32 s{S_T0+2}, 3456
    v_mul_lo_u32 v{d}, v{d}, s{S_T0+2}
    s_lshl_b32 s{S_T0+1}, s{S_FG}, 7
    v_add_u32 v{d}, s{S_T0+1}, v{d}
    v_add_u32 v{V_FD}, v{d}, v{c}
    v_xor_b32 v{c}, 64, v{c}
    v_add_u32 v{V_FD+1}, v{d}, v{c}
    v_bfe_u32 v{a}, v1, 4, 1
    v_lshrrev_b32 v{b}, 5, v1
    v_bfe_u32 v{c}, v1, 2, 2
    v_and_b32 v{d}, 3, v1
    v_lshlrev_b32 v{e}, 13, v{a}
    v_lshl_add_u32 v{e}, v{b}, 10, v{e}
    v_lshl_add_u32 v{e}, v{c}, 7, v{e}
    v_lshl_add_u32 v{e}, v{d}, 3, v{e}
    v_lshrrev_b32 v{c}, 1, v{c}
    v_lshl_or_b32 v{c}, v{a}, 1, v{c}
    """)
    for t in range(4):
        em.e(f"v_xor_b32 v{d}, {t}, v{c}\nv_lshl_add_u32 v{V_FT+t}, v{d}, 5, v{e}\nv_add_u32 v{V_FT+4+t}, 0x10000, v{V_FT+t}")
    em.e(f"""
    s_lshl_b32 s{S_T0}, s{S_WV}, 1
    v_add_u32 v{a}, s{S_T0}, v{a}
    s_mov_b32 s{S_T0+1}, {54*1024}
    v_mul_lo_u32 v{a}, v{a}, s{S_T0+1}
    v_and_b32 v{c}, 15, v1
    v_lshl_add_u32 v{c}, v{b}, 4, v{c}
    v_lshl_add_u32 v{V_FS}, v{c}, 4, v{a}
    s_mul_i32 s{S_HB}, s{S_M}, {8*54*1024}
    s_lshl_b32 s{S_T0}, s{S_FG}, 11
    s_add_u32 s{S_HB}, s{S_HB}, s{S_T0}
    s_add_u32 s{S_HB}, s{S_HB}, {HF_OFF}
    v_mov_b32 v{V_GC0}, {f32bits(GC0)}
    """)

def f_group(em, fg, acc, WSL, loadx, bg):
    def w_dma(em, i, slot):
        cl = []
        for mat in range(2):
            for bb in range(2):
                def c(mat=mat, bb=bb):
                    em.e(f"s_add_u32 m0, s{S_MW1}, {slot*WSL + mat*8192 + bb*1024}")
                    em.e(f"s_mov_b32 s{S_TMP}, {(i*64 + bb*8)*3456 + fg*128}")
                    return em.vm(f"buffer_load_dwordx4 v{V_FD+mat}, s[{S_G+4*mat}:{S_G+4*mat+3}], s{S_TMP} offen lds")
                cl.append(c)
        return cl
    def tr(t, slot, sp, hf):
        off = slot * WSL + sp * 2048 + hf * 512
        if off >= 65536: return (V_FT + 4 + t, off - 65536)
        return (V_FT + t, off)
    return dict(T=4, KSW=4, acc=acc, loadx=loadx, bg=bg, w_dma=w_dma, tr=tr)


def setup_F2(em):
    em.e(f"""
    s_sub_u32 s{S_D2}, s{S_FG2}, s{S_FG}
    s_lshl_b32 s{S_T0}, s{S_D2}, 11
    s_add_u32 s{S_HB2}, s{S_HB}, s{S_T0}
    s_lshl_b32 s{S_T0}, s{S_TOFF}, 9
    s_add_u32 s{S_HB2}, s{S_HB2}, s{S_T0}
    s_lshl_b32 s{S_D2}, s{S_D2}, 7
    s_cmp_eq_u32 s{S_TOFF}, 0
    s_cselect_b64 vcc, -1, 0
    s_nop 1
    v_cndmask_b32 v{V_F2T}, v{V_FT+2}, v{V_FT}, vcc
    v_cndmask_b32 v{V_F2T+1}, v{V_FT+3}, v{V_FT+1}, vcc
    v_cndmask_b32 v{V_F2T+2}, v{V_FT+6}, v{V_FT+4}, vcc
    v_cndmask_b32 v{V_F2T+3}, v{V_FT+7}, v{V_FT+5}, vcc
    """)

def f2_group(em, acc, WSL, bg, **kw):
    def w_dma(em, i, slot):
        cl = []
        for mat in range(2):
            for bb in range(2):
                def c(mat=mat, bb=bb):
                    em.e(f"s_add_u32 m0, s{S_MW1}, {slot*WSL + mat*8192 + bb*1024}")
                    em.e(f"s_add_u32 s{S_TMP}, s{S_D2}, {(i*64 + bb*8)*3456}")
                    return em.vm(f"buffer_load_dwordx4 v{V_FD+mat}, s[{S_G+4*mat}:{S_G+4*mat+3}], s{S_TMP} offen lds")
                cl.append(c)
        return cl
    def tr(t, slot, sp, hf):
        off = slot * WSL + sp * 2048 + hf * 512
        if off >= 65536: return (V_F2T + 2 + t, off - 65536)
        return (V_F2T + t, off)
    d = dict(T=2, KSW=4, acc=acc, loadx=False, bg=bg, w_dma=w_dma, tr=tr); d.update(kw)
    return d

def f_epi_acc(em, abase, ntiles, st_base_sgpr, st_off, cp, tmp):
    for t in range(ntiles):
        c = cp + 16 * (t & 1)
        for i in range(16):
            em.e(f"v_accvgpr_read_b32 v{c+i}, a{abase+16*t+i}"); yield 1
        yield from f_epilogue_tile(em, c, st_off + t * 512, tmp + 16 * (t & 1), st_base_sgpr)

def f_epilogue_tile(em, acc, st_off, tmp, sb=S_HB):
    t = tmp; o = t + 12
    for p in range(4):
        g0, g1, u0, u1, a0, a1 = t, t + 1, t + 2, t + 3, t + 4, t + 5
        if OPT["exact_round"]:
            seq = [(f"v_cvt_pk_bf16_f32 v{g1}, v{acc+2*p}, v{acc+2*p+1}", 1),
                   (f"v_cvt_pk_bf16_f32 v{u1}, v{acc+8+2*p}, v{acc+8+2*p+1}", 1),
                   (f"v_lshlrev_b32 v{g0}, 16, v{g1}", 1), (f"v_and_b32 v{g1}, 0xffff0000, v{g1}", 1),
                   (f"v_mul_f32 v{a0}, v{g0}, v{g0}", 1), (f"v_mul_f32 v{a1}, v{g1}, v{g1}", 1),
                   (f"v_fmamk_f32 v{a0}, v{a0}, {f32bits(GC1)}, v{V_GC0}", 1), (f"v_fmamk_f32 v{a1}, v{a1}, {f32bits(GC1)}, v{V_GC0}", 1),
                   (f"v_mul_f32 v{a0}, v{a0}, v{g0}", 1), (f"v_mul_f32 v{a1}, v{a1}, v{g1}", 1),
                   (f"v_exp_f32 v{a0}, v{a0}", 2), (f"v_exp_f32 v{a1}, v{a1}", 2),
                   (f"v_lshlrev_b32 v{u0}, 16, v{u1}", 1),
                   (f"v_add_f32 v{a0}, 1.0, v{a0}", 1), (f"v_add_f32 v{a1}, 1.0, v{a1}", 1),
                   (f"v_rcp_f32 v{a0}, v{a0}", 2), (f"v_rcp_f32 v{a1}, v{a1}", 2),
                   (f"v_and_b32 v{u1}, 0xffff0000, v{u1}", 1),
                   (f"v_mul_f32 v{a0}, v{a0}, v{g0}", 1), (f"v_mul_f32 v{a1}, v{a1}, v{g1}", 1),
                   (f"v_cvt_pk_bf16_f32 v{a1}, v{a0}, v{a1}", 1),
                   (f"v_lshlrev_b32 v{a0}, 16, v{a1}", 1), (f"v_and_b32 v{a1}, 0xffff0000, v{a1}", 1),
                   (f"v_mul_f32 v{a0}, v{a0}, v{u0}", 1), (f"v_mul_f32 v{a1}, v{a1}, v{u1}", 1),
                   (f"v_cvt_pk_bf16_f32 v{o+p}, v{a0}, v{a1}", 1)]
        else:
            G0, G1, U0, U1 = acc + 2 * p, acc + 2 * p + 1, acc + 8 + 2 * p, acc + 9 + 2 * p
            seq = [(f"v_mul_f32 v{a0}, v{G0}, v{G0}", 1), (f"v_mul_f32 v{a1}, v{G1}, v{G1}", 1),
                   (f"v_fmamk_f32 v{a0}, v{a0}, {f32bits(GC1)}, v{V_GC0}", 1), (f"v_fmamk_f32 v{a1}, v{a1}, {f32bits(GC1)}, v{V_GC0}", 1),
                   (f"v_mul_f32 v{a0}, v{a0}, v{G0}", 1), (f"v_mul_f32 v{a1}, v{a1}, v{G1}", 1),
                   (f"v_exp_f32 v{a0}, v{a0}", 2), (f"v_exp_f32 v{a1}, v{a1}", 2),
                   (f"v_mul_f32 v{g0}, v{G0}, v{U0}", 1), (f"v_mul_f32 v{g1}, v{G1}, v{U1}", 1),
                   (f"v_add_f32 v{a0}, 1.0, v{a0}", 1), (f"v_add_f32 v{a1}, 1.0, v{a1}", 1),
                   (f"v_rcp_f32 v{a0}, v{a0}", 2), (f"v_rcp_f32 v{a1}, v{a1}", 2),
                   (f"s_nop 0", 1),
                   (f"v_mul_f32 v{a0}, v{a0}, v{g0}", 1), (f"v_mul_f32 v{a1}, v{a1}, v{g1}", 1),
                   (f"v_cvt_pk_bf16_f32 v{o+p}, v{a0}, v{a1}", 1)]
        for s, c in seq:
            em.e(s); yield c
    em.e(f"s_add_u32 s{S_TMP2}, s{sb}, {st_off}")
    em.vm(f"buffer_store_dwordx4 v[{o}:{o+3}], v{V_FS}, s[{S_WS}:{S_WS+3}], s{S_TMP2} offen"); yield 3

def f_epi(em, accbase, fg, tmp):
    for t in range(4):
        yield from f_epilogue_tile(em, accbase + 16 * t, fg * 2048 + t * 512, tmp + 16 * (t & 1))

def setup_QKV(em, kind, wbd_base, p_base, v_base=None):
    a, b, c, d, e = VT, VT + 1, VT + 2, VT + 3, VT + 4
    if kind == "Q":
        em.e(f"s_mul_i32 s{S_T0+3}, s{S_C}, 320")
    else:
        em.e(f"s_mul_i32 s{S_T0+3}, s{S_C}, 160\ns_add_u32 s{S_T0+3}, s{S_T0+3}, 1280")
    em.e(f"s_movk_i32 s{S_T0+2}, 3840")
    nj = 5
    for j in range(nj):
        em.e(f"""
        v_add_u32 v{a}, {256*j}, v0
        v_mul_u32_u24 v{b}, 3277, v{a}
        v_lshrrev_b32 v{b}, 16, v{b}
        v_mul_u32_u24 v{c}, 20, v{b}
        v_sub_u32 v{c}, v{a}, v{c}
        v_mul_lo_u32 v{b}, v{b}, s{S_T0+2}
        v_lshl_add_u32 v{b}, v{c}, 4, v{b}
        v_add_u32 v{V_WD+j}, s{S_T0+3}, v{b}
        """)
        if kind == "KV":
            em.e(f"""
            v_cmp_le_u32 vcc, 10, v{c}
            v_add_u32 v{b}, 1120, v{V_WD+j}
            s_nop 0
            v_cndmask_b32 v{V_WD+j}, v{V_WD+j}, v{b}, vcc
            """)
    em.e(f"""
    v_and_b32 v{a}, 31, v1
    v_lshrrev_b32 v{b}, 5, v1
    s_mul_i32 s{S_T0}, s{S_WV}, {32*PITCH}
    s_add_u32 s{S_T0}, s{S_T0}, {p_base}
    v_mul_u32_u24 v{d}, {PITCH}, v{a}
    v_add_u32 v{d}, s{S_T0}, v{d}
    v_lshl_add_u32 v{V_PW}, v{b}, 3, v{d}
    """)
    if v_base is not None:
        em.e(f"""
        s_mul_i32 s{S_T0+1}, s{S_WV}, {32*200}
        s_add_u32 s{S_T0+1}, s{S_T0+1}, {v_base}
        v_mul_u32_u24 v{d}, 200, v{a}
        v_add_u32 v{d}, s{S_T0+1}, v{d}
        v_lshl_add_u32 v{V_VWA}, v{b}, 3, v{d}
        v_lshl_add_u32 v{V_VWB}, v{b}, 4, v{d}
        """)
    em.e(f"""
    v_and_b32 v{a}, 15, v1
    v_lshrrev_b32 v{b}, 4, v1
    v_mul_u32_u24 v{c}, {PITCH}, v{a}
    v_add_u32 v{c}, s{S_T0}, v{c}
    v_mul_u32_u24 v{d}, 40, v{b}
    v_add_u32 v{V_PR}, v{c}, v{d}
    """)
    if kind == "Q":
        em.e(f"v_mul_u32_u24 v{d}, 1280, v{b}\nv_lshl_add_u32 v{V_OUT}, v{a}, 4, v{d}")
    else:
        em.e(f"v_mul_u32_u24 v{d}, 80, v{b}\nv_add_u32 v{V_OUT}, v{c}, v{d}")
    em.e(f"""
    v_bfe_u32 v{a}, v1, 4, 1
    v_lshrrev_b32 v{b}, 5, v1
    v_bfe_u32 v{c}, v1, 2, 2
    v_and_b32 v{d}, 3, v1
    v_lshlrev_b32 v{a}, 5, v{a}
    v_lshl_add_u32 v{a}, v{d}, 3, v{a}
    v_lshl_add_u32 v{e}, v{b}, 3, v{c}
    v_mul_u32_u24 v{e}, 320, v{e}
    v_add_u32 v{V_TR}, v{e}, v{a}
    v_add_u32 v{V_TR+1}, 0x10000, v{V_TR}
    v_lshl_add_u32 v{e}, v{b}, 2, v{c}
    v_lshl_add_u32 v{e}, v{e}, 6, v{a}
    v_add_u32 v{V_WBD}, {wbd_base}, v{e}
    """)
    if v_base is not None:
        em.e(f"""
        v_lshrrev_b32 v{a}, 4, v1
        v_lshl_add_u32 v{a}, v{a}, 3, v{c}
        v_mul_u32_u24 v{b}, {PITCH}, v{a}
        v_lshl_add_u32 v{b}, v{d}, 3, v{b}
        s_mul_i32 s{S_T0}, s{S_WV}, 80
        s_add_u32 s{S_T0}, s{S_T0}, {p_base}
        v_add_u32 v{V_PHT}, s{S_T0}, v{b}
        v_mul_u32_u24 v{b}, 200, v{a}
        v_lshl_add_u32 v{b}, v{d}, 3, v{b}
        s_mul_i32 s{S_T0+1}, s{S_WV}, 48
        s_add_u32 s{S_T0+1}, s{S_T0+1}, {v_base}
        v_add_u32 v{V_VT}, s{S_T0+1}, v{b}
        """)
    em.e(f"s_mov_b32 s{S_L2E}, {f32bits(LOG2E)}")

def wbd_loads(em, nblk, T, DST, DST2=None):
    n_it = (nblk * 128 + 255) // 256
    em.e(f"s_mul_i32 s{S_TMP2}, s{S_H0}, 800")
    a = T
    for n in range(n_it):
        em.e(f"""
        v_add_u32 v{a}, {256*n}, v0
        v_lshrrev_b32 v{a+1}, 7, v{a}
        v_add_u32 v{a+2}, 1, v{a+1}
        v_lshrrev_b32 v{a+2}, 2, v{a+2}
        v_lshlrev_b32 v{a+3}, 1, v{a+2}
        v_sub_u32 v{a+1}, v{a+1}, v{a+3}
        v_bfe_u32 v{a+3}, v{a}, 3, 4
        v_lshl_add_u32 v{a+1}, v{a+1}, 4, v{a+3}
        v_and_b32 v{a+3}, 7, v{a}
        v_lshlrev_b32 v{a+3}, 2, v{a+3}
        v_lshl_add_u32 v{a+2}, v{a+2}, 5, v{a+3}
        v_mul_u32_u24 v{a+3}, 3277, v{a+1}
        v_lshrrev_b32 v{a+3}, 16, v{a+3}
        v_mul_u32_u24 v{a+4}, 3277, v{a+2}
        v_lshrrev_b32 v{a+4}, 16, v{a+4}
        v_cmp_eq_u32 vcc, v{a+3}, v{a+4}
        v_mul_u32_u24 v{a+1}, 40, v{a+1}
        v_lshl_add_u32 v{a+1}, v{a+2}, 1, v{a+1}
        v_mul_u32_u24 v{a+4}, 40, v{a+4}
        v_sub_u32 v{a+1}, v{a+1}, v{a+4}
        v_mov_b32 v{a+4}, 0x80000000
        v_cndmask_b32 v{a+1}, v{a+4}, v{a+1}, vcc
        """)
        last = em.vm(f"buffer_load_dwordx2 v[{DST+2*n}:{DST+2*n+1}], v{a+1}, s[{S_PHI}:{S_PHI+3}], s{S_TMP2} offen")
        if DST2 is not None:
            last = em.vm(f"buffer_load_dwordx2 a[{DST2+2*n}:{DST2+2*n+1}], v{a+1}, s[{S_PHI}:{S_PHI+3}], s{S_TMP2} offen offset:3200")
    return last, n_it

def wbd_writes(em, n_it, vid, wbd_base, DST, T, rf="v"):
    em.e(f"v_lshlrev_b32 v{T}, 3, v0"); yield 1
    em.e(f"v_add_u32 v{T}, {wbd_base}, v{T}"); yield 1
    em.wait(vm=vid)
    for n in range(n_it):
        last = em.lds(f"ds_write_b64 v{T}, {rf}[{DST+2*n}:{DST+2*n+1}] offset:{2048*n}"); yield 2
    yield 8
    em.wait(lds=last); yield 1

def chain(em, ntile_out, nsteps, nquads_last, vw=V_WBD):
    def qf(s):
        r = ACC0 + 16 * (s >> 1) + 8 * (s & 1); return f"v[{r}:{r+3}]"
    jobs = []
    for o in range(ntile_out):
        lo = max(0, 2 * o - 1); hi = min(nsteps - 1, 2 * o + 2)
        for s in range(lo, hi + 1): jobs.append((o, s, s == lo, s == hi))
    rid = {}
    def issue(n):
        o, s, _, _ = jobs[n]
        b = V_AF + 4 * (n % 3)
        blk = s + 2 * o
        em.lds(f"ds_read_b64_tr_b16 v[{b}:{b+1}], v{vw} offset:{blk*1024}")
        rid[n] = em.lds(f"ds_read_b64_tr_b16 v[{b+2}:{b+3}], v{vw} offset:{blk*1024+512}")
    def flush(o):
        a = V_CH + 16 * (o % 2)
        nq = nquads_last if o == ntile_out - 1 else 4
        for q in range(nq):
            em.e(f"v_cvt_pk_bf16_f32 v{a+4*q}, v{a+4*q}, v{a+4*q+1}"); yield 1
            em.e(f"v_cvt_pk_bf16_f32 v{a+4*q+1}, v{a+4*q+2}, v{a+4*q+3}"); yield 1
        for q in range(nq):
            em.last_p = em.lds(f"ds_write_b64 v{V_PW}, v[{a+4*q}:{a+4*q+1}] offset:{(32*o + 8*q)*2}"); yield 2
    issue(0); issue(1); yield 4
    pending_flush = None
    for n, (o, s, first, last) in enumerate(jobs):
        if n + 2 < len(jobs): issue(n + 2); yield 2
        em.wait(lds=rid[n])
        a = V_CH + 16 * (o % 2); b = V_AF + 4 * (n % 3)
        c = "0" if first else f"v[{a}:{a+15}]"
        em.e(f"v_mfma_f32_32x32x16_bf16 v[{a}:{a+15}], v[{b}:{b+3}], {qf(s)}, {c}"); yield 8
        if pending_flush is not None and not first:
            yield from flush(pending_flush); pending_flush = None
        if last:
            if pending_flush is not None:
                yield from flush(pending_flush)
            pending_flush = o
    yield 8
    yield from flush(pending_flush)

def softmax_rounds(em, rounds, out_fn):
    R = V_SM
    PK = R; P = R + 10; E = R + 30; T = R + 50; O = R + 56
    def issue(off):
        return [em.lds(f"ds_read_b64 v[{PK+2*i}:{PK+2*i+1}], v{V_PR} offset:{off+8*i}") for i in range(5)]
    yield 4
    em.wait(lds=em.last_p)
    ids = issue(rounds[0]); yield 5
    yield 8
    for ri, off in enumerate(rounds):
        em.wait(lds=ids[-1])
        for i in range(10):
            em.e(f"v_lshlrev_b32 v{P+2*i}, 16, v{PK+i}"); yield 1
            em.e(f"v_and_b32 v{P+2*i+1}, 0xffff0000, v{PK+i}"); yield 1
        if ri + 1 < len(rounds):
            ids = issue(rounds[ri + 1]); yield 5
        mx, mn, mx2, mn2 = T, T + 1, T + 2, T + 3
        em.e(f"v_max3_f32 v{mx}, v{P}, v{P+1}, v{P+2}"); yield 1
        em.e(f"v_min3_f32 v{mn}, v{P}, v{P+1}, v{P+2}"); yield 1
        em.e(f"v_max3_f32 v{mx2}, v{P+3}, v{P+4}, v{P+5}"); yield 1
        em.e(f"v_min3_f32 v{mn2}, v{P+3}, v{P+4}, v{P+5}"); yield 1
        for i in range(6, 18, 4):
            em.e(f"v_max3_f32 v{mx}, v{mx}, v{P+i}, v{P+i+1}"); yield 1
            em.e(f"v_min3_f32 v{mn}, v{mn}, v{P+i}, v{P+i+1}"); yield 1
            em.e(f"v_max3_f32 v{mx2}, v{mx2}, v{P+i+2}, v{P+i+3}"); yield 1
            em.e(f"v_min3_f32 v{mn2}, v{mn2}, v{P+i+2}, v{P+i+3}"); yield 1
        em.e(f"v_max3_f32 v{mx}, v{mx}, v{P+18}, v{P+19}"); yield 1
        em.e(f"v_min3_f32 v{mn}, v{mn}, v{P+18}, v{P+19}"); yield 1
        em.e(f"v_max_f32 v{mx}, v{mx}, v{mx2}"); yield 1
        em.e(f"v_min_f32 v{mn}, v{mn}, v{mn2}"); yield 1
        em.e(f"v_mul_f32 v{mx}, s{S_L2E}, v{mx}"); yield 1
        em.e(f"v_mul_f32 v{mn}, s{S_L2E}, v{mn}"); yield 1
        for i in range(0, 20, 2):
            em.e(f"v_fma_f32 v{E+i}, -v{P+i}, s{S_L2E}, v{mn}"); yield 1
            em.e(f"v_fma_f32 v{P+i}, v{P+i}, s{S_L2E}, -v{mx}"); yield 1
            em.e(f"v_fma_f32 v{E+i+1}, -v{P+i+1}, s{S_L2E}, v{mn}"); yield 1
            em.e(f"v_fma_f32 v{P+i+1}, v{P+i+1}, s{S_L2E}, -v{mx}"); yield 1
            em.e(f"v_exp_f32 v{E+i}, v{E+i}"); yield 2
            em.e(f"v_exp_f32 v{P+i}, v{P+i}"); yield 2
            em.e(f"v_exp_f32 v{E+i+1}, v{E+i+1}"); yield 2
            em.e(f"v_exp_f32 v{P+i+1}, v{P+i+1}"); yield 2
        sp, sn_, sp2, sn2 = T, T + 1, T + 2, T + 3
        em.e(f"v_add_f32 v{sp}, v{P}, v{P+1}"); yield 1
        em.e(f"v_add_f32 v{sn_}, v{E}, v{E+1}"); yield 1
        em.e(f"v_add_f32 v{sp2}, v{P+2}, v{P+3}"); yield 1
        em.e(f"v_add_f32 v{sn2}, v{E+2}, v{E+3}"); yield 1
        for i in range(4, 20, 2):
            em.e(f"v_add_f32 v{sp}, v{sp}, v{P+i}"); yield 1
            em.e(f"v_add_f32 v{sn_}, v{sn_}, v{E+i}"); yield 1
            em.e(f"v_add_f32 v{sp2}, v{sp2}, v{P+i+1}"); yield 1
            em.e(f"v_add_f32 v{sn2}, v{sn2}, v{E+i+1}"); yield 1
        em.e(f"v_add_f32 v{sp}, v{sp}, v{sp2}"); yield 1
        em.e(f"v_add_f32 v{sn_}, v{sn_}, v{sn2}"); yield 1
        em.e(f"v_rcp_f32 v{sp}, v{sp}"); yield 2
        em.e(f"v_rcp_f32 v{sn_}, v{sn_}"); yield 2
        for i in range(10):
            em.e(f"v_mul_f32 v{P+2*i}, v{P+2*i}, v{sp}"); yield 1
            em.e(f"v_mul_f32 v{P+2*i+1}, v{P+2*i+1}, v{sp}"); yield 1
            em.e(f"v_mul_f32 v{E+2*i}, v{E+2*i}, v{sn_}"); yield 1
            em.e(f"v_mul_f32 v{E+2*i+1}, v{E+2*i+1}, v{sn_}"); yield 1
            em.e(f"v_cvt_pk_bf16_f32 v{O+i}, v{P+2*i}, v{P+2*i+1}"); yield 1
            em.e(f"v_cvt_pk_bf16_f32 v{O+10+i}, v{E+2*i}, v{E+2*i+1}"); yield 1
        yield from out_fn(em, ri, O)

def conv_qf(em, nsteps):
    for s in range(nsteps):
        r = ACC0 + 16 * (s >> 1) + 8 * (s & 1)
        for i in range(4):
            em.e(f"v_cvt_pk_bf16_f32 v{r+i}, v{r+2*i}, v{r+2*i+1}"); yield 1

def copy_acc(em, abase, n, dst=ACC0):
    for i in range(n):
        em.e(f"v_accvgpr_read_b32 v{dst+i}, a{abase+i}"); yield 1


def touch(em, srd_s, nl, lg, pitch, step, maxoff, s_base, tmp=VT, force=False):
    if OPT["touch"] != 1 and not force: return 0
    a, b, c = tmp, tmp + 1, tmp + 2
    n = 0
    for r in range((nl + 255) // 256):
        em.e(f"""
        v_add_u32 v{a}, {256*r}, v0
        v_lshrrev_b32 v{b}, {lg}, v{a}
        v_mul_u32_u24 v{b}, {pitch}, v{b}
        """)
        if lg:
            em.e(f"""
            v_and_b32 v{c}, {(1<<lg)-1}, v{a}
            v_mul_u32_u24 v{c}, {step}, v{c}
            v_min_u32 v{c}, {maxoff}, v{c}
            v_add_u32 v{b}, v{b}, v{c}
            """)
        if 256 * (r + 1) > nl:
            em.e(f"""
            v_cmp_gt_u32 vcc, {nl}, v{a}
            v_mov_b32 v{c}, 0x80000000
            s_nop 0
            v_cndmask_b32 v{b}, v{c}, v{b}, vcc
            """)
        em.vm(f"buffer_load_dword v255, v{b}, s[{srd_s}:{srd_s+3}], s{s_base} offen")
        n += 12
    return n


S_PF = 84
def gpf_setup(em):
    if OPT["touch"] != 3: return
    a, b = VT, VT + 1
    em.e(f"""
    s_cmp_eq_u32 s{S_WV}, 0
    s_cselect_b32 s{S_PF}, s{S_G}, s{S_U}
    s_cselect_b32 s{S_PF+1}, s{S_G+1}, s{S_U+1}
    s_mov_b32 s{S_PF+2}, {640*3456}
    s_mov_b32 s89, {64*3456}
    s_mul_i32 s88, s2, 864
    s_cmp_eq_u32 s{S_WV}, 2
    s_cselect_b32 s{S_PF}, s{S_QKV}, s{S_PF}
    s_cselect_b32 s{S_PF+1}, s{S_QKV+1}, s{S_PF+1}
    s_cselect_b32 s{S_PF+2}, {640*3840}, s{S_PF+2}
    s_cselect_b32 s89, {64*3840}, s89
    s_mul_i32 s{S_T0}, s2, 960
    s_cselect_b32 s88, s{S_T0}, s88
    s_cmp_eq_u32 s{S_WV}, 3
    s_cselect_b32 s{S_PF}, s{S_X}, s{S_PF}
    s_cselect_b32 s{S_PF+1}, s{S_X+1}, s{S_PF+1}
    s_cselect_b32 s{S_PF+2}, {2048*1280}, s{S_PF+2}
    s_cselect_b32 s89, 128, s89
    s_mul_i32 s{S_T0}, s2, {8*1280}
    s_cselect_b32 s88, s{S_T0}, s88
    s_mov_b32 s{S_PF+3}, 0x00020000
    s_movk_i32 s{S_T0}, 128
    s_cselect_b32 s{S_T0}, 1280, s{S_T0}
    v_mul_lo_u32 v{a}, v1, s{S_T0}
    v_mov_b32 v{b}, 0x80000000
    v_cmp_gt_u32 vcc, 8, v1
    s_nop 1
    v_cndmask_b32 v254, v{b}, v{a}, vcc
    """)
def gpf_step(em, n=1):
    if OPT["touch"] != 3: return 0
    for _ in range(n):
        em.vm(f"buffer_load_dword v255, v254, s[{S_PF}:{S_PF+3}], s88 offen")
        em.e("s_add_u32 s88, s88, s89")
    return 3 * n

def touch_x(em, s_tile, share):
    if OPT["touch"] == 2:
        for srd_s, nbytes in ((S_X, 2048*1280), (S_G, 640*3456), (S_U, 640*3456), (S_QKV, 640*3840)):
            per = nbytes // 256
            em.e(f"s_mul_i32 s{S_T0}, s2, {per}")
            touch(em, srd_s, (per + 127) // 128, 0, 128, 0, 0, S_T0, force=True)
        return
    if OPT["touch"] == 3:
        gpf_setup(em); gpf_step(em, OPT["LA"]); return
    if OPT["touch"] != 1: return
    a, b, c = VT, VT + 1, VT + 2
    em.e(f"s_lshl_b32 s{S_T0}, s{s_tile}, 2")
    if isinstance(share, int): em.e(f"s_add_u32 s{S_T0}, s{S_T0}, {share}")
    else: em.e(f"s_add_u32 s{S_T0}, s{S_T0}, s{share[1:]}")
    em.e(f"s_mul_i32 s{S_T0}, s{S_T0}, {32*1280}")
    for r in range(2):
        em.e(f"""
        v_add_u32 v{a}, {256*r}, v0
        v_and_b32 v{b}, 31, v{a}
        v_mul_u32_u24 v{b}, 1280, v{b}
        v_lshrrev_b32 v{c}, 5, v{a}
        v_lshl_add_u32 v{b}, v{c}, 7, v{b}
        """)
        if r == 1:
            em.e(f"""
            v_cmp_gt_u32 vcc, 320, v{a}
            v_mov_b32 v{c}, 0x80000000
            s_nop 0
            v_cndmask_b32 v{b}, v{c}, v{b}, vcc
            """)
        em.vm(f"buffer_load_dword v255, v{b}, s[{S_X}:{S_X+3}], s{S_T0} offen")

def touch_F(em, g0, ng):
    if OPT["touch"] != 1: return 0
    em.e(f"""
    s_and_b32 s{S_T0}, s{S_M}, 7
    s_mul_i32 s{S_T0}, s{S_T0}, {80*3456}
    s_lshl_b32 s{S_T0+1}, s{S_FG}, 7
    s_add_u32 s{S_T0}, s{S_T0}, s{S_T0+1}
    s_add_u32 s{S_T0}, s{S_T0}, {g0*128}
    """)
    lg = 0 if ng == 1 else 1
    n = 5
    for mat in range(2):
        n += touch(em, S_G + 4 * mat, 80 << lg, lg, 3456, 128, 128 * (ng - 1), S_T0)
    return n

def frag_issue(em, scratch, R):
    a, b = VT, VT + 1
    em.e(f"""
    v_lshrrev_b32 v{a}, 1, v1
    v_mul_u32_u24 v{a}, 1280, v{a}
    v_and_b32 v{b}, 1, v1
    v_lshl_add_u32 v{R}, v{b}, 4, v{a}
    s_mul_i32 s{S_T0}, s2, 12
    s_mul_i32 s{S_T0+1}, s{S_WV}, 3
    s_add_u32 s{S_T0}, s{S_T0}, s{S_T0+1}
    s_mul_i32 s{S_T0+7}, s{S_WV}, 3072
    s_add_u32 s{S_T0+7}, s{S_T0+7}, {scratch}
    """)
    for i in range(3):
        ss, sj = 80 + 2 * i, 81 + 2 * i
        em.e(f"""
        s_add_u32 s{S_T0+1}, s{S_T0}, {i}
        s_min_u32 s{S_T0+1}, s{S_T0+1}, 2959
        s_mul_hi_u32 s{ss}, s{S_T0+1}, {(1<<32)//40+1}
        s_mul_i32 s{S_T0+2}, s{ss}, 40
        s_sub_u32 s{sj}, s{S_T0+1}, s{S_T0+2}
        s_cmp_lt_u32 s{ss}, 54
        s_cselect_b32 s{S_TA}, s52, s46
        s_cselect_b32 s{S_TA+1}, s53, s47
        s_mov_b32 s{S_TA+2}, {640*1280}
        s_cselect_b32 s{S_TA+2}, {1728*1280}, s{S_TA+2}
        s_mov_b32 s{S_TA+3}, 0x00020000
        s_cselect_b32 s{S_T0+2}, 0, 54
        s_sub_u32 s{S_T0+2}, s{ss}, s{S_T0+2}
        s_mul_i32 s{S_T0+2}, s{S_T0+2}, 40960
        s_lshl_b32 s{S_T0+3}, s{sj}, 5
        s_add_u32 s{S_T0+2}, s{S_T0+2}, s{S_T0+3}
        s_add_u32 m0, s{S_T0+7}, {i*1024}
        s_nop 0
        """)
        last = em.vm(f"buffer_load_dwordx4 v{R}, s[{S_TA}:{S_TA+3}], s{S_T0+2} offen lds")
    return last

def frag_finish(em, vid, scratch, R):
    a, b, c, d, e = VT, VT + 1, VT + 2, VT + 3, VT + 4
    em.e(f"""
    v_lshrrev_b32 v{a}, 4, v1
    v_bfe_u32 v{b}, v1, 2, 2
    v_and_b32 v{c}, 3, v1
    v_lshrrev_b32 v{d}, 1, v{a}
    v_lshlrev_b32 v{d}, 4, v{d}
    v_and_b32 v{e}, 1, v{a}
    v_lshl_add_u32 v{d}, v{e}, 2, v{d}
    v_add_u32 v{d}, v{d}, v{b}
    v_lshl_add_u32 v{e}, v{a}, 3, v{b}
    v_lshlrev_b32 v{c}, 3, v{c}
    s_mul_i32 s{S_T0+7}, s{S_WV}, 3072
    s_add_u32 s{S_T0+7}, s{S_T0+7}, {scratch}
    v_add_u32 v{c}, s{S_T0+7}, v{c}
    v_lshl_add_u32 v{d}, v{d}, 5, v{c}
    v_lshl_add_u32 v{e}, v{e}, 5, v{c}
    v_add_u32 v{a}, 256, v{d}
    v_add_u32 v{b}, 128, v{e}
    v_lshlrev_b32 v{R}, 4, v1
    """)
    em.wait(vm=vid)
    ids = []
    for i in range(3):
        ss = 80 + 2 * i
        r = R + 4 + 4 * i
        em.e(f"""
        s_cmp_lt_u32 s{ss}, 54
        s_cselect_b64 vcc, -1, 0
        s_nop 1
        v_cndmask_b32 v{R+1}, v{e}, v{d}, vcc
        v_cndmask_b32 v{R+2}, v{b}, v{a}, vcc
        """)
        em.lds(f"ds_read_b64_tr_b16 v[{r}:{r+1}], v{R+1} offset:{i*1024}")
        ids.append(em.lds(f"ds_read_b64_tr_b16 v[{r+2}:{r+3}], v{R+2} offset:{i*1024}"))
    for i in range(3):
        ss, sj = 80 + 2 * i, 81 + 2 * i
        r = R + 4 + 4 * i
        em.e(f"""
        s_mul_hi_u32 s{S_T0}, s{sj}, {(1<<32)//5+1}
        s_mul_i32 s{S_T0+1}, s{S_T0}, 5
        s_sub_u32 s{S_T0+1}, s{sj}, s{S_T0+1}
        s_mul_i32 s{S_T0}, s{S_T0}, 74
        s_add_u32 s{S_T0}, s{S_T0}, s{ss}
        s_mul_i32 s{S_T0}, s{S_T0}, 5120
        s_lshl_b32 s{S_T0+1}, s{S_T0+1}, 10
        s_add_u32 s{S_T0}, s{S_T0}, s{S_T0+1}
        s_add_u32 s{S_T0}, s{S_T0}, {WDF_OFF}
        """)
        em.wait(lds=ids[i])
        em.vm(f"buffer_store_dwordx4 v[{r}:{r+3}], v{R}, s[{S_WS}:{S_WS+3}], s{S_T0} offen")

def gate_issue(em, R):
    a, b, c, d, e = VT, VT + 1, VT + 2, VT + 3, VT + 4
    srd(em, S_TA, 54, 1280)
    em.e(f"""
    s_lshl_b32 s{S_T0}, s2, 3
    s_lshl_b32 s{S_T0+1}, s{S_WV}, 1
    s_add_u32 s{S_T0}, s{S_T0}, s{S_T0+1}
    v_lshrrev_b32 v{a}, 5, v1
    v_add_u32 v{R+24}, s{S_T0}, v{a}
    v_mul_u32_u24 v{a}, 1280, v{R+24}
    v_and_b32 v{b}, 31, v1
    v_lshlrev_b32 v{b}, 4, v{b}
    v_add_u32 v{a}, v{a}, v{b}
    v_mov_b32 v{c}, 0x80000000
    v_cmp_gt_u32 vcc, 256, v{b}
    s_nop 1
    v_cndmask_b32 v{d}, v{c}, v{a}, vcc
    v_cndmask_b32 v{e}, v{c}, v{b}, vcc
    """)
    for i in range(3):
        em.vm(f"buffer_load_dwordx4 v[{R+8*i}:{R+8*i+3}], v{a if i < 2 else d}, s[{S_X}:{S_X+3}], 0 offen offset:{i*512}")
        last = em.vm(f"buffer_load_dwordx4 v[{R+8*i+4}:{R+8*i+7}], v{b if i < 2 else e}, s[{S_TA}:{S_TA+3}], 0 offen offset:{i*512}")
    em.e(f"""
    s_mul_i32 s{S_T0}, s2, 10240
    s_add_u32 s{S_T0}, s{S_T0}, {OF_OFF}
    s_add_u32 s{S_T0+1}, s{S_T0}, 4096
    s_add_u32 s{S_T0+2}, s{S_T0}, 8192
    v_lshlrev_b32 v{a}, 4, v0
    v_cmp_gt_u32 vcc, 128, v0
    v_mov_b32 v{R+26}, -1
    v_mov_b32 v{R+27}, -1
    v_mov_b32 v{R+28}, -1
    v_mov_b32 v{R+29}, -1
    v_cndmask_b32 v{b}, v{c}, v{a}, vcc
    """)
    em.vm(f"buffer_store_dwordx4 v[{R+26}:{R+29}], v{a}, s[{S_WS}:{S_WS+3}], s{S_T0} offen")
    em.vm(f"buffer_store_dwordx4 v[{R+26}:{R+29}], v{a}, s[{S_WS}:{S_WS+3}], s{S_T0+1} offen")
    em.vm(f"buffer_store_dwordx4 v[{R+26}:{R+29}], v{b}, s[{S_WS}:{S_WS+3}], s{S_T0+2} offen")
    return last

def gate_bg(em, vid, R, delay=120):
    a, b, c, d = R + 27, R + 28, R + 29, R + 30
    s0, s1 = R + 25, R + 26
    for _ in range(delay): yield 4
    em.wait(vm=vid)
    em.e(f"v_mov_b32 v{s0}, 0"); yield 1
    em.e(f"v_mov_b32 v{s1}, 0"); yield 1
    for i in range(3):
        for k in range(4):
            x = R + 8 * i + k; w = x + 4
            for t in f"""v_lshlrev_b32 v{a}, 16, v{x}
            v_and_b32 v{b}, 0xffff0000, v{x}
            v_lshlrev_b32 v{c}, 16, v{w}
            v_and_b32 v{d}, 0xffff0000, v{w}
            v_mul_f32 v{a}, v{a}, v{c}
            v_mul_f32 v{b}, v{b}, v{d}
            v_cvt_pk_bf16_f32 v{a}, v{a}, v{b}
            v_lshlrev_b32 v{b}, 16, v{a}
            v_and_b32 v{a}, 0xffff0000, v{a}
            v_add_f32 v{s0}, v{s0}, v{b}
            v_add_f32 v{s1}, v{s1}, v{a}""".split("\n"):
                em.e(t); yield 1
    em.e(f"v_add_f32 v{s0}, v{s0}, v{s1}"); yield 1
    for off in (0x041F, 0x081F, 0x101F, 0x201F, 0x401F):
        yield 4
        i_ = em.lds(f"ds_swizzle_b32 v{s1}, v{s0} offset:{off}"); yield 4
        yield 4
        yield 4
        em.wait(lds=i_)
        em.e(f"v_add_f32 v{s0}, v{s0}, v{s1}"); yield 1
    for t in f"""v_cvt_pk_bf16_f32 v{s0}, v{s0}, v{s0}
    v_lshlrev_b32 v{s0}, 16, v{s0}
    v_mul_f32 v{s0}, {f32bits(-LOG2E)}, v{s0}
    v_exp_f32 v{s0}, v{s0}
    v_lshlrev_b32 v{a}, 2, v{R+24}
    v_add_f32 v{s0}, 1.0, v{s0}
    v_rcp_f32 v{s0}, v{s0}
    s_mov_b32 s{S_TMP2}, {G_OFF}
    v_cvt_pk_bf16_f32 v{s0}, v{s0}, v{s0}
    v_lshlrev_b32 v{s0}, 16, v{s0}""".split("\n"):
        em.e(t); yield 1
    em.vm(f"buffer_store_dword v{s0}, v{a}, s[{S_WS}:{S_WS+3}], s{S_TMP2} offen"); yield 3

def gen_F(em, with_f2):
    WSL = 16384; NW = 6; XB = NW * WSL; NX = 4
    setup_common(em, XB)
    setup_F(em)
    if with_f2: setup_F2(em)
    ACCS = [64, 128]; TMP = 192; GR = 192
    st = {}
    nst = 30 if with_f2 else 20
    def pro(em):
        st["g"] = gate_issue(em, GR)
    def on_stage(em, sn):
        if sn == nst - 1:
            st["f"] = frag_issue(em, ((nst - 3) % NW) * WSL, VT + 2); return 8
        return 0
    groups = [f_group(em, 0, [f"v{64+16*t}" for t in range(4)], WSL, True, lambda em: gate_bg(em, st["g"], GR)),
              f_group(em, 1, [f"v{128+16*t}" for t in range(4)], WSL, False, lambda em: f_epi(em, 64, 0, TMP))]
    if with_f2:
        groups.append(f2_group(em, [f"v{64+16*t}" for t in range(2)], WSL, lambda em: f_epi(em, 128, 1, TMP)))
    cfg = dict(groups=groups, wslots=NW, xslots=NX, x_dma=x_dma_fn(em, WSL),
               xread=lambda gi, k, sp, slot: f"ds_read_b128 a[{4*k}:{4*k+3}], v{V_XR+sp} offset:{slot*WSL}",
               xreg=lambda gi, k: f"a[{4*k}:{4*k+3}]", wfrag=WFR, after_prologue=pro, on_stage=on_stage,
               stamp_at={0: 1, 1: 8, 5: 2, 10: 3, 15: 4, 20: 5, 25: 6})
    engine(em, cfg)
    stamp(em, 9)
    if with_f2:
        for t in range(2):
            for _ in f_epilogue_tile(em, 64 + 16 * t, t * 512, TMP + 16 * t, S_HB2): pass
    else:
        for _ in f_epi(em, 128, 1, TMP): pass
    frag_finish(em, st["f"], ((nst - 3) % NW) * WSL, 224)
    stamp(em, 10)

def gen_QF(em):
    WSL = 20480; NW = 5; XB = NW * WSL; NX = 3; XSL = 16384
    WBD = XB; PB = XB + 18432
    setup_common(em, XB)
    setup_QKV(em, "Q", WBD, PB)
    setup_F(em)
    setup_F2(em)
    st = {}; GR = 192
    em.e(f"s_lshl_b32 s{S_H0}, s{S_C}, 3")
    def pro(em):
        touch_x(em, S_M, 2)
        if OPT["touch"]:
            em.e(f"""
            s_and_b32 s{S_T0}, s{S_M}, 7
            s_mul_i32 s{S_T0}, s{S_T0}, {80*3840}
            s_mul_i32 s{S_T0+1}, s{S_C}, 320
            s_add_u32 s{S_T0}, s{S_T0}, s{S_T0+1}
            """)
            touch(em, S_QKV, 320, 2, 3840, 128, 316, S_T0)
        st["g"] = gate_issue(em, GR)
        st["wl"], st["n_it"] = wbd_loads(em, 18, 176, V_CH)
    def on_stage(em, sn):
        if sn < 10 - OPT["LA"]: gpf_step(em)
        if sn == 1: return touch_F(em, 0, 1)
        if sn == 29:
            st["f"] = frag_issue(em, (27 % NW) * WSL, VT + 2); return 8
        return 0
    em.e(f"""
    s_lshl_b32 s{S_T0}, s{S_M}, 3
    s_lshl_b32 s{S_T0+1}, s{S_WV}, 1
    s_add_u32 s{S_T0}, s{S_T0}, s{S_T0+1}
    s_mul_i32 s{S_OB}, s{S_T0}, 40960
    s_mul_i32 s{S_T0}, s{S_C}, {2*5120}
    s_add_u32 s{S_OB}, s{S_OB}, s{S_T0}
    s_add_u32 s{S_OB}, s{S_OB}, {PQF_OFF}
    """)
    def w_dma(em, i, slot):
        cl = []
        for j in range(5):
            def c(j=j):
                em.e(f"s_add_u32 m0, s{S_MW}, {slot*WSL + j*4096}")
                em.e(f"s_mov_b32 s{S_TMP}, {i*64*3840}")
                return em.vm(f"buffer_load_dwordx4 v{V_WD+j}, s[{S_QKV}:{S_QKV+3}], s{S_TMP} offen lds")
            cl.append(c)
        return cl
    def tr(t, slot, sp, hf):
        off = slot * WSL + (16 * sp + 4 * hf) * 320 + t * 64
        if off >= 65536: return (V_TR + 1, off - 65536)
        return (V_TR, off)
    def bg1(em):
        yield from wbd_writes(em, st["n_it"], st["wl"], WBD, V_CH, V_SM)
        yield from conv_qf(em, 10)
        yield "BAR"
        yield from chain(em, 5, 10, 4)
        def out_fn(em, ri, O):
            tr_, hh = ri >> 1, ri & 1
            em.e(f"s_add_u32 s{S_TMP2}, s{S_OB}, {tr_*40960 + hh*5120}"); yield 1
            for c in range(5):
                em.vm(f"buffer_store_dwordx4 v[{O+4*c}:{O+4*c+3}], v{V_OUT}, s[{S_WS}:{S_WS+3}], s{S_TMP2} offen offset:{c*256}"); yield 3
        yield from softmax_rounds(em, [(ri >> 1) * 16 * PITCH + (ri & 1) * 160 for ri in range(4)], out_fn)
    groups = [dict(T=5, KSW=4, acc=[f"v{ACC0+16*t}" for t in range(5)], loadx=True, bg=lambda em: gate_bg(em, st["g"], GR), w_dma=w_dma, tr=tr),
              f_group(em, 0, [f"a{160+16*t}" for t in range(4)], WSL, False, bg1),
              f2_group(em, [f"a{224+16*t}" for t in range(2)], WSL, lambda em: f_epi_acc(em, 160, 4, S_HB, 0, ACC0, V_CH), nodrain=True, bg_est=500)]
    cfg = dict(groups=groups, wslots=NW, xslots=NX, x_dma=x_dma_fn(em, XSL),
               xread=lambda gi, k, sp, slot: f"ds_read_b128 a[{4*k}:{4*k+3}], v{V_XR+sp} offset:{slot*XSL}",
               xreg=lambda gi, k: f"a[{4*k}:{4*k+3}]", wfrag=WFR,
               after_prologue=pro, on_stage=on_stage,
               stamp_at={0: 1, 1: 8, 5: 2, 10: 3, 15: 4, 20: 5, 25: 6})
    engine(em, cfg)
    stamp(em, 9)
    for _ in f_epi_acc(em, 224, 2, S_HB2, 0, ACC0, V_CH): pass
    frag_finish(em, st["f"], (27 % NW) * WSL, 192)
    stamp(em, 10)

def gen_KV(em):
    WSL = 20480; NW = 4; XB = NW * WSL; NX = 4; XSL = 16384
    WBD = XB; PB = WBD + 10240; VB = PB + 4 * 32 * PITCH
    FREE = VB + 4 * 32 * 200
    assert FREE + 64 <= 163840
    FSC = (27 % NW) * WSL
    setup_common(em, XB)
    setup_QKV(em, "KV", WBD, PB, VB)
    setup_F(em)
    setup_F2(em)
    st = {}; GR = 192
    em.e(f"s_lshl_b32 s{S_H0}, s{S_C}, 2")
    KW, KR, KL, KL2 = V_WD, V_WD + 1, V_WD + 2, V_WD + 3
    def w_dma(em, i, slot):
        cl = []
        for j in range(5):
            def c(j=j):
                em.e(f"s_add_u32 m0, s{S_MW}, {slot*WSL + j*4096}")
                em.e(f"s_mov_b32 s{S_TMP}, {i*64*3840}")
                return em.vm(f"buffer_load_dwordx4 v{V_WD+j}, s[{S_QKV}:{S_QKV+3}], s{S_TMP} offen lds")
            cl.append(c)
        return cl
    def tr(t, slot, sp, hf):
        off = slot * WSL + (16 * sp + 4 * hf) * 320 + t * 64
        if off >= 65536: return (V_TR + 1, off - 65536)
        return (V_TR, off)
    def epi(em):
        for (t, a) in [(2, 2), (2, 3)] + [(t, a) for t in (3, 4) for a in range(4)]:
            c0 = 32 * t + 8 * a - 80
            p0 = c0 + 4 * (c0 // 20); p1 = (c0 + 4) + 4 * ((c0 + 4) // 20)
            va = V_VWA if p1 - p0 == 4 else V_VWB
            r = ACC0 + 16 * t + 4 * a
            em.e(f"v_cvt_pk_bf16_f32 v{r}, v{r}, v{r+1}"); yield 1
            em.e(f"v_cvt_pk_bf16_f32 v{r+1}, v{r+2}, v{r+3}"); yield 1
            em.lds(f"ds_write_b64 v{va}, v[{r}:{r+1}] offset:{p0*2}"); yield 2
        yield from conv_qf(em, 5)
        yield "BAR"
        yield from chain(em, 3, 5, 2)
        def out_fn(em, ri, O):
            for c in range(5):
                em.last_p = em.lds(f"ds_write_b128 v{V_OUT}, v[{O+4*c}:{O+4*c+3}] offset:{ri*16*PITCH + 16*c}"); yield 3
        yield from softmax_rounds(em, [ri * 16 * PITCH for ri in range(2)], out_fn)
        x0, x1, x2 = V_CH, V_CH + 1, V_CH + 2
        for t in f"""s_add_u32 s{S_TMP2}, s{S_H0}, s{S_WV}
        s_mul_i32 s{S_OB}, s{S_TMP2}, 3840
        s_add_u32 s{S_OB}, s{S_OB}, {KVP_OFF}
        s_mul_i32 s{S_TMP2}, s{S_WV}, {WSL}
        s_add_u32 s{S_TMP2}, s{S_TMP2}, 16384""".split("\n"): em.e(t)
        yield 4
        for t in f"""v_and_b32 v{x0}, 15, v1
        v_lshrrev_b32 v{x1}, 4, v1
        v_mul_u32_u24 v{x2}, 160, v{x0}
        v_lshl_add_u32 v{x2}, v{x1}, 4, v{x2}
        v_add_u32 v{KW}, s{S_TMP2}, v{x2}
        v_lshlrev_b32 v{KL}, 2, v1
        v_add_u32 v{KR}, s{S_TMP2}, v{KL}
        v_mov_b32 v{x2}, 0x80000000
        v_cmp_gt_u32 s[88:89], 8, v1
        v_cmp_gt_u32 s[86:87], 2, v{x1}
        v_cmp_gt_u32 s[90:91], 5, v{x0}
        v_cndmask_b32 v{KL2}, v{x2}, v{KL}, s[88:89]
        s_and_b64 s[88:89], s[86:87], s[90:91]""".split("\n"): em.e(t)
        yield 13
        em.wait(lds=em.last_p)
        yield "BAR"
        KA = ACC0
        def issue(ks):
            b = V_SM + 20 * (ks % 2)
            for a in range(3):
                for hf in range(2):
                    em.lds(f"ds_read_b64_tr_b16 v[{b+4*a+2*hf}:{b+4*a+2*hf+1}], v{V_PHT} offset:{(32*ks+4*hf)*PITCH + 32*a}")
            for bb in range(2):
                for hf in range(2):
                    last = em.lds(f"ds_read_b64_tr_b16 v[{b+12+4*bb+2*hf}:{b+12+4*bb+2*hf+1}], v{V_VT} offset:{(32*ks+4*hf)*200 + 32*bb}")
            return last
        em.e(f"s_lshl_b32 s{S_TMP2}, s{S_C}, 2\nv_mov_b32 v{V_CH}, 0")
        pv = em.vm(f"buffer_load_dword v{V_CH+1}, v{V_CH}, s[{S_DBG}:{S_DBG+3}], s{S_TMP2} offen sc1"); yield 4
        l0 = issue(0); yield 10
        for ks in range(4):
            if ks < 3: l1 = issue(ks + 1); yield 10
            em.wait(lds=l0)
            b = V_SM + 20 * (ks % 2)
            for a in range(3):
                for bb in range(2):
                    r = KA + 8 * a + 4 * bb
                    c = "0" if ks == 0 else f"v[{r}:{r+3}]"
                    em.e(f"v_mfma_f32_16x16x32_bf16 v[{r}:{r+3}], v[{b+4*a}:{b+4*a+3}], v[{b+12+4*bb}:{b+12+4*bb+3}], {c}"); yield 4
            l0 = l1
        yield 8
        for a in range(3):
            for bb in range(2):
                r = KA + 8 * a + 4 * bb
                msk = [[None, "s[90:91]"], [None, "s[90:91]"], ["s[86:87]", "s[88:89]"]][a][bb]
                if msk: em.e(f"s_mov_b64 exec, {msk}")
                lw = em.lds(f"ds_write_b128 v{KW}, v[{r}:{r+3}] offset:{bb*16*160 + a*64}")
                if msk: em.e("s_mov_b64 exec, -1")
                yield 4
        yield 8
        em.wait(lds=lw)
        rr = []
        for i in range(14):
            rr.append(em.lds(f"ds_read_b32 v{V_SM+i}, v{KR} offset:{i*256}")); yield 1
        em.wait(vm=pv)
        em.e(f"""
        v_readfirstlane_b32 s{S_DUM}, v{V_CH+1}
        s_cmp_ge_u32 s{S_DUM}, 16
        s_cbranch_scc1 L_kv_go
        s_lshl_b32 s{S_TMP2}, s{S_C}, 2
        """)
        em.label("L_kv_poll")
        em.e(f"""
        s_sleep 8
        buffer_load_dword v{V_CH+1}, v{V_CH}, s[{S_DBG}:{S_DBG+3}], s{S_TMP2} offen sc1
        s_waitcnt vmcnt(0)
        v_readfirstlane_b32 s{S_DUM}, v{V_CH+1}
        s_cmp_lt_u32 s{S_DUM}, 16
        s_cbranch_scc1 L_kv_poll
        """)
        em.label("L_kv_go")
        yield 6
        for i in range(14):
            em.wait(lds=rr[i])
            em.vm(f"buffer_atomic_add_f32 v{V_SM+i}, v{KL if i < 13 else KL2}, s[{S_WS}:{S_WS+3}], s{S_OB} offen offset:{i*256}"); yield 3
    def bg1(em):
        yield from wbd_writes(em, st["n_it"], st["wl"], WBD, V_CH, V_SM)
        em.e(f"v_lshrrev_b32 v{V_SM}, 5, v1"); yield 1
        em.e(f"v_mul_u32_u24 v{V_SM}, 88, v{V_SM}"); yield 1
        em.e(f"v_add_u32 v{V_SM}, v{V_SM}, v{V_VWA}"); yield 1
        em.e(f"v_mov_b32 v{V_SM+2}, 0x3f803f80"); yield 1
        em.e(f"v_mov_b32 v{V_SM+3}, 0x3f803f80"); yield 1
        em.lds(f"ds_write_b64 v{V_SM}, v[{V_SM+2}:{V_SM+3}] offset:40"); yield 2
        em.lds(f"ds_write_b64 v{V_SM}, v[{V_SM+2}:{V_SM+3}] offset:88"); yield 2
        yield from epi(em)
    def on_stage(em, sn):
        if sn == 29:
            st["f"] = frag_issue(em, FSC, VT + 2); return 8
        return 0
    def pro(em):
        em.e(f"""
        s_mul_i32 s{S_T0}, s{S_C}, 15360
        s_mul_i32 s{S_T0+1}, s{S_M}, 960
        s_add_u32 s{S_T0}, s{S_T0}, s{S_T0+1}
        s_add_u32 s{S_T0}, s{S_T0}, {KVP_OFF}
        v_lshlrev_b32 v{VT}, 4, v0
        v_mov_b32 v{VT+1}, 0x80000000
        v_cmp_gt_u32 vcc, 60, v0
        v_mov_b32 v{V_SM}, 0
        v_mov_b32 v{V_SM+1}, 0
        v_mov_b32 v{V_SM+2}, 0
        v_mov_b32 v{V_SM+3}, 0
        v_cndmask_b32 v{VT}, v{VT+1}, v{VT}, vcc
        """)
        st["z"] = em.vm(f"buffer_store_dwordx4 v[{V_SM}:{V_SM+3}], v{VT}, s[{S_WS}:{S_WS+3}], s{S_T0} offen sc1")
        em.e("s_nop 1")
        st["g"] = gate_issue(em, GR)
        st["wl"], st["n_it"] = wbd_loads(em, 9, 180, V_CH)
    def bg0(em):
        yield from gate_bg(em, st["g"], GR)
        em.wait(vm=st["z"])
        em.e(f"""
        s_lshl_b32 s{S_TMP2}, s{S_C}, 2
        v_mov_b32 v{GR}, 0x80000000
        v_mov_b32 v{GR+1}, 1
        v_mov_b32 v{GR+2}, 0
        v_cmp_eq_u32 vcc, 0, v0
        s_nop 1
        v_cndmask_b32 v{GR}, v{GR}, v{GR+2}, vcc
        """); yield 4
        em.vm(f"buffer_atomic_add v{GR+1}, v{GR}, s[{S_DBG}:{S_DBG+3}], s{S_TMP2} offen sc1"); yield 3
    groups = [dict(T=5, KSW=4, acc=[f"v{ACC0+16*t}" for t in range(5)], loadx=True, bg=bg0, w_dma=w_dma, tr=tr),
              f_group(em, 0, [f"a{160+16*t}" for t in range(4)], WSL, False, bg1),
              f2_group(em, [f"a{224+16*t}" for t in range(2)], WSL, lambda em: f_epi_acc(em, 160, 4, S_HB, 0, ACC0, V_CH), nodrain=True, bg_est=500)]
    cfg = dict(groups=groups, wslots=NW, xslots=NX, x_dma=x_dma_fn(em, XSL),
               xread=lambda gi, k, sp, slot: f"ds_read_b128 a[{4*k}:{4*k+3}], v{V_XR+sp} offset:{slot*XSL}",
               xreg=lambda gi, k: f"a[{4*k}:{4*k+3}]", wfrag=WFR,
               after_prologue=pro, on_stage=on_stage, stamp_at={0: 1, 1: 8, 5: 2, 10: 3, 15: 4, 20: 5, 25: 6})
    engine(em, cfg)
    stamp(em, 9)
    for _ in f_epi_acc(em, 224, 2, S_HB2, 0, ACC0, V_CH): pass
    frag_finish(em, st["f"], FSC, 192)
    stamp(em, 10)

KD = """.section .rodata,"a"
.p2align 6
.amdhsa_kernel {name}
  .amdhsa_next_free_vgpr {nv}
  .amdhsa_next_free_sgpr 100
  .amdhsa_accum_offset {ao}
  .amdhsa_group_segment_fixed_size 0
  .amdhsa_kernarg_size 96
  .amdhsa_user_sgpr_count 2
  .amdhsa_user_sgpr_kernarg_segment_ptr 1
  .amdhsa_system_sgpr_workgroup_id_x 1
.end_amdhsa_kernel
"""

def gen_k1():
    em = Em()
    em.raw(".text\n.globl k1_kernel\n.p2align 8\n.type k1_kernel,@function\nk1_kernel:")
    em.e("s_cmp_ge_u32 s2, 256\ns_cbranch_scc1 L_k1_done")
    em.e(f"""
    s_load_dwordx4 s[40:43], s[0:1], 0
    s_load_dwordx4 s[44:47], s[0:1], 16
    s_load_dwordx4 s[48:51], s[0:1], 40
    s_load_dwordx4 s[52:55], s[0:1], 56
    s_load_dwordx4 s[56:59], s[0:1], 80
    v_lshrrev_b32 v1, 6, v0
    s_nop 0
    v_readfirstlane_b32 s{S_WV}, v1
    """)
    T0 = S_T0
    em.e(f"""
    s_and_b32 s{T0}, s2, 1
    s_bfe_u32 s{T0+1}, s2, 0x20001
    s_lshr_b32 s{T0+2}, s2, 3
    s_lshl_b32 s{S_M}, s{T0}, 3
    """)
    em.wait_lgkm0()
    srd(em, S_X, 40, 2048 * 1280)
    srd(em, S_WS, 58, WS_BYTES)
    srd(em, S_DBG, 56, 256)
    srd(em, S_G, 48, 640 * 3456)
    srd(em, S_U, 50, 640 * 3456)
    srd(em, S_QKV, 42, 640 * 3840)
    srd(em, S_PHI, 44, 32 * 800)
    stamp(em, 0)
    em.e(f"""
    s_and_b32 s{T0+3}, s{T0+2}, 7
    s_add_u32 s{S_M}, s{S_M}, s{T0+3}
    s_lshr_b32 s{T0+2}, s{T0+2}, 3
    s_cmp_eq_u32 s{T0+2}, 3
    s_cbranch_scc1 L_k1_F
    s_lshl_b32 s{T0+4}, s{T0+1}, 1
    s_add_u32 s{T0+4}, s{T0+4}, s{T0+2}
    s_sub_u32 s{S_C}, s{T0+4}, 1
    s_add_u32 s{T0+4}, s{T0+4}, 3
    s_cmp_eq_u32 s{T0+2}, 0
    s_cselect_b32 s{S_C}, s{T0+1}, s{S_C}
    s_cselect_b32 s{S_FG}, s{T0+1}, s{T0+4}
    s_lshr_b32 s{S_FG2}, s{S_FG}, 1
    s_add_u32 s{S_FG2}, s{S_FG2}, 20
    s_and_b32 s{S_TOFF}, s{S_FG}, 1
    s_lshl_b32 s{S_TOFF}, s{S_TOFF}, 1
    s_cbranch_scc0 L_k1_x0
    """)
    em.label("L_k1_x0")
    em.e(f"s_cmp_lg_u32 s{T0+2}, 0\ns_cbranch_scc1 L_k1_KV")
    save = (em.vm_n, em.vm_done, em.lds_n, em.lds_done)
    def restore(): em.vm_n, em.vm_done, em.lds_n, em.lds_done = save
    gen_QF(em)
    em.e("s_endpgm")
    em.label("L_k1_KV"); restore()
    gen_KV(em)
    em.e("s_endpgm")
    em.label("L_k1_F"); restore()
    em.e(f"""
    s_lshl_b32 s{S_FG}, s{T0+1}, 1
    s_add_u32 s{S_FG}, s{S_FG}, 12
    s_mov_b32 s{S_FG2}, 26
    s_and_b32 s{S_TOFF}, s{T0+1}, 1
    s_lshl_b32 s{S_TOFF}, s{S_TOFF}, 1
    s_cmp_ge_u32 s{T0+1}, 2
    s_cbranch_scc1 L_k1_F2
    """)
    gen_F(em, True)
    em.e("s_endpgm")
    em.label("L_k1_F2"); restore()
    gen_F(em, False)
    em.label("L_k1_done")
    em.e("s_endpgm")
    return em.finish(), em
```

```python
from asmlib import *
import k1v2 as k1
from k1v2 import HF_OFF, PQF_OFF, WDF_OFF, OF_OFF, KVP_OFF, G_OFF, FLAG_OFF, WS_BYTES, f32bits, srd

S_WS2 = 4; S_OUT = 8
S_WV2 = 16; S_MT = 17; S_NT = 18; S_A0 = 19; S_B0 = 20; S_U = 21
T = 24
ACC = 16
BUF = 96
NBUF = 4

def stamp2(em, k):
    if not k1.OPT['stamps']: return
    em.e(f"s_memtime s[60:61]")
    em.e("s_waitcnt lgkmcnt(0)"); em.lds_done = em.lds_n
    em.e(f"""
    s_lshl_b32 s62, s2, 9
    s_lshl_b32 s63, s{S_WV2}, 6
    s_add_u32 s62, s62, s63
    s_add_u32 s62, s62, {0x14A0000 + 4*k}
    v_mov_b32 v250, s60
    v_mov_b32 v251, 0
    """)
    em.vm(f"buffer_store_dword v250, v251, s[{S_WS2}:{S_WS2+3}], s62 offen")

def stream(em, nsteps, b_tt_stride, b_sc1, gate=None, last_optional=None, NBUF=4):
    ids = {}
    def issue_a(s):
        b = BUF + 36 * (s % NBUF)
        em.e(f"s_add_u32 s{T}, s{S_A0}, {s*5120}")
        for j in range(4):
            em.vm(f"buffer_load_dwordx4 v[{b+4*j}:{b+4*j+3}], v2, s[{S_WS2}:{S_WS2+3}], s{T} offen offset:{j*1024}")
        em.e(f"s_add_u32 s{T}, s{T}, 4096")
        return em.vm(f"buffer_load_dwordx4 v[{b+16}:{b+19}], v2, s[{S_WS2}:{S_WS2+3}], s{T} offen")
    def issue_b(s):
        b = BUF + 36 * (s % NBUF) + 20
        for tt in range(4):
            em.e(f"s_add_u32 s{T}, s{S_B0}, {s*1024 + tt*b_tt_stride}")
            last = em.vm(f"buffer_load_dwordx4 v[{b+4*tt}:{b+4*tt+3}], v2, s[{S_WS2}:{S_WS2+3}], s{T} offen{' sc1' if b_sc1 else ''}")
        return last
    npre = min(NBUF, nsteps)
    if gate is None:
        for s in range(npre):
            if s == k1.OPT.get("k2pre", 0): em.e("s_barrier")
            issue_a(s); ids[s] = issue_b(s)
    else:
        gate(em)
        for s in range(npre):
            issue_a(s); ids[s] = issue_b(s)
    for s in range(nsteps):
        if last_optional and s == nsteps - 1:
            em.e(f"s_cmp_eq_u32 s{T+6}, 0\ns_cbranch_scc1 {last_optional}")
        em.wait(vm=ids[s])
        if s == 0: stamp2(em, 5)
        if s == 4: stamp2(em, 6)
        b = BUF + 36 * (s % NBUF)
        for j in range(5):
            for tt in range(4):
                a = ACC + 4 * (4 * j + tt)
                c = "0" if s == 0 else f"v[{a}:{a+3}]"
                em.e(f"v_mfma_f32_16x16x32_bf16 v[{a}:{a+3}], v[{b+4*j}:{b+4*j+3}], v[{b+20+4*tt}:{b+20+4*tt+3}], {c}")
        if s + NBUF < nsteps:
            issue_a(s + NBUF); ids[s + NBUF] = issue_b(s + NBUF)

def gen_k2():
    em = Em()
    em.raw(".text\n.globl k2_kernel\n.p2align 8\n.type k2_kernel,@function\nk2_kernel:")
    em.e("s_cmp_ge_u32 s2, 256\ns_cbranch_scc1 L_k2_done")
    em.e(f"""
    s_load_dwordx2 s[40:41], s[0:1], 72
    s_load_dwordx2 s[44:45], s[0:1], 88
    v_lshrrev_b32 v1, 6, v0
    v_and_b32 v3, 63, v0
    v_readfirstlane_b32 s{S_WV2}, v1
    v_lshlrev_b32 v2, 4, v3
    s_lshr_b32 s{T+1}, s2, 3
    s_and_b32 s{S_NT}, s{T+1}, 3
    s_and_b32 s{T}, s2, 1
    s_lshl_b32 s{T}, s{T}, 2
    s_add_u32 s{S_NT}, s{S_NT}, s{T}
    s_lshr_b32 s{T+1}, s{T+1}, 2
    s_bfe_u32 s{T}, s2, 0x20001
    s_lshl_b32 s{S_MT}, s{T}, 3
    s_add_u32 s{S_MT}, s{S_MT}, s{T+1}
    s_mul_i32 s{S_A0}, s{S_NT}, {74*5120}
    s_add_u32 s{S_A0}, s{S_A0}, {WDF_OFF}
    """)
    em.wait_lgkm0()
    srd(em, S_OUT, 40, 2048 * 1280)
    srd(em, S_WS2, 44, WS_BYTES)
    CNT = 4 * 20480 + 8192
    stamp2(em, 0)
    em.e(f"s_cmp_ge_u32 s{S_WV2}, 4\ns_cbranch_scc1 L_k2_owave")
    save = (em.vm_n, em.vm_done, em.lds_n, em.lds_done)
    em.e(f"""
    s_mul_i32 s{T}, s{S_WV2}, 14
    s_cmp_eq_u32 s{S_WV2}, 3
    s_cselect_b32 s{T+1}, 1, 0
    s_sub_u32 s{T}, s{T}, s{T+1}
    s_cmp_lt_u32 s{S_WV2}, 2
    s_cselect_b32 s{T+6}, 1, 0
    s_mul_i32 s{T+1}, s{T}, 5120
    s_add_u32 s{S_A0}, s{S_A0}, s{T+1}
    s_mul_i32 s{S_B0}, s{S_MT}, {4*54*1024}
    s_lshl_b32 s{T+1}, s{T}, 10
    s_add_u32 s{S_B0}, s{S_B0}, s{T+1}
    s_add_u32 s{S_B0}, s{S_B0}, {HF_OFF}
    """)
    stream(em, 14, 54 * 1024, False, last_optional="L_k2_final", NBUF=k1.OPT.get("k2nb", 4))
    em.e("s_branch L_k2_final")
    em.label("L_k2_owave")
    em.vm_n, em.vm_done, em.lds_n, em.lds_done = save
    MP = 144
    if k1.OPT.get("k2prio", 0): em.e("s_setprio 3")
    em.e(f"""
    s_sub_u32 s{S_U}, s{S_WV2}, 4
    s_mul_i32 s{T+2}, s{S_WV2}, 20480
    s_lshl_b32 s{T}, s{S_NT}, 2
    s_add_u32 s{T}, s{T}, s{S_U}
    s_mul_i32 s{T}, s{T}, 3840
    s_add_u32 s{T}, s{T}, {KVP_OFF}
    """)
    KV = 16
    for i in range(4):
        kvl = em.vm(f"buffer_load_dwordx4 v[{KV+4*i}:{KV+4*i+3}], v2, s[{S_WS2}:{S_WS2+3}], s{T} offen offset:{i*1024}")
    em.e(f"""
    s_mul_i32 s{T}, s{S_MT}, {4*40960}
    s_mul_i32 s{T+1}, s{S_NT}, 5120
    s_add_u32 s{T}, s{T}, s{T+1}
    s_lshl_b32 s{T+1}, s{S_U}, 10
    s_add_u32 s{T}, s{T}, s{T+1}
    s_add_u32 s{T}, s{T}, {PQF_OFF}
    """)
    PF = 176
    for tt in range(4):
        for s in range(2):
            r = PF + 4 * (2 * tt + s)
            pf_last = em.vm(f"buffer_load_dwordx4 v[{r}:{r+3}], v2, s[{S_WS2}:{S_WS2+3}], s{T} offen offset:{s*1024}")
        em.e(f"s_add_u32 s{T}, s{T}, 40960")
    em.e(f"""
    v_mov_b32 v4, 0
    v_mov_b32 v5, 0
    v_mov_b32 v6, 0
    v_mov_b32 v7, 0
    v_add_u32 v9, s{T+2}, v2
    """)
    for i in range(7):
        em.lds(f"ds_write_b128 v9, v[4:7] offset:{i*1024}")
    if k1.OPT.get("k2bar", 1) == 0: em.e("s_barrier")
    em.e(f"s_lshl_b32 s{T+4}, s{S_U}, 4\ns_add_u32 s{T+4}, s{T+4}, s{T+2}")
    for i in range(4):
        em.e(f"""
        v_add_u32 v9, {64*i}, v3
        v_mul_u32_u24 v10, 6554, v9
        v_lshrrev_b32 v10, 16, v10
        v_mul_u32_u24 v11, 10, v10
        v_sub_u32 v11, v9, v11
        v_mul_u32_u24 v12, {MP}, v10
        v_lshl_add_u32 v12, v11, 3, v12
        v_add_u32 v{40+i}, s{T+4}, v12
        """)
        if i == 3:
            em.e(f"""
            v_lshlrev_b32 v12, 3, v11
            v_add_u32 v44, s{T+4}, v12
            v_cmp_eq_u32 s[46:47], 20, v10
            v_cmp_gt_u32 s[48:49], 20, v10
            """)
    em.e(f"""
    v_and_b32 v9, 15, v3
    v_lshrrev_b32 v10, 4, v3
    v_mul_u32_u24 v11, {MP}, v9
    v_lshl_add_u32 v11, v10, 4, v11
    v_add_u32 v11, s{T+2}, v11
    s_mul_i32 s{T}, s{S_NT}, 20
    s_mul_i32 s{T+1}, s{S_U}, 5
    s_add_u32 s{T}, s{T}, s{T+1}
    v_add_u32 v12, s{T}, v10
    v_add_u32 v13, 4, v12
    v_lshrrev_b32 v14, 1, v12
    v_lshlrev_b32 v14, 8, v14
    v_and_b32 v12, 1, v12
    v_lshl_add_u32 v12, v12, 3, v14
    v_lshl_add_u32 v12, v9, 4, v12
    v_lshrrev_b32 v14, 1, v13
    v_lshlrev_b32 v14, 8, v14
    v_and_b32 v13, 1, v13
    v_lshl_add_u32 v13, v13, 3, v14
    v_lshl_add_u32 v13, v9, 4, v13
    v_mov_b32 v14, 0x80000000
    v_cmp_eq_u32 vcc, 0, v10
    s_mul_i32 s{T}, s{S_MT}, {4*20480}
    s_add_u32 s{T}, s{T}, {OF_OFF}
    v_cndmask_b32 v13, v14, v13, vcc
    """)
    em.wait(vm=kvl)
    if k1.OPT.get("k2bar", 1) == 1:
        em.wait(vm=pf_last); em.e("s_barrier")
    stamp2(em, 1)
    for i in range(4):
        r = KV + 4 * i
        em.e(f"v_cvt_pk_bf16_f32 v{r}, v{r}, v{r+1}\nv_cvt_pk_bf16_f32 v{r+1}, v{r+2}, v{r+3}")
    for i in range(3):
        r = KV + 4 * i
        em.lds(f"ds_write_b64 v{40+i}, v[{r}:{r+1}]")
    r = KV + 12
    em.e("s_mov_b64 s[50:51], exec\ns_mov_b64 exec, s[48:49]")
    em.lds(f"ds_write_b64 v43, v[{r}:{r+1}]")
    em.e("s_mov_b64 exec, s[46:47]")
    for d in range(16):
        em.lds(f"ds_write_b64 v44, v[{r}:{r+1}] offset:{(32 + d)*MP}")
    em.e("s_mov_b64 exec, s[50:51]")
    em.wait_lgkm0()
    AF = 48
    for t in range(3):
        for s in range(2):
            r = AF + 4 * (2 * t + s)
            em.lds(f"ds_read_b128 v[{r}:{r+3}], v11 offset:{16*t*MP + 64*s}")
    em.wait_lgkm0()
    em.wait(vm=pf_last)
    stamp2(em, 2)
    OA = 72
    for tt in range(4):
        for t in range(3):
            for s in range(2):
                a = OA + 12 * tt + 4 * t
                c = "0" if s == 0 else f"v[{a}:{a+3}]"
                r = AF + 4 * (2 * t + s); p = PF + 4 * (2 * tt + s)
                em.e(f"v_mfma_f32_16x16x32_bf16 v[{a}:{a+3}], v[{r}:{r+3}], v[{p}:{p+3}], {c}")
    for tt in range(4):
        de = OA + 12 * tt + 8
        em.e(f"""
        v_cvt_pk_bf16_f32 v6, v{de}, v{de}
        v_lshlrev_b32 v6, 16, v6
        v_add_f32 v6, {f32bits(1e-6)}, v6
        v_cvt_pk_bf16_f32 v6, v6, v6
        v_lshlrev_b32 v6, 16, v6
        v_rcp_f32 v6, v6
        """)
        for t in range(2):
            nu = OA + 12 * tt + 4 * t
            em.e(f"""
            v_cvt_pk_bf16_f32 v4, v{nu}, v{nu+1}
            v_cvt_pk_bf16_f32 v5, v{nu+2}, v{nu+3}
            v_lshlrev_b32 v{nu}, 16, v4
            v_and_b32 v{nu+1}, 0xffff0000, v4
            v_lshlrev_b32 v{nu+2}, 16, v5
            v_and_b32 v{nu+3}, 0xffff0000, v5
            v_mul_f32 v{nu}, v{nu}, v6
            v_mul_f32 v{nu+1}, v{nu+1}, v6
            v_mul_f32 v{nu+2}, v{nu+2}, v6
            v_mul_f32 v{nu+3}, v{nu+3}, v6
            v_cvt_pk_bf16_f32 v{nu}, v{nu}, v{nu+1}
            v_cvt_pk_bf16_f32 v{nu+1}, v{nu+2}, v{nu+3}
            """)
            em.vm(f"buffer_store_dwordx2 v[{nu}:{nu+1}], v{12 + t}, s[{S_WS2}:{S_WS2+3}], s{T} offen sc1")
        em.e(f"s_add_u32 s{T}, s{T}, 20480")
    em.e(f"""
    s_mul_i32 s{T}, s{S_U}, {5*5120}
    s_add_u32 s{S_A0}, s{S_A0}, s{T}
    s_add_u32 s{S_A0}, s{S_A0}, {54*5120}
    s_mul_i32 s{S_B0}, s{S_MT}, {4*20480}
    s_mul_i32 s{T}, s{S_U}, {5*1024}
    s_add_u32 s{S_B0}, s{S_B0}, s{T}
    s_add_u32 s{S_B0}, s{S_B0}, {OF_OFF}
    """)
    if k1.OPT.get("k2bar", 1) == 2: em.e("s_barrier")
    stamp2(em, 3)
    BB = 96; AA = 176
    def issue_a(s):
        b = AA + 20 * (s % 2)
        em.e(f"s_add_u32 s{T}, s{S_A0}, {s*5120}")
        for j in range(4):
            em.vm(f"buffer_load_dwordx4 v[{b+4*j}:{b+4*j+3}], v2, s[{S_WS2}:{S_WS2+3}], s{T} offen offset:{j*1024}")
        em.e(f"s_add_u32 s{T}, s{T}, 4096")
        return em.vm(f"buffer_load_dwordx4 v[{b+16}:{b+19}], v2, s[{S_WS2}:{S_WS2+3}], s{T} offen")
    em.e("s_nop 1")
    issue_a(0); issue_a(1)
    em.label("L_k2_prepoll")
    em.e(f"s_add_u32 s{T}, s{S_B0}, {3*20480}")
    for s in range(4):
        r = BB + 16 * s + 12
        em.e(f"buffer_load_dwordx4 v[{r}:{r+3}], v2, s[{S_WS2}:{S_WS2+3}], s{T} offen offset:{s*1024} sc1")
    em.e(f"s_add_u32 s{T}, s{T}, 4096")
    em.e(f"buffer_load_dwordx4 v[{BB+76}:{BB+79}], v2, s[{S_WS2}:{S_WS2+3}], s{T} offen sc1")
    em.e("s_waitcnt vmcnt(0)")
    em.e(f"v_max_u32 v4, v{BB+12}, v{BB+14}")
    for s in range(1, 5):
        em.e(f"v_max3_u32 v4, v4, v{BB+16*s+12}, v{BB+16*s+14}")
    em.e(f"""
    v_cmp_eq_u32 vcc, -1, v4
    s_nop 1
    s_cmp_eq_u64 vcc, 0
    s_cbranch_scc1 L_k2_poll
    s_sleep {k1.OPT.get("k2sleep", 8)}
    s_branch L_k2_prepoll
    """)
    em.label("L_k2_poll")
    for tt in range(4):
        em.e(f"s_add_u32 s{T}, s{S_B0}, {tt*20480}")
        for s in range(4):
            r = BB + 16 * s + 4 * tt
            em.e(f"buffer_load_dwordx4 v[{r}:{r+3}], v2, s[{S_WS2}:{S_WS2+3}], s{T} offen offset:{s*1024} sc1")
        r = BB + 64 + 4 * tt
        em.e(f"s_add_u32 s{T}, s{T}, 4096")
        em.e(f"buffer_load_dwordx4 v[{r}:{r+3}], v2, s[{S_WS2}:{S_WS2+3}], s{T} offen sc1")
    em.e("s_waitcnt vmcnt(0)")
    em.vm_done = em.vm_n
    em.e(f"v_max_u32 v4, v{BB}, v{BB+2}\nv_max_u32 v5, v{BB+4}, v{BB+6}")
    for k in range(2, 20, 2):
        em.e(f"v_max3_u32 v4, v4, v{BB+4*k}, v{BB+4*k+2}\nv_max3_u32 v5, v5, v{BB+4*k+4}, v{BB+4*k+6}")
    em.e("""
    v_max_u32 v4, v4, v5
    v_cmp_eq_u32 vcc, -1, v4
    s_nop 1
    s_cmp_eq_u64 vcc, 0
    s_cbranch_scc1 L_k2_go
    s_sleep 2
    s_branch L_k2_poll
    """)
    em.label("L_k2_go")
    stamp2(em, 4)
    aid = {}
    for s in range(5):
        if s in aid: em.wait(vm=aid[s])
        b = AA + 20 * (s % 2)
        for j in range(5):
            for tt in range(4):
                a = ACC + 4 * (4 * j + tt)
                c = "0" if s == 0 else f"v[{a}:{a+3}]"
                r = BB + 16 * s + 4 * tt
                em.e(f"v_mfma_f32_16x16x32_bf16 v[{a}:{a+3}], v[{b+4*j}:{b+4*j+3}], v[{r}:{r+3}], {c}")
        if s + 2 < 5: aid[s + 2] = issue_a(s + 2)
    em.label("L_k2_final")
    em.e("s_nop 7\ns_nop 7")
    em.e("s_waitcnt vmcnt(0)")
    em.lds_done = em.lds_n; em.vm_done = em.vm_n
    stamp2(em, 7)
    em.e(f"s_mul_i32 s{T}, s{S_WV2}, 20480\nv_add_u32 v8, s{T}, v2")
    for k in range(20):
        em.lds(f"ds_write_b128 v8, v[{ACC+4*k}:{ACC+4*k+3}] offset:{k*1024}")
    em.e(f"""
    v_and_b32 v9, 15, v3
    v_lshrrev_b32 v10, 4, v3
    s_and_b32 s{T+7}, s{S_WV2}, 3
    s_lshl_b32 s{T}, s{S_MT}, 6
    s_lshl_b32 s{T+1}, s{T+7}, 4
    s_add_u32 s{T}, s{T}, s{T+1}
    v_add_u32 v11, s{T}, v9
    v_lshlrev_b32 v12, 2, v11
    s_mov_b32 s{T+2}, {G_OFF}
    """)
    gl = em.vm(f"buffer_load_dword v13, v12, s[{S_WS2}:{S_WS2+3}], s{T+2} offen")
    em.wait_lgkm0()
    em.e("s_barrier")
    stamp2(em, 8)
    em.e(f"""
    s_lshl_b32 s{T+1}, s{T+7}, 10
    s_cmp_ge_u32 s{S_WV2}, 4
    s_cselect_b32 s{T+3}, {3*4096}, 0
    s_cselect_b32 s{T+5}, 96, 0
    s_add_u32 s{T+1}, s{T+1}, s{T+3}
    v_add_u32 v8, s{T+1}, v2
    v_add_u32 v14, 61440, v8
    v_add_u32 v15, 122880, v8
    s_movk_i32 s{T+3}, 1280
    v_mul_lo_u32 v11, v11, s{T+3}
    v_lshl_add_u32 v11, v10, 3, v11
    s_mul_i32 s{T+4}, s{S_NT}, 160
    s_add_u32 s{T+4}, s{T+4}, s{T+5}
    """)
    R0 = 16
    ids = []
    for j in range(3):
        for p in range(8):
            r = R0 + 32 * j + 4 * p
            ids.append(em.lds(f"ds_read_b128 v[{r}:{r+3}], v{[8,14,15][p//3]} offset:{(p%3)*20480 + (j*4096 if j < 2 else 0)}") if j < 2 else None)
        if j == 0:
            em.wait(vm=gl)
            em.e(f"""
            v_sub_f32 v12, 1.0, v13
            v_cvt_pk_bf16_f32 v12, v12, v12
            v_lshlrev_b32 v12, 16, v12
            """)
    def fin(j, lastid):
        em.wait(lds=lastid)
        r = R0 + 32 * j
        for i in range(4):
            em.e(f"""
            v_add_f32 v{r+i}, v{r+i}, v{r+4+i}
            v_add_f32 v{r+8+i}, v{r+8+i}, v{r+12+i}
            v_add_f32 v{r+16+i}, v{r+16+i}, v{r+20+i}
            v_add_f32 v{r+24+i}, v{r+24+i}, v{r+28+i}
            """)
        for i in range(4):
            em.e(f"v_add_f32 v{r+i}, v{r+i}, v{r+8+i}\nv_add_f32 v{r+24+i}, v{r+24+i}, v{r+16+i}")
        for h in range(2):
            b0, a0 = r + 2 * h, r + 24 + 2 * h
            em.e(f"""
            v_cvt_pk_bf16_f32 v4, v{b0}, v{b0+1}
            v_cvt_pk_bf16_f32 v5, v{a0}, v{a0+1}
            v_lshlrev_b32 v{b0}, 16, v4
            v_and_b32 v{b0+1}, 0xffff0000, v4
            v_lshlrev_b32 v{a0}, 16, v5
            v_and_b32 v{a0+1}, 0xffff0000, v5
            v_mul_f32 v{b0}, v{b0}, v12
            v_mul_f32 v{b0+1}, v{b0+1}, v12
            v_mul_f32 v{a0}, v{a0}, v13
            v_mul_f32 v{a0+1}, v{a0+1}, v13
            v_cvt_pk_bf16_f32 v4, v{b0}, v{b0+1}
            v_cvt_pk_bf16_f32 v5, v{a0}, v{a0+1}
            v_lshlrev_b32 v{b0}, 16, v4
            v_and_b32 v{b0+1}, 0xffff0000, v4
            v_lshlrev_b32 v{a0}, 16, v5
            v_and_b32 v{a0+1}, 0xffff0000, v5
            v_add_f32 v{b0}, v{b0}, v{a0}
            v_add_f32 v{b0+1}, v{b0+1}, v{a0+1}
            v_cvt_pk_bf16_f32 v{r+4+h}, v{b0}, v{b0+1}
            """)
        em.vm(f"buffer_store_dwordx2 v[{r+4}:{r+5}], v11, s[{S_OUT}:{S_OUT+3}], s{T+4} offen offset:{j*32}")
    fin(0, ids[7]); fin(1, ids[15])
    em.e(f"s_cmp_ge_u32 s{S_WV2}, 4\ns_cbranch_scc1 L_k2_done")
    for p in range(8):
        r = R0 + 64 + 4 * p
        last = em.lds(f"ds_read_b128 v[{r}:{r+3}], v{[8,14,15][p//3]} offset:{(p%3)*20480 + 2*4096}")
    fin(2, last)
    stamp2(em, 9)
    em.label("L_k2_done")
    em.e("s_endpgm")
    return em.finish(), em
```

```python
import sys
import k1v2 as k1, k2v2 as k2
if "stamps" in sys.argv: k1.OPT["stamps"] = True
for a in sys.argv[1:]:
    if "=" in a:
        k, v = a.split("="); k1.OPT[k] = int(v)
b1, e1 = k1.gen_k1()
b2, e2 = k2.gen_k2()
hdr = open("gated_mix__linear_kernel_hedgehog__geglu_ffn__prompt.s.ref").read().split("; Override launch geometry")[0]
hdr += "; @launch kernel=k1_kernel grid=(256,1,1) block=(256,1,1) lds=163840\n"
hdr += "; @launch kernel=k2_kernel grid=(256,1,1) block=(512,1,1) lds=163840\n"
hdr += '.amdgcn_target "amdgcn-amd-amdhsa--gfx950"\n'
out = hdr + b1 + "\n" + b2 + "\n" + k1.KD.format(name="k1_kernel", nv=512, ao=256) + k1.KD.format(name="k2_kernel", nv=256, ao=256)
dst = "full_test.s" if "test" in sys.argv else "gated_mix__linear_kernel_hedgehog__geglu_ffn__prompt.s"
out = out.replace("\n    ", "\n ")
open(dst, "w").write(out)
print("k1 nops", e1.nops, "instrs", len(e1.items), "k2 nops", e2.nops, "instrs", len(e2.items), "bytes", len(out))
```

```python
from asmlib import *
import math, struct

HF_OFF  = 0x0000000
PQF_OFF = 0x0700000
WDF_OFF = 0x0C00000
OF_OFF  = 0x0F00000
KVP_OFF = 0x1200000
G_OFF   = 0x1400000
FLAG_OFF = 0x1410000
STAMP_OFF = 0x1480000
WS_BYTES = 0x1500000

def f32bits(x):
    return "0x%08x" % struct.unpack("<I", struct.pack("<f", x))[0]
LOG2E = 1.4426950408889634
GC0 = -2.0 * math.sqrt(2.0 / math.pi) * LOG2E
GC1 = GC0 * 0.044715

OPT = dict(stamps=False, exact_round=True, budget=3, D=4, touch=3, LA=4)

S_X, S_G, S_U, S_WS, S_QKV, S_PHI = 4, 8, 12, 16, 64, 68
S_WV, S_M, S_C, S_FG = 20, 21, 22, 23
S_T0 = 24
S_H0 = 32; S_HB = 34; S_MW = 35; S_MX = 36; S_TMP = 37; S_TMP2 = 38; S_MW1 = 39
S_L2E = 72; S_OB = 73; S_DUM = 74; S_D2 = 75; S_HB2 = 33; S_FG2 = 96; S_TOFF = 97
S_TA = 76
S_DBG = 92

V_XD = 2; V_XR = 4; V_WD = 8; V_TR = 13; V_FD = 15; V_FT = 17; V_FS = 25; V_GC0 = 26
V_WBD = 27; V_PW = 28; V_PR = 29; V_OUT = 30; V_VWA = 31; V_VWB = 32; V_PHT = 33; V_VT = 34
VT = 35
V_F2T = 252
V_PKC = 244
WFR = [40 + 4 * k for k in range(6)]
ACC0 = 64; V_CH = 144; V_SM = 176; V_AF = V_SM + 56
PITCH = 336

def srd(em, s, ptr_s, nbytes):
    em.e(f"s_mov_b32 s{s}, s{ptr_s}\ns_mov_b32 s{s+1}, s{ptr_s+1}\ns_mov_b32 s{s+2}, {nbytes}\ns_mov_b32 s{s+3}, 0x00020000")

def stamp(em, k):
    if not OPT["stamps"]: return
    if OPT.get("fine") and k in (9, 10) and not getattr(em, "in_engine", False): k += 5
    em.e(f"s_memtime s[60:61]")
    em.e("s_waitcnt lgkmcnt(0)"); em.lds_done = em.lds_n
    em.e(f"""
    s_lshl_b32 s62, s2, 8
    s_lshl_b32 s63, s{S_WV}, 6
    s_add_u32 s62, s62, s63
    s_add_u32 s62, s62, {STAMP_OFF + 4*k}
    v_mov_b32 v{VT+3}, s60
    v_mov_b32 v{VT+4}, 0
    """)
    em.vm(f"buffer_store_dword v{VT+3}, v{VT+4}, s[{S_WS}:{S_WS+3}], s62 offen")

class BG:
    def __init__(self): self.gens = []; self.blocked = False; self.cost_left = 0
    def add(self, g): self.gens.append(g)
    def barrier_passed(self): self.blocked = False
    def step(self, em, budget):
        while budget >= 1 and self.gens and not self.blocked:
            try:
                c = next(self.gens[0])
            except StopIteration:
                self.gens.pop(0); continue
            if c == "BAR":
                self.blocked = True; break
            budget -= c; self.cost_left -= c
        return budget
    def remaining(self): return bool(self.gens)
    def drain(self, em):
        if self.blocked:
            em.e("s_barrier"); self.blocked = False
        while self.gens:
            for c in self.gens[0]:
                if c == "BAR":
                    em.e("s_barrier")
            self.gens.pop(0)

def engine(em, cfg):
    D = OPT["D"]
    groups = cfg["groups"]
    wslots = cfg["wslots"]; xslots = cfg["xslots"]
    KSX = 4; NXS = 10
    PW = wslots - 2; PX = xslots - 1
    stages = []
    for gi, g in enumerate(groups):
        for i in range(40 // g["KSW"]): stages.append((gi, i))
    xst = [(gi, i) for gi in range(len(groups)) if groups[gi]["loadx"] for i in range(NXS)]
    xidx = {s: n for n, s in enumerate(xst)}
    mf = []
    for sn, (gi, i) in enumerate(stages):
        g = groups[gi]
        for sp in range(g["KSW"]):
            for t in range(g["T"]):
                mf.append((sn, gi, i, sp, t))
    N = len(mf)
    wfr = cfg["wfrag"]; NB = len(wfr)
    assert NB >= D + 2
    pend = []; w_last = {}; x_last = {}
    def queue_w(sn):
        if sn >= len(stages): return
        gi, i = stages[sn]
        cl = groups[gi]["w_dma"](em, i, sn % wslots)
        for k, c in enumerate(cl): pend.append((c, ("w", sn) if k == len(cl) - 1 else None))
    def queue_x(xn):
        if xn >= len(xst): return
        gi, i = xst[xn]
        cl = cfg["x_dma"](em, gi, i, xn % xslots)
        for k, c in enumerate(cl): pend.append((c, ("x", xn) if k == len(cl) - 1 else None))
    def issue_one():
        c, tag = pend.pop(0)
        if OPT.get("nodma") and em.vm_n > 60: vid = 0
        else: vid = c()
        if tag: (w_last if tag[0] == "w" else x_last)[tag[1]] = vid
    nx = 0; nw = 0
    ratio = KSX // groups[0]["KSW"]
    while nx < PX or nw < PW:
        if nx < PX and nx * ratio <= nw: queue_x(nx); nx += 1
        elif nw < PW: queue_w(nw); nw += 1
        else: queue_x(nx); nx += 1
    while pend: issue_one()
    if cfg.get("after_prologue"): cfg["after_prologue"](em)
    bg = BG()
    em.in_engine = True
    rd = {}; xrd = {}
    cur_group = -1
    def need_of(k):
        sn, gi, i, sp, t = mf[k]
        return max(rd[k], xrd.get((gi, groups[gi]["KSW"] * i + sp), -1))
    gbudget = OPT["budget"] + 1; frac = 0.0
    for idx in range(-D, N):
        if idx >= 0:
            sn, gi, i, sp, t = mf[idx]
            g = groups[gi]
            if gi != cur_group:
                cur_group = gi
                if not g.get("nodrain"): bg.drain(em); bg.cost_left = 0
                if g.get("bg") and not (OPT.get("nobg") and gi > 0):
                    dry = Em(); dry.last_p = 0
                    dry.vm_n = dry.vm_done = em.vm_n + 1000
                    bg.cost_left += sum(c for c in g["bg"](dry) if c != "BAR")
                    bg.add(g["bg"](em))
                span = [gi]
                while span[-1] + 1 < len(groups) and groups[span[-1] + 1].get("nodrain"): span.append(span[-1] + 1)
                nm = sum(1 for m_ in mf if m_[1] in span)
                fut = sum(groups[k].get("bg_est", 0) for k in span[1:])
                gbudget = max(OPT["budget"] + 1, (bg.cost_left + fut) / (nm * 0.93) + 1.4)
                frac = 0.0
            k16 = g["KSW"] * i + sp
            em.wait(lds=need_of(idx))
            b = wfr[idx % NB]
            acc = g["acc"][t]
            an = int(acc[1:]); accr = f"{acc[0]}[{an}:{an+15}]"
            c = "0" if k16 == 0 else accr
            em.e(f"v_mfma_f32_32x32x16_bf16 {accr}, v[{b}:{b+3}], {cfg['xreg'](gi, k16)}, {c}")
        budget = gbudget + frac
        j = idx + D
        if j < N:
            sn, gi, i, sp, t = mf[j]
            g = groups[gi]
            if sp == 0 and t == 0:
                k16 = g["KSW"] * i
                isx = g["loadx"] and k16 % KSX == 0
                while pend: issue_one()
                need = w_last[sn]
                if isx: need = max(need, x_last[xidx[(gi, k16 // KSX)]])
                if not OPT.get("novm"): em.wait(vm=need)
                if not OPT.get("nobar"): em.e("s_barrier")
                bg.barrier_passed()
                if OPT.get("fine"):
                    if 10 <= sn <= 22: stamp(em, sn - 9)
                elif cfg.get("stamp_at") and sn in cfg["stamp_at"]: stamp(em, cfg["stamp_at"][sn])
                queue_w(nw); nw += 1
                if isx:
                    queue_x(nx); nx += 1
                    xs = xidx[(gi, k16 // KSX)] % xslots
                    for q in range(KSX):
                        xrd[(gi, k16 + q)] = em.lds(cfg["xread"](gi, k16 + q, q, xs))
                    budget -= 4
                if cfg.get("on_stage"): budget -= cfg["on_stage"](em, sn)
                budget -= 2
            b = wfr[j % NB]
            for hf in range(2):
                vr, off = g["tr"](t, sn % wslots, sp, hf)
                rd[j] = em.lds(f"ds_read_b64_tr_b16 v[{b+2*hf}:{b+2*hf+1}], v{vr} offset:{off}")
        if 0 <= idx + 1 < N:
            k = min(idx + 2, N - 1) if (idx % 2 == 1) else idx + 1
            if em.lds_done <= need_of(idx + 1):
                if em.wait(lds=need_of(k)): budget -= 1
        if pend:
            issue_one(); budget -= 3
        if idx >= 0:
            left = bg.step(em, budget)
            frac = left if (left < 0 or (0 < left < 1)) else 0.0
    bg.drain(em)
    em.in_engine = False

def setup_common(em, XB):
    em.e(f"""
    v_and_b32 v1, 63, v0
    v_lshrrev_b32 v{VT}, 3, v1
    v_and_b32 v{VT+1}, 7, v1
    v_lshrrev_b32 v{VT+2}, 4, v1
    v_xor_b32 v{VT+2}, v{VT+1}, v{VT+2}
    v_lshlrev_b32 v{VT+2}, 4, v{VT+2}
    s_lshl_b32 s{S_T0}, s{S_M}, 7
    s_lshl_b32 s{S_T0+1}, s{S_WV}, 5
    s_add_u32 s{S_T0}, s{S_T0}, s{S_T0+1}
    v_add_u32 v{VT+3}, s{S_T0}, v{VT}
    s_movk_i32 s{S_T0+2}, 1280
    v_mul_lo_u32 v{VT+3}, v{VT+3}, s{S_T0+2}
    v_add_u32 v{V_XD}, v{VT+3}, v{VT+2}
    v_xor_b32 v{VT+2}, 64, v{VT+2}
    v_add_u32 v{V_XD+1}, v{VT+3}, v{VT+2}
    v_add_u32 v{V_XD+1}, {8*1280}, v{V_XD+1}
    s_lshl_b32 s{S_MW}, s{S_WV}, 10
    s_lshl_b32 s{S_MW1}, s{S_WV}, 11
    s_lshl_b32 s{S_MX}, s{S_WV}, 12
    s_add_u32 s{S_MX}, s{S_MX}, {XB}
    v_and_b32 v{VT}, 31, v1
    v_lshrrev_b32 v{VT+1}, 5, v1
    v_bfe_u32 v{VT+2}, v1, 1, 3
    v_xor_b32 v{VT+2}, v{VT+2}, v{VT+1}
    v_lshlrev_b32 v{VT+3}, 7, v{VT}
    v_add_u32 v{VT+3}, s{S_MX}, v{VT+3}
    """)
    for sp in range(4):
        em.e(f"v_xor_b32 v{VT+4}, {2*sp}, v{VT+2}\nv_lshl_add_u32 v{V_XR+sp}, v{VT+4}, 4, v{VT+3}")

def x_dma_fn(em, XSL):
    def x_dma(em, gi, i, slot, tok_off=0):
        cl = []
        for n in range(4):
            def c(n=n):
                em.e(f"s_add_u32 m0, s{S_MX}, {slot*XSL + n*1024}")
                em.e(f"s_mov_b32 s{S_TMP}, {i*128 + (n>>1)*16*1280 + tok_off*1280}")
                return em.vm(f"buffer_load_dwordx4 v{V_XD+(n&1)}, s[{S_X}:{S_X+3}], s{S_TMP} offen lds")
            cl.append(c)
        return cl
    return x_dma

def setup_F(em):
    a, b, c, d, e = VT, VT + 1, VT + 2, VT + 3, VT + 4
    em.e(f"""
    v_lshrrev_b32 v{a}, 3, v1
    v_and_b32 v{b}, 7, v1
    v_bfe_u32 v{c}, v1, 4, 1
    v_lshlrev_b32 v{c}, 1, v{c}
    v_xor_b32 v{c}, v{c}, v{b}
    v_lshlrev_b32 v{c}, 4, v{c}
    s_lshl_b32 s{S_T0}, s{S_WV}, 4
    v_add_u32 v{d}, s{S_T0}, v{a}
    s_movk_i32 s{S_T0+2}, 3456
    v_mul_lo_u32 v{d}, v{d}, s{S_T0+2}
    s_lshl_b32 s{S_T0+1}, s{S_FG}, 7
    v_add_u32 v{d}, s{S_T0+1}, v{d}
    v_add_u32 v{V_FD}, v{d}, v{c}
    v_xor_b32 v{c}, 64, v{c}
    v_add_u32 v{V_FD+1}, v{d}, v{c}
    v_bfe_u32 v{a}, v1, 4, 1
    v_lshrrev_b32 v{b}, 5, v1
    v_bfe_u32 v{c}, v1, 2, 2
    v_and_b32 v{d}, 3, v1
    v_lshlrev_b32 v{e}, 13, v{a}
    v_lshl_add_u32 v{e}, v{b}, 10, v{e}
    v_lshl_add_u32 v{e}, v{c}, 7, v{e}
    v_lshl_add_u32 v{e}, v{d}, 3, v{e}
    v_lshrrev_b32 v{c}, 1, v{c}
    v_lshl_or_b32 v{c}, v{a}, 1, v{c}
    """)
    for t in range(4):
        em.e(f"v_xor_b32 v{d}, {t}, v{c}\nv_lshl_add_u32 v{V_FT+t}, v{d}, 5, v{e}\nv_add_u32 v{V_FT+4+t}, 0x10000, v{V_FT+t}")
    em.e(f"""
    s_lshl_b32 s{S_T0}, s{S_WV}, 1
    v_add_u32 v{a}, s{S_T0}, v{a}
    s_mov_b32 s{S_T0+1}, {54*1024}
    v_mul_lo_u32 v{a}, v{a}, s{S_T0+1}
    v_and_b32 v{c}, 15, v1
    v_lshl_add_u32 v{c}, v{b}, 4, v{c}
    v_lshl_add_u32 v{V_FS}, v{c}, 4, v{a}
    s_mul_i32 s{S_HB}, s{S_M}, {8*54*1024}
    s_lshl_b32 s{S_T0}, s{S_FG}, 11
    s_add_u32 s{S_HB}, s{S_HB}, s{S_T0}
    s_add_u32 s{S_HB}, s{S_HB}, {HF_OFF}
    v_mov_b32 v{V_GC0}, {f32bits(GC0)}
    """)

def f_group(em, fg, acc, WSL, loadx, bg):
    def w_dma(em, i, slot):
        cl = []
        for mat in range(2):
            for bb in range(2):
                def c(mat=mat, bb=bb):
                    em.e(f"s_add_u32 m0, s{S_MW1}, {slot*WSL + mat*8192 + bb*1024}")
                    em.e(f"s_mov_b32 s{S_TMP}, {(i*64 + bb*8)*3456 + fg*128}")
                    return em.vm(f"buffer_load_dwordx4 v{V_FD+mat}, s[{S_G+4*mat}:{S_G+4*mat+3}], s{S_TMP} offen lds")
                cl.append(c)
        return cl
    def tr(t, slot, sp, hf):
        off = slot * WSL + sp * 2048 + hf * 512
        if off >= 65536: return (V_FT + 4 + t, off - 65536)
        return (V_FT + t, off)
    return dict(T=4, KSW=4, acc=acc, loadx=loadx, bg=bg, w_dma=w_dma, tr=tr)


def setup_F2(em):
    em.e(f"""
    s_sub_u32 s{S_D2}, s{S_FG2}, s{S_FG}
    s_lshl_b32 s{S_T0}, s{S_D2}, 11
    s_add_u32 s{S_HB2}, s{S_HB}, s{S_T0}
    s_lshl_b32 s{S_T0}, s{S_TOFF}, 9
    s_add_u32 s{S_HB2}, s{S_HB2}, s{S_T0}
    s_lshl_b32 s{S_D2}, s{S_D2}, 7
    s_cmp_eq_u32 s{S_TOFF}, 0
    s_cselect_b64 vcc, -1, 0
    s_nop 1
    v_cndmask_b32 v{V_F2T}, v{V_FT+2}, v{V_FT}, vcc
    v_cndmask_b32 v{V_F2T+1}, v{V_FT+3}, v{V_FT+1}, vcc
    v_cndmask_b32 v{V_F2T+2}, v{V_FT+6}, v{V_FT+4}, vcc
    v_cndmask_b32 v{V_F2T+3}, v{V_FT+7}, v{V_FT+5}, vcc
    """)

def f2_group(em, acc, WSL, bg, **kw):
    def w_dma(em, i, slot):
        cl = []
        for mat in range(2):
            for bb in range(2):
                def c(mat=mat, bb=bb):
                    em.e(f"s_add_u32 m0, s{S_MW1}, {slot*WSL + mat*8192 + bb*1024}")
                    em.e(f"s_add_u32 s{S_TMP}, s{S_D2}, {(i*64 + bb*8)*3456}")
                    return em.vm(f"buffer_load_dwordx4 v{V_FD+mat}, s[{S_G+4*mat}:{S_G+4*mat+3}], s{S_TMP} offen lds")
                cl.append(c)
        return cl
    def tr(t, slot, sp, hf):
        off = slot * WSL + sp * 2048 + hf * 512
        if off >= 65536: return (V_F2T + 2 + t, off - 65536)
        return (V_F2T + t, off)
    d = dict(T=2, KSW=4, acc=acc, loadx=False, bg=bg, w_dma=w_dma, tr=tr); d.update(kw)
    return d

def f_epi_acc(em, abase, ntiles, st_base_sgpr, st_off, cp, tmp):
    for t in range(ntiles):
        c = cp + 16 * (t & 1)
        for i in range(16):
            em.e(f"v_accvgpr_read_b32 v{c+i}, a{abase+16*t+i}"); yield 1
        yield from f_epilogue_tile(em, c, st_off + t * 512, tmp + 16 * (t & 1), st_base_sgpr)

def f_epilogue_tile(em, acc, st_off, tmp, sb=S_HB):
    t = tmp; o = t + 12
    for p in range(4):
        g0, g1, u0, u1, a0, a1 = t, t + 1, t + 2, t + 3, t + 4, t + 5
        if OPT.get("pk"):
            G, U, A = f"v[{g0}:{g1}]", f"v[{u0}:{u1}]", f"v[{a0}:{a1}]"
            seq = [(f"v_cvt_pk_bf16_f32 v{g1}, v{acc+2*p}, v{acc+2*p+1}", 1),
                   (f"v_cvt_pk_bf16_f32 v{u1}, v{acc+8+2*p}, v{acc+8+2*p+1}", 1),
                   (f"v_lshlrev_b32 v{g0}, 16, v{g1}", 1), (f"v_and_b32 v{g1}, 0xffff0000, v{g1}", 1),
                   (f"v_lshlrev_b32 v{u0}, 16, v{u1}", 1),
                   (f"v_pk_mul_f32 {A}, {G}, {G}", 1),
                   (f"v_and_b32 v{u1}, 0xffff0000, v{u1}", 1),
                   (f"v_pk_fma_f32 {A}, {A}, v[{V_PKC}:{V_PKC+1}], v[{V_PKC+2}:{V_PKC+3}]", 1),
                   (f"v_pk_mul_f32 {A}, {A}, {G}", 1),
                   (f"v_exp_f32 v{a0}, v{a0}", 2), (f"v_exp_f32 v{a1}, v{a1}", 2),
                   (f"v_pk_add_f32 {A}, {A}, 1.0 op_sel_hi:[1,0]", 1),
                   (f"v_rcp_f32 v{a0}, v{a0}", 2), (f"v_rcp_f32 v{a1}, v{a1}", 2),
                   (f"v_pk_mul_f32 {A}, {A}, {G}", 1),
                   (f"v_cvt_pk_bf16_f32 v{a1}, v{a0}, v{a1}", 1),
                   (f"v_lshlrev_b32 v{a0}, 16, v{a1}", 1), (f"v_and_b32 v{a1}, 0xffff0000, v{a1}", 1),
                   (f"v_pk_mul_f32 {A}, {A}, {U}", 1),
                   (f"v_cvt_pk_bf16_f32 v{o+p}, v{a0}, v{a1}", 1)]
        elif OPT["exact_round"]:
            seq = [(f"v_cvt_pk_bf16_f32 v{g1}, v{acc+2*p}, v{acc+2*p+1}", 1),
                   (f"v_cvt_pk_bf16_f32 v{u1}, v{acc+8+2*p}, v{acc+8+2*p+1}", 1),
                   (f"v_lshlrev_b32 v{g0}, 16, v{g1}", 1), (f"v_and_b32 v{g1}, 0xffff0000, v{g1}", 1),
                   (f"v_mul_f32 v{a0}, v{g0}, v{g0}", 1), (f"v_mul_f32 v{a1}, v{g1}, v{g1}", 1),
                   (f"v_fmamk_f32 v{a0}, v{a0}, {f32bits(GC1)}, v{V_GC0}", 1), (f"v_fmamk_f32 v{a1}, v{a1}, {f32bits(GC1)}, v{V_GC0}", 1),
                   (f"v_mul_f32 v{a0}, v{a0}, v{g0}", 1), (f"v_mul_f32 v{a1}, v{a1}, v{g1}", 1),
                   (f"v_exp_f32 v{a0}, v{a0}", 2), (f"v_exp_f32 v{a1}, v{a1}", 2),
                   (f"v_lshlrev_b32 v{u0}, 16, v{u1}", 1),
                   (f"v_add_f32 v{a0}, 1.0, v{a0}", 1), (f"v_add_f32 v{a1}, 1.0, v{a1}", 1),
                   (f"v_rcp_f32 v{a0}, v{a0}", 2), (f"v_rcp_f32 v{a1}, v{a1}", 2),
                   (f"v_and_b32 v{u1}, 0xffff0000, v{u1}", 1),
                   (f"v_mul_f32 v{a0}, v{a0}, v{g0}", 1), (f"v_mul_f32 v{a1}, v{a1}, v{g1}", 1),
                   (f"v_cvt_pk_bf16_f32 v{a1}, v{a0}, v{a1}", 1),
                   (f"v_lshlrev_b32 v{a0}, 16, v{a1}", 1), (f"v_and_b32 v{a1}, 0xffff0000, v{a1}", 1),
                   (f"v_mul_f32 v{a0}, v{a0}, v{u0}", 1), (f"v_mul_f32 v{a1}, v{a1}, v{u1}", 1),
                   (f"v_cvt_pk_bf16_f32 v{o+p}, v{a0}, v{a1}", 1)]
        else:
            G0, G1, U0, U1 = acc + 2 * p, acc + 2 * p + 1, acc + 8 + 2 * p, acc + 9 + 2 * p
            seq = [(f"v_mul_f32 v{a0}, v{G0}, v{G0}", 1), (f"v_mul_f32 v{a1}, v{G1}, v{G1}", 1),
                   (f"v_fmamk_f32 v{a0}, v{a0}, {f32bits(GC1)}, v{V_GC0}", 1), (f"v_fmamk_f32 v{a1}, v{a1}, {f32bits(GC1)}, v{V_GC0}", 1),
                   (f"v_mul_f32 v{a0}, v{a0}, v{G0}", 1), (f"v_mul_f32 v{a1}, v{a1}, v{G1}", 1),
                   (f"v_exp_f32 v{a0}, v{a0}", 2), (f"v_exp_f32 v{a1}, v{a1}", 2),
                   (f"v_mul_f32 v{g0}, v{G0}, v{U0}", 1), (f"v_mul_f32 v{g1}, v{G1}, v{U1}", 1),
                   (f"v_add_f32 v{a0}, 1.0, v{a0}", 1), (f"v_add_f32 v{a1}, 1.0, v{a1}", 1),
                   (f"v_rcp_f32 v{a0}, v{a0}", 2), (f"v_rcp_f32 v{a1}, v{a1}", 2),
                   (f"s_nop 0", 1),
                   (f"v_mul_f32 v{a0}, v{a0}, v{g0}", 1), (f"v_mul_f32 v{a1}, v{a1}, v{g1}", 1),
                   (f"v_cvt_pk_bf16_f32 v{o+p}, v{a0}, v{a1}", 1)]
        for s, c in seq:
            em.e(s); yield c
    em.e(f"s_add_u32 s{S_TMP2}, s{sb}, {st_off}")
    em.vm(f"buffer_store_dwordx4 v[{o}:{o+3}], v{V_FS}, s[{S_WS}:{S_WS+3}], s{S_TMP2} offen"); yield 3

def f_epi(em, accbase, fg, tmp):
    for t in range(4):
        yield from f_epilogue_tile(em, accbase + 16 * t, fg * 2048 + t * 512, tmp + 16 * (t & 1))

def setup_QKV(em, kind, wbd_base, p_base, v_base=None):
    a, b, c, d, e = VT, VT + 1, VT + 2, VT + 3, VT + 4
    if kind == "Q":
        em.e(f"s_mul_i32 s{S_T0+3}, s{S_C}, 320")
    else:
        em.e(f"s_mul_i32 s{S_T0+3}, s{S_C}, 160\ns_add_u32 s{S_T0+3}, s{S_T0+3}, 1280")
    em.e(f"s_movk_i32 s{S_T0+2}, 3840")
    nj = 5
    for j in range(nj):
        em.e(f"""
        v_add_u32 v{a}, {256*j}, v0
        v_mul_u32_u24 v{b}, 3277, v{a}
        v_lshrrev_b32 v{b}, 16, v{b}
        v_mul_u32_u24 v{c}, 20, v{b}
        v_sub_u32 v{c}, v{a}, v{c}
        v_mul_lo_u32 v{b}, v{b}, s{S_T0+2}
        v_lshl_add_u32 v{b}, v{c}, 4, v{b}
        v_add_u32 v{V_WD+j}, s{S_T0+3}, v{b}
        """)
        if kind == "KV":
            em.e(f"""
            v_cmp_le_u32 vcc, 10, v{c}
            v_add_u32 v{b}, 1120, v{V_WD+j}
            s_nop 0
            v_cndmask_b32 v{V_WD+j}, v{V_WD+j}, v{b}, vcc
            """)
    em.e(f"""
    v_and_b32 v{a}, 31, v1
    v_lshrrev_b32 v{b}, 5, v1
    s_mul_i32 s{S_T0}, s{S_WV}, {32*PITCH}
    s_add_u32 s{S_T0}, s{S_T0}, {p_base}
    v_mul_u32_u24 v{d}, {PITCH}, v{a}
    v_add_u32 v{d}, s{S_T0}, v{d}
    v_lshl_add_u32 v{V_PW}, v{b}, 3, v{d}
    """)
    if v_base is not None:
        em.e(f"""
        s_mul_i32 s{S_T0+1}, s{S_WV}, {32*200}
        s_add_u32 s{S_T0+1}, s{S_T0+1}, {v_base}
        v_mul_u32_u24 v{d}, 200, v{a}
        v_add_u32 v{d}, s{S_T0+1}, v{d}
        v_lshl_add_u32 v{V_VWA}, v{b}, 3, v{d}
        v_lshl_add_u32 v{V_VWB}, v{b}, 4, v{d}
        """)
    em.e(f"""
    v_and_b32 v{a}, 15, v1
    v_lshrrev_b32 v{b}, 4, v1
    v_mul_u32_u24 v{c}, {PITCH}, v{a}
    v_add_u32 v{c}, s{S_T0}, v{c}
    v_mul_u32_u24 v{d}, 40, v{b}
    v_add_u32 v{V_PR}, v{c}, v{d}
    """)
    if kind == "Q":
        em.e(f"v_mul_u32_u24 v{d}, 1280, v{b}\nv_lshl_add_u32 v{V_OUT}, v{a}, 4, v{d}")
    else:
        em.e(f"v_mul_u32_u24 v{d}, 80, v{b}\nv_add_u32 v{V_OUT}, v{c}, v{d}")
    em.e(f"""
    v_bfe_u32 v{a}, v1, 4, 1
    v_lshrrev_b32 v{b}, 5, v1
    v_bfe_u32 v{c}, v1, 2, 2
    v_and_b32 v{d}, 3, v1
    v_lshlrev_b32 v{a}, 5, v{a}
    v_lshl_add_u32 v{a}, v{d}, 3, v{a}
    v_lshl_add_u32 v{e}, v{b}, 3, v{c}
    v_mul_u32_u24 v{e}, 320, v{e}
    v_add_u32 v{V_TR}, v{e}, v{a}
    v_add_u32 v{V_TR+1}, 0x10000, v{V_TR}
    v_lshl_add_u32 v{e}, v{b}, 2, v{c}
    v_lshl_add_u32 v{e}, v{e}, 6, v{a}
    v_add_u32 v{V_WBD}, {wbd_base}, v{e}
    """)
    if v_base is not None:
        em.e(f"""
        v_lshrrev_b32 v{a}, 4, v1
        v_lshl_add_u32 v{a}, v{a}, 3, v{c}
        v_mul_u32_u24 v{b}, {PITCH}, v{a}
        v_lshl_add_u32 v{b}, v{d}, 3, v{b}
        s_mul_i32 s{S_T0}, s{S_WV}, 80
        s_add_u32 s{S_T0}, s{S_T0}, {p_base}
        v_add_u32 v{V_PHT}, s{S_T0}, v{b}
        v_mul_u32_u24 v{b}, 200, v{a}
        v_lshl_add_u32 v{b}, v{d}, 3, v{b}
        s_mul_i32 s{S_T0+1}, s{S_WV}, 48
        s_add_u32 s{S_T0+1}, s{S_T0+1}, {v_base}
        v_add_u32 v{V_VT}, s{S_T0+1}, v{b}
        """)
    em.e(f"s_mov_b32 s{S_L2E}, {f32bits(LOG2E)}")

def wbd_loads(em, nblk, T, DST, DST2=None):
    n_it = (nblk * 128 + 255) // 256
    em.e(f"s_mul_i32 s{S_TMP2}, s{S_H0}, 800")
    a = T
    for n in range(n_it):
        em.e(f"""
        v_add_u32 v{a}, {256*n}, v0
        v_lshrrev_b32 v{a+1}, 7, v{a}
        v_add_u32 v{a+2}, 1, v{a+1}
        v_lshrrev_b32 v{a+2}, 2, v{a+2}
        v_lshlrev_b32 v{a+3}, 1, v{a+2}
        v_sub_u32 v{a+1}, v{a+1}, v{a+3}
        v_bfe_u32 v{a+3}, v{a}, 3, 4
        v_lshl_add_u32 v{a+1}, v{a+1}, 4, v{a+3}
        v_and_b32 v{a+3}, 7, v{a}
        v_lshlrev_b32 v{a+3}, 2, v{a+3}
        v_lshl_add_u32 v{a+2}, v{a+2}, 5, v{a+3}
        v_mul_u32_u24 v{a+3}, 3277, v{a+1}
        v_lshrrev_b32 v{a+3}, 16, v{a+3}
        v_mul_u32_u24 v{a+4}, 3277, v{a+2}
        v_lshrrev_b32 v{a+4}, 16, v{a+4}
        v_cmp_eq_u32 vcc, v{a+3}, v{a+4}
        v_mul_u32_u24 v{a+1}, 40, v{a+1}
        v_lshl_add_u32 v{a+1}, v{a+2}, 1, v{a+1}
        v_mul_u32_u24 v{a+4}, 40, v{a+4}
        v_sub_u32 v{a+1}, v{a+1}, v{a+4}
        v_mov_b32 v{a+4}, 0x80000000
        v_cndmask_b32 v{a+1}, v{a+4}, v{a+1}, vcc
        """)
        last = em.vm(f"buffer_load_dwordx2 v[{DST+2*n}:{DST+2*n+1}], v{a+1}, s[{S_PHI}:{S_PHI+3}], s{S_TMP2} offen")
        if DST2 is not None:
            last = em.vm(f"buffer_load_dwordx2 a[{DST2+2*n}:{DST2+2*n+1}], v{a+1}, s[{S_PHI}:{S_PHI+3}], s{S_TMP2} offen offset:3200")
    return last, n_it

def wbd_writes(em, n_it, vid, wbd_base, DST, T, rf="v"):
    em.e(f"v_lshlrev_b32 v{T}, 3, v0"); yield 1
    em.e(f"v_add_u32 v{T}, {wbd_base}, v{T}"); yield 1
    em.wait(vm=vid)
    for n in range(n_it):
        last = em.lds(f"ds_write_b64 v{T}, {rf}[{DST+2*n}:{DST+2*n+1}] offset:{2048*n}"); yield 2
    yield 8
    em.wait(lds=last); yield 1

def chain(em, ntile_out, nsteps, nquads_last, vw=V_WBD):
    def qf(s):
        r = ACC0 + 16 * (s >> 1) + 8 * (s & 1); return f"v[{r}:{r+3}]"
    jobs = []
    for o in range(ntile_out):
        lo = max(0, 2 * o - 1); hi = min(nsteps - 1, 2 * o + 2)
        for s in range(lo, hi + 1): jobs.append((o, s, s == lo, s == hi))
    rid = {}
    def issue(n):
        o, s, _, _ = jobs[n]
        b = V_AF + 4 * (n % 3)
        blk = s + 2 * o
        em.lds(f"ds_read_b64_tr_b16 v[{b}:{b+1}], v{vw} offset:{blk*1024}")
        rid[n] = em.lds(f"ds_read_b64_tr_b16 v[{b+2}:{b+3}], v{vw} offset:{blk*1024+512}")
    def flush(o):
        a = V_CH + 16 * (o % 2)
        nq = nquads_last if o == ntile_out - 1 else 4
        for q in range(nq):
            em.e(f"v_cvt_pk_bf16_f32 v{a+4*q}, v{a+4*q}, v{a+4*q+1}"); yield 1
            em.e(f"v_cvt_pk_bf16_f32 v{a+4*q+1}, v{a+4*q+2}, v{a+4*q+3}"); yield 1
        for q in range(nq):
            em.last_p = em.lds(f"ds_write_b64 v{V_PW}, v[{a+4*q}:{a+4*q+1}] offset:{(32*o + 8*q)*2}"); yield 2
    issue(0); issue(1); yield 4
    pending_flush = None
    for n, (o, s, first, last) in enumerate(jobs):
        if n + 2 < len(jobs): issue(n + 2); yield 2
        em.wait(lds=rid[n])
        a = V_CH + 16 * (o % 2); b = V_AF + 4 * (n % 3)
        c = "0" if first else f"v[{a}:{a+15}]"
        em.e(f"v_mfma_f32_32x32x16_bf16 v[{a}:{a+15}], v[{b}:{b+3}], {qf(s)}, {c}"); yield 8
        if pending_flush is not None and not first:
            yield from flush(pending_flush); pending_flush = None
        if last:
            if pending_flush is not None:
                yield from flush(pending_flush)
            pending_flush = o
    yield 8
    yield from flush(pending_flush)

def softmax_rounds(em, rounds, out_fn):
    R = V_SM
    PK = R; P = R + 10; E = R + 30; T = R + 50; O = R + 56
    def issue(off):
        return [em.lds(f"ds_read_b64 v[{PK+2*i}:{PK+2*i+1}], v{V_PR} offset:{off+8*i}") for i in range(5)]
    yield 4
    em.wait(lds=em.last_p)
    ids = issue(rounds[0]); yield 5
    yield 8
    for ri, off in enumerate(rounds):
        em.wait(lds=ids[-1])
        for i in range(10):
            em.e(f"v_lshlrev_b32 v{P+2*i}, 16, v{PK+i}"); yield 1
            em.e(f"v_and_b32 v{P+2*i+1}, 0xffff0000, v{PK+i}"); yield 1
        if ri + 1 < len(rounds):
            ids = issue(rounds[ri + 1]); yield 5
        mx, mn, mx2, mn2 = T, T + 1, T + 2, T + 3
        em.e(f"v_max3_f32 v{mx}, v{P}, v{P+1}, v{P+2}"); yield 1
        em.e(f"v_min3_f32 v{mn}, v{P}, v{P+1}, v{P+2}"); yield 1
        em.e(f"v_max3_f32 v{mx2}, v{P+3}, v{P+4}, v{P+5}"); yield 1
        em.e(f"v_min3_f32 v{mn2}, v{P+3}, v{P+4}, v{P+5}"); yield 1
        for i in range(6, 18, 4):
            em.e(f"v_max3_f32 v{mx}, v{mx}, v{P+i}, v{P+i+1}"); yield 1
            em.e(f"v_min3_f32 v{mn}, v{mn}, v{P+i}, v{P+i+1}"); yield 1
            em.e(f"v_max3_f32 v{mx2}, v{mx2}, v{P+i+2}, v{P+i+3}"); yield 1
            em.e(f"v_min3_f32 v{mn2}, v{mn2}, v{P+i+2}, v{P+i+3}"); yield 1
        em.e(f"v_max3_f32 v{mx}, v{mx}, v{P+18}, v{P+19}"); yield 1
        em.e(f"v_min3_f32 v{mn}, v{mn}, v{P+18}, v{P+19}"); yield 1
        em.e(f"v_max_f32 v{mx}, v{mx}, v{mx2}"); yield 1
        em.e(f"v_min_f32 v{mn}, v{mn}, v{mn2}"); yield 1
        em.e(f"v_mul_f32 v{mx}, s{S_L2E}, v{mx}"); yield 1
        em.e(f"v_mul_f32 v{mn}, s{S_L2E}, v{mn}"); yield 1
        for i in range(0, 20, 2):
            em.e(f"v_fma_f32 v{E+i}, -v{P+i}, s{S_L2E}, v{mn}"); yield 1
            em.e(f"v_fma_f32 v{P+i}, v{P+i}, s{S_L2E}, -v{mx}"); yield 1
            em.e(f"v_fma_f32 v{E+i+1}, -v{P+i+1}, s{S_L2E}, v{mn}"); yield 1
            em.e(f"v_fma_f32 v{P+i+1}, v{P+i+1}, s{S_L2E}, -v{mx}"); yield 1
            em.e(f"v_exp_f32 v{E+i}, v{E+i}"); yield 2
            em.e(f"v_exp_f32 v{P+i}, v{P+i}"); yield 2
            em.e(f"v_exp_f32 v{E+i+1}, v{E+i+1}"); yield 2
            em.e(f"v_exp_f32 v{P+i+1}, v{P+i+1}"); yield 2
        sp, sn_, sp2, sn2 = T, T + 1, T + 2, T + 3
        em.e(f"v_add_f32 v{sp}, v{P}, v{P+1}"); yield 1
        em.e(f"v_add_f32 v{sn_}, v{E}, v{E+1}"); yield 1
        em.e(f"v_add_f32 v{sp2}, v{P+2}, v{P+3}"); yield 1
        em.e(f"v_add_f32 v{sn2}, v{E+2}, v{E+3}"); yield 1
        for i in range(4, 20, 2):
            em.e(f"v_add_f32 v{sp}, v{sp}, v{P+i}"); yield 1
            em.e(f"v_add_f32 v{sn_}, v{sn_}, v{E+i}"); yield 1
            em.e(f"v_add_f32 v{sp2}, v{sp2}, v{P+i+1}"); yield 1
            em.e(f"v_add_f32 v{sn2}, v{sn2}, v{E+i+1}"); yield 1
        em.e(f"v_add_f32 v{sp}, v{sp}, v{sp2}"); yield 1
        em.e(f"v_add_f32 v{sn_}, v{sn_}, v{sn2}"); yield 1
        em.e(f"v_rcp_f32 v{sp}, v{sp}"); yield 2
        em.e(f"v_rcp_f32 v{sn_}, v{sn_}"); yield 2
        for i in range(10):
            em.e(f"v_mul_f32 v{P+2*i}, v{P+2*i}, v{sp}"); yield 1
            em.e(f"v_mul_f32 v{P+2*i+1}, v{P+2*i+1}, v{sp}"); yield 1
            em.e(f"v_mul_f32 v{E+2*i}, v{E+2*i}, v{sn_}"); yield 1
            em.e(f"v_mul_f32 v{E+2*i+1}, v{E+2*i+1}, v{sn_}"); yield 1
            em.e(f"v_cvt_pk_bf16_f32 v{O+i}, v{P+2*i}, v{P+2*i+1}"); yield 1
            em.e(f"v_cvt_pk_bf16_f32 v{O+10+i}, v{E+2*i}, v{E+2*i+1}"); yield 1
        yield from out_fn(em, ri, O)

def conv_qf(em, nsteps):
    for s in range(nsteps):
        r = ACC0 + 16 * (s >> 1) + 8 * (s & 1)
        for i in range(4):
            em.e(f"v_cvt_pk_bf16_f32 v{r+i}, v{r+2*i}, v{r+2*i+1}"); yield 1

def copy_acc(em, abase, n, dst=ACC0):
    for i in range(n):
        em.e(f"v_accvgpr_read_b32 v{dst+i}, a{abase+i}"); yield 1


def touch(em, srd_s, nl, lg, pitch, step, maxoff, s_base, tmp=VT, force=False):
    if OPT["touch"] != 1 and not force: return 0
    a, b, c = tmp, tmp + 1, tmp + 2
    n = 0
    for r in range((nl + 255) // 256):
        em.e(f"""
        v_add_u32 v{a}, {256*r}, v0
        v_lshrrev_b32 v{b}, {lg}, v{a}
        v_mul_u32_u24 v{b}, {pitch}, v{b}
        """)
        if lg:
            em.e(f"""
            v_and_b32 v{c}, {(1<<lg)-1}, v{a}
            v_mul_u32_u24 v{c}, {step}, v{c}
            v_min_u32 v{c}, {maxoff}, v{c}
            v_add_u32 v{b}, v{b}, v{c}
            """)
        if 256 * (r + 1) > nl:
            em.e(f"""
            v_cmp_gt_u32 vcc, {nl}, v{a}
            v_mov_b32 v{c}, 0x80000000
            s_nop 0
            v_cndmask_b32 v{b}, v{c}, v{b}, vcc
            """)
        em.vm(f"buffer_load_dword v255, v{b}, s[{srd_s}:{srd_s+3}], s{s_base} offen")
        n += 12
    return n


S_PF = 84
def gpf_setup(em):
    if OPT["touch"] != 3: return
    a, b = VT, VT + 1
    em.e(f"""
    s_cmp_eq_u32 s{S_WV}, 0
    s_cselect_b32 s{S_PF}, s{S_G}, s{S_U}
    s_cselect_b32 s{S_PF+1}, s{S_G+1}, s{S_U+1}
    s_mov_b32 s{S_PF+2}, {640*3456}
    s_mov_b32 s89, {64*3456}
    s_mul_i32 s88, s2, 864
    s_cmp_eq_u32 s{S_WV}, 2
    s_cselect_b32 s{S_PF}, s{S_QKV}, s{S_PF}
    s_cselect_b32 s{S_PF+1}, s{S_QKV+1}, s{S_PF+1}
    s_cselect_b32 s{S_PF+2}, {640*3840}, s{S_PF+2}
    s_cselect_b32 s89, {64*3840}, s89
    s_mul_i32 s{S_T0}, s2, 960
    s_cselect_b32 s88, s{S_T0}, s88
    s_cmp_eq_u32 s{S_WV}, 3
    s_cselect_b32 s{S_PF}, s{S_X}, s{S_PF}
    s_cselect_b32 s{S_PF+1}, s{S_X+1}, s{S_PF+1}
    s_cselect_b32 s{S_PF+2}, {2048*1280}, s{S_PF+2}
    s_cselect_b32 s89, 128, s89
    s_mul_i32 s{S_T0}, s2, {8*1280}
    s_cselect_b32 s88, s{S_T0}, s88
    s_mov_b32 s{S_PF+3}, 0x00020000
    s_movk_i32 s{S_T0}, 128
    s_cselect_b32 s{S_T0}, 1280, s{S_T0}
    v_mul_lo_u32 v{a}, v1, s{S_T0}
    v_mov_b32 v{b}, 0x80000000
    v_cmp_gt_u32 vcc, 8, v1
    s_nop 1
    v_cndmask_b32 v254, v{b}, v{a}, vcc
    """)
def gpf_step(em, n=1):
    if OPT["touch"] != 3: return 0
    for _ in range(n):
        em.vm(f"buffer_load_dword v255, v254, s[{S_PF}:{S_PF+3}], s88 offen")
        em.e("s_add_u32 s88, s88, s89")
    return 3 * n

def touch_x(em, s_tile, share):
    if OPT["touch"] == 2:
        for srd_s, nbytes in ((S_X, 2048*1280), (S_G, 640*3456), (S_U, 640*3456), (S_QKV, 640*3840)):
            per = nbytes // 256
            em.e(f"s_mul_i32 s{S_T0}, s2, {per}")
            touch(em, srd_s, (per + 127) // 128, 0, 128, 0, 0, S_T0, force=True)
        return
    if OPT["touch"] == 3:
        gpf_setup(em); gpf_step(em, OPT["LA"]); return
    if OPT["touch"] != 1: return
    a, b, c = VT, VT + 1, VT + 2
    em.e(f"s_lshl_b32 s{S_T0}, s{s_tile}, 2")
    if isinstance(share, int): em.e(f"s_add_u32 s{S_T0}, s{S_T0}, {share}")
    else: em.e(f"s_add_u32 s{S_T0}, s{S_T0}, s{share[1:]}")
    em.e(f"s_mul_i32 s{S_T0}, s{S_T0}, {32*1280}")
    for r in range(2):
        em.e(f"""
        v_add_u32 v{a}, {256*r}, v0
        v_and_b32 v{b}, 31, v{a}
        v_mul_u32_u24 v{b}, 1280, v{b}
        v_lshrrev_b32 v{c}, 5, v{a}
        v_lshl_add_u32 v{b}, v{c}, 7, v{b}
        """)
        if r == 1:
            em.e(f"""
            v_cmp_gt_u32 vcc, 320, v{a}
            v_mov_b32 v{c}, 0x80000000
            s_nop 0
            v_cndmask_b32 v{b}, v{c}, v{b}, vcc
            """)
        em.vm(f"buffer_load_dword v255, v{b}, s[{S_X}:{S_X+3}], s{S_T0} offen")

def touch_F(em, g0, ng):
    if OPT["touch"] != 1: return 0
    em.e(f"""
    s_and_b32 s{S_T0}, s{S_M}, 7
    s_mul_i32 s{S_T0}, s{S_T0}, {80*3456}
    s_lshl_b32 s{S_T0+1}, s{S_FG}, 7
    s_add_u32 s{S_T0}, s{S_T0}, s{S_T0+1}
    s_add_u32 s{S_T0}, s{S_T0}, {g0*128}
    """)
    lg = 0 if ng == 1 else 1
    n = 5
    for mat in range(2):
        n += touch(em, S_G + 4 * mat, 80 << lg, lg, 3456, 128, 128 * (ng - 1), S_T0)
    return n

def frag_issue(em, scratch, R):
    a, b = VT, VT + 1
    em.e(f"""
    v_lshrrev_b32 v{a}, 1, v1
    v_mul_u32_u24 v{a}, 1280, v{a}
    v_and_b32 v{b}, 1, v1
    v_lshl_add_u32 v{R}, v{b}, 4, v{a}
    s_mul_i32 s{S_T0}, s2, 12
    s_mul_i32 s{S_T0+1}, s{S_WV}, 3
    s_add_u32 s{S_T0}, s{S_T0}, s{S_T0+1}
    s_mul_i32 s{S_T0+7}, s{S_WV}, 3072
    s_add_u32 s{S_T0+7}, s{S_T0+7}, {scratch}
    """)
    for i in range(3):
        ss, sj = 80 + 2 * i, 81 + 2 * i
        em.e(f"""
        s_add_u32 s{S_T0+1}, s{S_T0}, {i}
        s_min_u32 s{S_T0+1}, s{S_T0+1}, 2959
        s_mul_hi_u32 s{ss}, s{S_T0+1}, {(1<<32)//40+1}
        s_mul_i32 s{S_T0+2}, s{ss}, 40
        s_sub_u32 s{sj}, s{S_T0+1}, s{S_T0+2}
        s_cmp_lt_u32 s{ss}, 54
        s_cselect_b32 s{S_TA}, s52, s46
        s_cselect_b32 s{S_TA+1}, s53, s47
        s_mov_b32 s{S_TA+2}, {640*1280}
        s_cselect_b32 s{S_TA+2}, {1728*1280}, s{S_TA+2}
        s_mov_b32 s{S_TA+3}, 0x00020000
        s_cselect_b32 s{S_T0+2}, 0, 54
        s_sub_u32 s{S_T0+2}, s{ss}, s{S_T0+2}
        s_mul_i32 s{S_T0+2}, s{S_T0+2}, 40960
        s_lshl_b32 s{S_T0+3}, s{sj}, 5
        s_add_u32 s{S_T0+2}, s{S_T0+2}, s{S_T0+3}
        s_add_u32 m0, s{S_T0+7}, {i*1024}
        s_nop 0
        """)
        last = em.vm(f"buffer_load_dwordx4 v{R}, s[{S_TA}:{S_TA+3}], s{S_T0+2} offen lds")
    return last

def frag_finish(em, vid, scratch, R):
    a, b, c, d, e = VT, VT + 1, VT + 2, VT + 3, VT + 4
    em.e(f"""
    v_lshrrev_b32 v{a}, 4, v1
    v_bfe_u32 v{b}, v1, 2, 2
    v_and_b32 v{c}, 3, v1
    v_lshrrev_b32 v{d}, 1, v{a}
    v_lshlrev_b32 v{d}, 4, v{d}
    v_and_b32 v{e}, 1, v{a}
    v_lshl_add_u32 v{d}, v{e}, 2, v{d}
    v_add_u32 v{d}, v{d}, v{b}
    v_lshl_add_u32 v{e}, v{a}, 3, v{b}
    v_lshlrev_b32 v{c}, 3, v{c}
    s_mul_i32 s{S_T0+7}, s{S_WV}, 3072
    s_add_u32 s{S_T0+7}, s{S_T0+7}, {scratch}
    v_add_u32 v{c}, s{S_T0+7}, v{c}
    v_lshl_add_u32 v{d}, v{d}, 5, v{c}
    v_lshl_add_u32 v{e}, v{e}, 5, v{c}
    v_add_u32 v{a}, 256, v{d}
    v_add_u32 v{b}, 128, v{e}
    v_lshlrev_b32 v{R}, 4, v1
    """)
    em.wait(vm=vid)
    ids = []
    for i in range(3):
        ss = 80 + 2 * i
        r = R + 4 + 4 * i
        em.e(f"""
        s_cmp_lt_u32 s{ss}, 54
        s_cselect_b64 vcc, -1, 0
        s_nop 1
        v_cndmask_b32 v{R+1}, v{e}, v{d}, vcc
        v_cndmask_b32 v{R+2}, v{b}, v{a}, vcc
        """)
        em.lds(f"ds_read_b64_tr_b16 v[{r}:{r+1}], v{R+1} offset:{i*1024}")
        ids.append(em.lds(f"ds_read_b64_tr_b16 v[{r+2}:{r+3}], v{R+2} offset:{i*1024}"))
    for i in range(3):
        ss, sj = 80 + 2 * i, 81 + 2 * i
        r = R + 4 + 4 * i
        em.e(f"""
        s_mul_hi_u32 s{S_T0}, s{sj}, {(1<<32)//5+1}
        s_mul_i32 s{S_T0+1}, s{S_T0}, 5
        s_sub_u32 s{S_T0+1}, s{sj}, s{S_T0+1}
        s_mul_i32 s{S_T0}, s{S_T0}, 74
        s_add_u32 s{S_T0}, s{S_T0}, s{ss}
        s_mul_i32 s{S_T0}, s{S_T0}, 5120
        s_lshl_b32 s{S_T0+1}, s{S_T0+1}, 10
        s_add_u32 s{S_T0}, s{S_T0}, s{S_T0+1}
        s_add_u32 s{S_T0}, s{S_T0}, {WDF_OFF}
        """)
        em.wait(lds=ids[i])
        em.vm(f"buffer_store_dwordx4 v[{r}:{r+3}], v{R}, s[{S_WS}:{S_WS+3}], s{S_T0} offen")

def gate_issue(em, R):
    a, b, c, d, e = VT, VT + 1, VT + 2, VT + 3, VT + 4
    srd(em, S_TA, 54, 1280)
    em.e(f"""
    s_lshl_b32 s{S_T0}, s2, 3
    s_lshl_b32 s{S_T0+1}, s{S_WV}, 1
    s_add_u32 s{S_T0}, s{S_T0}, s{S_T0+1}
    v_lshrrev_b32 v{a}, 5, v1
    v_add_u32 v{R+24}, s{S_T0}, v{a}
    v_mul_u32_u24 v{a}, 1280, v{R+24}
    v_and_b32 v{b}, 31, v1
    v_lshlrev_b32 v{b}, 4, v{b}
    v_add_u32 v{a}, v{a}, v{b}
    v_mov_b32 v{c}, 0x80000000
    v_cmp_gt_u32 vcc, 256, v{b}
    s_nop 1
    v_cndmask_b32 v{d}, v{c}, v{a}, vcc
    v_cndmask_b32 v{e}, v{c}, v{b}, vcc
    """)
    for i in range(3):
        em.vm(f"buffer_load_dwordx4 v[{R+8*i}:{R+8*i+3}], v{a if i < 2 else d}, s[{S_X}:{S_X+3}], 0 offen offset:{i*512}")
        last = em.vm(f"buffer_load_dwordx4 v[{R+8*i+4}:{R+8*i+7}], v{b if i < 2 else e}, s[{S_TA}:{S_TA+3}], 0 offen offset:{i*512}")
    em.e(f"""
    s_mul_i32 s{S_T0}, s2, 10240
    s_add_u32 s{S_T0}, s{S_T0}, {OF_OFF}
    s_add_u32 s{S_T0+1}, s{S_T0}, 4096
    s_add_u32 s{S_T0+2}, s{S_T0}, 8192
    v_lshlrev_b32 v{a}, 4, v0
    v_cmp_gt_u32 vcc, 128, v0
    v_mov_b32 v{R+26}, -1
    v_mov_b32 v{R+27}, -1
    v_mov_b32 v{R+28}, -1
    v_mov_b32 v{R+29}, -1
    v_cndmask_b32 v{b}, v{c}, v{a}, vcc
    """)
    em.vm(f"buffer_store_dwordx4 v[{R+26}:{R+29}], v{a}, s[{S_WS}:{S_WS+3}], s{S_T0} offen")
    em.vm(f"buffer_store_dwordx4 v[{R+26}:{R+29}], v{a}, s[{S_WS}:{S_WS+3}], s{S_T0+1} offen")
    em.vm(f"buffer_store_dwordx4 v[{R+26}:{R+29}], v{b}, s[{S_WS}:{S_WS+3}], s{S_T0+2} offen")
    return last

def gate_bg(em, vid, R, delay=120):
    a, b, c, d = R + 27, R + 28, R + 29, R + 30
    s0, s1 = R + 25, R + 26
    for _ in range(delay): yield 4
    em.wait(vm=vid)
    em.e(f"v_mov_b32 v{s0}, 0"); yield 1
    em.e(f"v_mov_b32 v{s1}, 0"); yield 1
    for i in range(3):
        for k in range(4):
            x = R + 8 * i + k; w = x + 4
            for t in f"""v_lshlrev_b32 v{a}, 16, v{x}
            v_and_b32 v{b}, 0xffff0000, v{x}
            v_lshlrev_b32 v{c}, 16, v{w}
            v_and_b32 v{d}, 0xffff0000, v{w}
            v_mul_f32 v{a}, v{a}, v{c}
            v_mul_f32 v{b}, v{b}, v{d}
            v_cvt_pk_bf16_f32 v{a}, v{a}, v{b}
            v_lshlrev_b32 v{b}, 16, v{a}
            v_and_b32 v{a}, 0xffff0000, v{a}
            v_add_f32 v{s0}, v{s0}, v{b}
            v_add_f32 v{s1}, v{s1}, v{a}""".split("\n"):
                em.e(t); yield 1
    em.e(f"v_add_f32 v{s0}, v{s0}, v{s1}"); yield 1
    for off in (0x041F, 0x081F, 0x101F, 0x201F, 0x401F):
        yield 4
        i_ = em.lds(f"ds_swizzle_b32 v{s1}, v{s0} offset:{off}"); yield 4
        yield 4
        yield 4
        em.wait(lds=i_)
        em.e(f"v_add_f32 v{s0}, v{s0}, v{s1}"); yield 1
    for t in f"""v_cvt_pk_bf16_f32 v{s0}, v{s0}, v{s0}
    v_lshlrev_b32 v{s0}, 16, v{s0}
    v_mul_f32 v{s0}, {f32bits(-LOG2E)}, v{s0}
    v_exp_f32 v{s0}, v{s0}
    v_lshlrev_b32 v{a}, 2, v{R+24}
    v_add_f32 v{s0}, 1.0, v{s0}
    v_rcp_f32 v{s0}, v{s0}
    s_mov_b32 s{S_TMP2}, {G_OFF}
    v_cvt_pk_bf16_f32 v{s0}, v{s0}, v{s0}
    v_lshlrev_b32 v{s0}, 16, v{s0}""".split("\n"):
        em.e(t); yield 1
    em.vm(f"buffer_store_dword v{s0}, v{a}, s[{S_WS}:{S_WS+3}], s{S_TMP2} offen"); yield 3

def gen_F(em, with_f2):
    WSL = 16384; NW = 6; XB = NW * WSL; NX = 4
    setup_common(em, XB)
    setup_F(em)
    if with_f2: setup_F2(em)
    ACCS = [64, 128]; TMP = 192; GR = 192
    st = {}
    nst = 30 if with_f2 else 20
    def pro(em):
        st["g"] = gate_issue(em, GR)
    def on_stage(em, sn):
        if sn == nst - 1:
            st["f"] = frag_issue(em, ((nst - 3) % NW) * WSL, VT + 2); return 8
        return 0
    groups = [f_group(em, 0, [f"v{64+16*t}" for t in range(4)], WSL, True, lambda em: gate_bg(em, st["g"], GR)),
              f_group(em, 1, [f"v{128+16*t}" for t in range(4)], WSL, False, lambda em: f_epi(em, 64, 0, TMP))]
    if with_f2:
        groups.append(f2_group(em, [f"v{64+16*t}" for t in range(2)], WSL, lambda em: f_epi(em, 128, 1, TMP)))
    cfg = dict(groups=groups, wslots=NW, xslots=NX, x_dma=x_dma_fn(em, WSL),
               xread=lambda gi, k, sp, slot: f"ds_read_b128 a[{4*k}:{4*k+3}], v{V_XR+sp} offset:{slot*WSL}",
               xreg=lambda gi, k: f"a[{4*k}:{4*k+3}]", wfrag=WFR, after_prologue=pro, on_stage=on_stage,
               stamp_at={0: 1, 1: 8, 5: 2, 10: 3, 15: 4, 20: 5, 25: 6})
    engine(em, cfg)
    stamp(em, 9)
    if with_f2:
        for t in range(2):
            for _ in f_epilogue_tile(em, 64 + 16 * t, t * 512, TMP + 16 * t, S_HB2): pass
    else:
        for _ in f_epi(em, 128, 1, TMP): pass
    frag_finish(em, st["f"], ((nst - 3) % NW) * WSL, 224)
    stamp(em, 10)

def gen_QF(em):
    WSL = 20480; NW = 5; XB = NW * WSL; NX = 3; XSL = 16384
    WBD = XB; PB = XB + 18432
    setup_common(em, XB)
    setup_QKV(em, "Q", WBD, PB)
    setup_F(em)
    setup_F2(em)
    st = {}; GR = 192
    em.e(f"s_lshl_b32 s{S_H0}, s{S_C}, 3")
    def pro(em):
        touch_x(em, S_M, 2)
        if OPT["touch"]:
            em.e(f"""
            s_and_b32 s{S_T0}, s{S_M}, 7
            s_mul_i32 s{S_T0}, s{S_T0}, {80*3840}
            s_mul_i32 s{S_T0+1}, s{S_C}, 320
            s_add_u32 s{S_T0}, s{S_T0}, s{S_T0+1}
            """)
            touch(em, S_QKV, 320, 2, 3840, 128, 316, S_T0)
        st["g"] = gate_issue(em, GR)
        st["wl"], st["n_it"] = wbd_loads(em, 18, 176, V_CH)
    def on_stage(em, sn):
        if sn < 10 - OPT["LA"]: gpf_step(em)
        if sn == 1: return touch_F(em, 0, 1)
        if sn == 29:
            st["f"] = frag_issue(em, (27 % NW) * WSL, VT + 2); return 8
        return 0
    em.e(f"""
    s_lshl_b32 s{S_T0}, s{S_M}, 3
    s_lshl_b32 s{S_T0+1}, s{S_WV}, 1
    s_add_u32 s{S_T0}, s{S_T0}, s{S_T0+1}
    s_mul_i32 s{S_OB}, s{S_T0}, 40960
    s_mul_i32 s{S_T0}, s{S_C}, {2*5120}
    s_add_u32 s{S_OB}, s{S_OB}, s{S_T0}
    s_add_u32 s{S_OB}, s{S_OB}, {PQF_OFF}
    """)
    def w_dma(em, i, slot):
        cl = []
        for j in range(5):
            def c(j=j):
                em.e(f"s_add_u32 m0, s{S_MW}, {slot*WSL + j*4096}")
                em.e(f"s_mov_b32 s{S_TMP}, {i*64*3840}")
                return em.vm(f"buffer_load_dwordx4 v{V_WD+j}, s[{S_QKV}:{S_QKV+3}], s{S_TMP} offen lds")
            cl.append(c)
        return cl
    def tr(t, slot, sp, hf):
        off = slot * WSL + (16 * sp + 4 * hf) * 320 + t * 64
        if off >= 65536: return (V_TR + 1, off - 65536)
        return (V_TR, off)
    def bg1(em):
        yield from wbd_writes(em, st["n_it"], st["wl"], WBD, V_CH, V_SM)
        yield from conv_qf(em, 10)
        yield "BAR"
        yield from chain(em, 5, 10, 4)
        def out_fn(em, ri, O):
            tr_, hh = ri >> 1, ri & 1
            em.e(f"s_add_u32 s{S_TMP2}, s{S_OB}, {tr_*40960 + hh*5120}"); yield 1
            for c in range(5):
                em.vm(f"buffer_store_dwordx4 v[{O+4*c}:{O+4*c+3}], v{V_OUT}, s[{S_WS}:{S_WS+3}], s{S_TMP2} offen offset:{c*256}"); yield 3
        yield from softmax_rounds(em, [(ri >> 1) * 16 * PITCH + (ri & 1) * 160 for ri in range(4)], out_fn)
    groups = [dict(T=5, KSW=4, acc=[f"v{ACC0+16*t}" for t in range(5)], loadx=True, bg=lambda em: gate_bg(em, st["g"], GR), w_dma=w_dma, tr=tr),
              f_group(em, 0, [f"a{160+16*t}" for t in range(4)], WSL, False, bg1),
              f2_group(em, [f"a{224+16*t}" for t in range(2)], WSL, lambda em: f_epi_acc(em, 160, 4, S_HB, 0, ACC0, V_CH), nodrain=True, bg_est=500)]
    cfg = dict(groups=groups, wslots=NW, xslots=NX, x_dma=x_dma_fn(em, XSL),
               xread=lambda gi, k, sp, slot: f"ds_read_b128 a[{4*k}:{4*k+3}], v{V_XR+sp} offset:{slot*XSL}",
               xreg=lambda gi, k: f"a[{4*k}:{4*k+3}]", wfrag=WFR,
               after_prologue=pro, on_stage=on_stage,
               stamp_at={0: 1, 1: 8, 5: 2, 10: 3, 15: 4, 20: 5, 25: 6})
    engine(em, cfg)
    stamp(em, 9)
    for _ in f_epi_acc(em, 224, 2, S_HB2, 0, ACC0, V_CH): pass
    frag_finish(em, st["f"], (27 % NW) * WSL, 192)
    stamp(em, 10)

def gen_KV(em):
    WSL = 20480; NW = 4; XB = NW * WSL; NX = 4; XSL = 16384
    WBD = XB; PB = WBD + 10240; VB = PB + 4 * 32 * PITCH
    FREE = VB + 4 * 32 * 200
    assert FREE + 64 <= 163840
    FSC = (27 % NW) * WSL
    setup_common(em, XB)
    setup_QKV(em, "KV", WBD, PB, VB)
    setup_F(em)
    setup_F2(em)
    st = {}; GR = 192
    em.e(f"s_lshl_b32 s{S_H0}, s{S_C}, 2")
    KW, KR, KL, KL2 = V_WD, V_WD + 1, V_WD + 2, V_WD + 3
    def w_dma(em, i, slot):
        cl = []
        for j in range(5):
            def c(j=j):
                em.e(f"s_add_u32 m0, s{S_MW}, {slot*WSL + j*4096}")
                em.e(f"s_mov_b32 s{S_TMP}, {i*64*3840}")
                return em.vm(f"buffer_load_dwordx4 v{V_WD+j}, s[{S_QKV}:{S_QKV+3}], s{S_TMP} offen lds")
            cl.append(c)
        return cl
    def tr(t, slot, sp, hf):
        off = slot * WSL + (16 * sp + 4 * hf) * 320 + t * 64
        if off >= 65536: return (V_TR + 1, off - 65536)
        return (V_TR, off)
    def epi(em):
        for (t, a) in [(2, 2), (2, 3)] + [(t, a) for t in (3, 4) for a in range(4)]:
            c0 = 32 * t + 8 * a - 80
            p0 = c0 + 4 * (c0 // 20); p1 = (c0 + 4) + 4 * ((c0 + 4) // 20)
            va = V_VWA if p1 - p0 == 4 else V_VWB
            r = ACC0 + 16 * t + 4 * a
            em.e(f"v_cvt_pk_bf16_f32 v{r}, v{r}, v{r+1}"); yield 1
            em.e(f"v_cvt_pk_bf16_f32 v{r+1}, v{r+2}, v{r+3}"); yield 1
            em.lds(f"ds_write_b64 v{va}, v[{r}:{r+1}] offset:{p0*2}"); yield 2
        yield from conv_qf(em, 5)
        yield "BAR"
        yield from chain(em, 3, 5, 2)
        def out_fn(em, ri, O):
            for c in range(5):
                em.last_p = em.lds(f"ds_write_b128 v{V_OUT}, v[{O+4*c}:{O+4*c+3}] offset:{ri*16*PITCH + 16*c}"); yield 3
        yield from softmax_rounds(em, [ri * 16 * PITCH for ri in range(2)], out_fn)
        x0, x1, x2 = V_CH, V_CH + 1, V_CH + 2
        for t in f"""s_add_u32 s{S_TMP2}, s{S_H0}, s{S_WV}
        s_mul_i32 s{S_OB}, s{S_TMP2}, 3840
        s_add_u32 s{S_OB}, s{S_OB}, {KVP_OFF}
        s_mul_i32 s{S_TMP2}, s{S_WV}, {WSL}
        s_add_u32 s{S_TMP2}, s{S_TMP2}, 16384""".split("\n"): em.e(t)
        yield 4
        for t in f"""v_and_b32 v{x0}, 15, v1
        v_lshrrev_b32 v{x1}, 4, v1
        v_mul_u32_u24 v{x2}, 160, v{x0}
        v_lshl_add_u32 v{x2}, v{x1}, 4, v{x2}
        v_add_u32 v{KW}, s{S_TMP2}, v{x2}
        v_lshlrev_b32 v{KL}, 2, v1
        v_add_u32 v{KR}, s{S_TMP2}, v{KL}
        v_mov_b32 v{x2}, 0x80000000
        v_cmp_gt_u32 s[88:89], 8, v1
        v_cmp_gt_u32 s[86:87], 2, v{x1}
        v_cmp_gt_u32 s[90:91], 5, v{x0}
        v_cndmask_b32 v{KL2}, v{x2}, v{KL}, s[88:89]
        s_and_b64 s[88:89], s[86:87], s[90:91]""".split("\n"): em.e(t)
        yield 13
        em.wait(lds=em.last_p)
        yield "BAR"
        KA = ACC0
        def issue(ks):
            b = V_SM + 20 * (ks % 2)
            for a in range(3):
                for hf in range(2):
                    em.lds(f"ds_read_b64_tr_b16 v[{b+4*a+2*hf}:{b+4*a+2*hf+1}], v{V_PHT} offset:{(32*ks+4*hf)*PITCH + 32*a}")
            for bb in range(2):
                for hf in range(2):
                    last = em.lds(f"ds_read_b64_tr_b16 v[{b+12+4*bb+2*hf}:{b+12+4*bb+2*hf+1}], v{V_VT} offset:{(32*ks+4*hf)*200 + 32*bb}")
            return last
        em.e(f"s_lshl_b32 s{S_TMP2}, s{S_C}, 2\nv_mov_b32 v{V_CH}, 0")
        pv = em.vm(f"buffer_load_dword v{V_CH+1}, v{V_CH}, s[{S_DBG}:{S_DBG+3}], s{S_TMP2} offen sc1"); yield 4
        l0 = issue(0); yield 10
        for ks in range(4):
            if ks < 3: l1 = issue(ks + 1); yield 10
            em.wait(lds=l0)
            b = V_SM + 20 * (ks % 2)
            for a in range(3):
                for bb in range(2):
                    r = KA + 8 * a + 4 * bb
                    c = "0" if ks == 0 else f"v[{r}:{r+3}]"
                    em.e(f"v_mfma_f32_16x16x32_bf16 v[{r}:{r+3}], v[{b+4*a}:{b+4*a+3}], v[{b+12+4*bb}:{b+12+4*bb+3}], {c}"); yield 4
            l0 = l1
        yield 8
        for a in range(3):
            for bb in range(2):
                r = KA + 8 * a + 4 * bb
                msk = [[None, "s[90:91]"], [None, "s[90:91]"], ["s[86:87]", "s[88:89]"]][a][bb]
                if msk: em.e(f"s_mov_b64 exec, {msk}")
                lw = em.lds(f"ds_write_b128 v{KW}, v[{r}:{r+3}] offset:{bb*16*160 + a*64}")
                if msk: em.e("s_mov_b64 exec, -1")
                yield 4
        yield 8
        em.wait(lds=lw)
        rr = []
        for i in range(14):
            rr.append(em.lds(f"ds_read_b32 v{V_SM+i}, v{KR} offset:{i*256}")); yield 1
        em.wait(vm=pv)
        em.e(f"""
        v_readfirstlane_b32 s{S_DUM}, v{V_CH+1}
        s_cmp_ge_u32 s{S_DUM}, 16
        s_cbranch_scc1 L_kv_go
        s_lshl_b32 s{S_TMP2}, s{S_C}, 2
        """)
        em.label("L_kv_poll")
        em.e(f"""
        s_sleep 8
        buffer_load_dword v{V_CH+1}, v{V_CH}, s[{S_DBG}:{S_DBG+3}], s{S_TMP2} offen sc1
        s_waitcnt vmcnt(0)
        v_readfirstlane_b32 s{S_DUM}, v{V_CH+1}
        s_cmp_lt_u32 s{S_DUM}, 16
        s_cbranch_scc1 L_kv_poll
        """)
        em.label("L_kv_go")
        yield 6
        for i in range(14):
            em.wait(lds=rr[i])
            em.vm(f"buffer_atomic_add_f32 v{V_SM+i}, v{KL if i < 13 else KL2}, s[{S_WS}:{S_WS+3}], s{S_OB} offen offset:{i*256}"); yield 3
    def bg1(em):
        yield from wbd_writes(em, st["n_it"], st["wl"], WBD, V_CH, V_SM)
        em.e(f"v_lshrrev_b32 v{V_SM}, 5, v1"); yield 1
        em.e(f"v_mul_u32_u24 v{V_SM}, 88, v{V_SM}"); yield 1
        em.e(f"v_add_u32 v{V_SM}, v{V_SM}, v{V_VWA}"); yield 1
        em.e(f"v_mov_b32 v{V_SM+2}, 0x3f803f80"); yield 1
        em.e(f"v_mov_b32 v{V_SM+3}, 0x3f803f80"); yield 1
        em.lds(f"ds_write_b64 v{V_SM}, v[{V_SM+2}:{V_SM+3}] offset:40"); yield 2
        em.lds(f"ds_write_b64 v{V_SM}, v[{V_SM+2}:{V_SM+3}] offset:88"); yield 2
        yield from epi(em)
    def on_stage(em, sn):
        if sn == 29:
            st["f"] = frag_issue(em, FSC, VT + 2); return 8
        return 0
    def pro(em):
        em.e(f"""
        s_mul_i32 s{S_T0}, s{S_C}, 15360
        s_mul_i32 s{S_T0+1}, s{S_M}, 960
        s_add_u32 s{S_T0}, s{S_T0}, s{S_T0+1}
        s_add_u32 s{S_T0}, s{S_T0}, {KVP_OFF}
        v_lshlrev_b32 v{VT}, 4, v0
        v_mov_b32 v{VT+1}, 0x80000000
        v_cmp_gt_u32 vcc, 60, v0
        v_mov_b32 v{V_SM}, 0
        v_mov_b32 v{V_SM+1}, 0
        v_mov_b32 v{V_SM+2}, 0
        v_mov_b32 v{V_SM+3}, 0
        v_cndmask_b32 v{VT}, v{VT+1}, v{VT}, vcc
        """)
        st["z"] = em.vm(f"buffer_store_dwordx4 v[{V_SM}:{V_SM+3}], v{VT}, s[{S_WS}:{S_WS+3}], s{S_T0} offen sc1")
        em.e("s_nop 1")
        st["g"] = gate_issue(em, GR)
        st["wl"], st["n_it"] = wbd_loads(em, 9, 180, V_CH)
    def bg0(em):
        yield from gate_bg(em, st["g"], GR)
        em.wait(vm=st["z"])
        em.e(f"""
        s_lshl_b32 s{S_TMP2}, s{S_C}, 2
        v_mov_b32 v{GR}, 0x80000000
        v_mov_b32 v{GR+1}, 1
        v_mov_b32 v{GR+2}, 0
        v_cmp_eq_u32 vcc, 0, v0
        s_nop 1
        v_cndmask_b32 v{GR}, v{GR}, v{GR+2}, vcc
        """); yield 4
        em.vm(f"buffer_atomic_add v{GR+1}, v{GR}, s[{S_DBG}:{S_DBG+3}], s{S_TMP2} offen sc1"); yield 3
    groups = [dict(T=5, KSW=4, acc=[f"v{ACC0+16*t}" for t in range(5)], loadx=True, bg=bg0, w_dma=w_dma, tr=tr),
              f_group(em, 0, [f"a{160+16*t}" for t in range(4)], WSL, False, bg1),
              f2_group(em, [f"a{224+16*t}" for t in range(2)], WSL, lambda em: f_epi_acc(em, 160, 4, S_HB, 0, ACC0, V_CH), nodrain=True, bg_est=500)]
    cfg = dict(groups=groups, wslots=NW, xslots=NX, x_dma=x_dma_fn(em, XSL),
               xread=lambda gi, k, sp, slot: f"ds_read_b128 a[{4*k}:{4*k+3}], v{V_XR+sp} offset:{slot*XSL}",
               xreg=lambda gi, k: f"a[{4*k}:{4*k+3}]", wfrag=WFR,
               after_prologue=pro, on_stage=on_stage, stamp_at={0: 1, 1: 8, 5: 2, 10: 3, 15: 4, 20: 5, 25: 6})
    engine(em, cfg)
    stamp(em, 9)
    for _ in f_epi_acc(em, 224, 2, S_HB2, 0, ACC0, V_CH): pass
    frag_finish(em, st["f"], FSC, 192)
    stamp(em, 10)

KD = """.section .rodata,"a"
.p2align 6
.amdhsa_kernel {name}
  .amdhsa_next_free_vgpr {nv}
  .amdhsa_next_free_sgpr 100
  .amdhsa_accum_offset {ao}
  .amdhsa_group_segment_fixed_size 0
  .amdhsa_kernarg_size 96
  .amdhsa_user_sgpr_count 2
  .amdhsa_user_sgpr_kernarg_segment_ptr 1
  .amdhsa_system_sgpr_workgroup_id_x 1
.end_amdhsa_kernel
"""

def gen_k1():
    em = Em()
    em.raw(".text\n.globl k1_kernel\n.p2align 8\n.type k1_kernel,@function\nk1_kernel:")
    em.e("s_cmp_ge_u32 s2, 256\ns_cbranch_scc1 L_k1_done")
    em.e(f"""
    s_load_dwordx4 s[40:43], s[0:1], 0
    s_load_dwordx4 s[44:47], s[0:1], 16
    s_load_dwordx4 s[48:51], s[0:1], 40
    s_load_dwordx4 s[52:55], s[0:1], 56
    s_load_dwordx4 s[56:59], s[0:1], 80
    v_lshrrev_b32 v1, 6, v0
    s_nop 0
    v_readfirstlane_b32 s{S_WV}, v1
    """)
    T0 = S_T0
    em.e(f"""
    s_and_b32 s{T0}, s2, 1
    s_bfe_u32 s{T0+1}, s2, 0x20001
    s_lshr_b32 s{T0+2}, s2, 3
    s_lshl_b32 s{S_M}, s{T0}, 3
    """)
    em.wait_lgkm0()
    srd(em, S_X, 40, 2048 * 1280)
    srd(em, S_WS, 58, WS_BYTES)
    srd(em, S_DBG, 56, 256)
    srd(em, S_G, 48, 640 * 3456)
    srd(em, S_U, 50, 640 * 3456)
    srd(em, S_QKV, 42, 640 * 3840)
    srd(em, S_PHI, 44, 32 * 800)
    stamp(em, 0)
    em.e(f"""
    s_and_b32 s{T0+3}, s{T0+2}, 7
    s_add_u32 s{S_M}, s{S_M}, s{T0+3}
    s_lshr_b32 s{T0+2}, s{T0+2}, 3
    s_cmp_eq_u32 s{T0+2}, 3
    s_cbranch_scc1 L_k1_F
    s_lshl_b32 s{T0+4}, s{T0+1}, 1
    s_add_u32 s{T0+4}, s{T0+4}, s{T0+2}
    s_sub_u32 s{S_C}, s{T0+4}, 1
    s_add_u32 s{T0+4}, s{T0+4}, 3
    s_cmp_eq_u32 s{T0+2}, 0
    s_cselect_b32 s{S_C}, s{T0+1}, s{S_C}
    s_cselect_b32 s{S_FG}, s{T0+1}, s{T0+4}
    s_lshr_b32 s{S_FG2}, s{S_FG}, 1
    s_add_u32 s{S_FG2}, s{S_FG2}, 20
    s_and_b32 s{S_TOFF}, s{S_FG}, 1
    s_lshl_b32 s{S_TOFF}, s{S_TOFF}, 1
    s_cbranch_scc0 L_k1_x0
    """)
    em.label("L_k1_x0")
    em.e(f"s_cmp_lg_u32 s{T0+2}, 0\ns_cbranch_scc1 L_k1_KV")
    save = (em.vm_n, em.vm_done, em.lds_n, em.lds_done)
    def restore(): em.vm_n, em.vm_done, em.lds_n, em.lds_done = save
    gen_QF(em)
    em.e("s_endpgm")
    em.label("L_k1_KV"); restore()
    gen_KV(em)
    em.e("s_endpgm")
    em.label("L_k1_F"); restore()
    em.e(f"""
    s_lshl_b32 s{S_FG}, s{T0+1}, 1
    s_add_u32 s{S_FG}, s{S_FG}, 12
    s_mov_b32 s{S_FG2}, 26
    s_and_b32 s{S_TOFF}, s{T0+1}, 1
    s_lshl_b32 s{S_TOFF}, s{S_TOFF}, 1
    s_cmp_ge_u32 s{T0+1}, 2
    s_cbranch_scc1 L_k1_F2
    """)
    gen_F(em, True)
    em.e("s_endpgm")
    em.label("L_k1_F2"); restore()
    gen_F(em, False)
    em.label("L_k1_done")
    em.e("s_endpgm")
    return em.finish(), em
```

```python
from asmlib import *
import k1v2 as K
from k1v2 import *

S_W8 = 98
S_RS = 100
R_SRD = [40, 44 - 44 + 56, 60 - 60 + 80, 84]
R_OFF = [88, 89, 90, 91]
R_INC = [60, 61, 62, 63]
V_RD = 8
V_XF = 176

WPART = 22528
NWS = 5
XB3 = NWS * WPART
XSL3 = 16384; NXS3 = 3
DUMMY = XB3 + NXS3 * XSL3
S_RM = 62
S_RI = 63

def stamp3(em, k):
    if not OPT["stamps"]: return
    em.e(f"s_memtime s[92:93]") if False else None
    em.e(f"s_memtime s[30:31]")
    em.e("s_waitcnt lgkmcnt(0)"); em.lds_done = em.lds_n
    em.e(f"""
    s_lshl_b32 s28, s2, 9
    s_lshl_b32 s29, s{S_W8}, 6
    s_add_u32 s28, s28, s29
    s_add_u32 s28, s28, {STAMP_OFF + 4*k}
    v_mov_b32 v248, s30
    v_mov_b32 v249, 0
    """)
    em.vm(f"buffer_store_dword v248, v249, s[{S_WS}:{S_WS+3}], s28 offen")

def setup3(em, rounds):
    a, b, c, d, e = VT, VT + 1, VT + 2, VT + 3, VT + 4
    em.e(f"""
    v_and_b32 v1, 63, v0
    v_lshrrev_b32 v{a}, 3, v1
    v_and_b32 v{b}, 7, v1
    v_lshrrev_b32 v{c}, 4, v1
    v_xor_b32 v{c}, v{b}, v{c}
    v_lshlrev_b32 v{c}, 4, v{c}
    s_lshl_b32 s{S_T0}, s{S_M}, 7
    s_lshl_b32 s{S_T0+1}, s{S_W8}, 4
    s_add_u32 s{S_T0}, s{S_T0}, s{S_T0+1}
    v_add_u32 v{d}, s{S_T0}, v{a}
    v_mul_u32_u24 v{d}, 1280, v{d}
    v_add_u32 v{V_XD}, v{d}, v{c}
    v_xor_b32 v{c}, 64, v{c}
    v_add_u32 v{V_XD+1}, v{d}, v{c}
    v_add_u32 v{V_XD+1}, {8*1280}, v{V_XD+1}
    s_lshl_b32 s{S_MX}, s{S_W8}, 11
    s_add_u32 s{S_MX}, s{S_MX}, {XB3}
    s_lshl_b32 s{S_MW}, s{S_W8}, 10
    """)
    for r, rd in enumerate(rounds):
        sr = R_SRD[r]
        if rd[0] == "QKV":
            kind, second = rd[1], rd[2]
            em.e(f"""
            s_lshl_b32 s{S_T0}, s{S_W8}, 6
            s_add_u32 s{S_T0}, s{S_T0}, {512 if second else 0}
            v_add_u32 v{a}, s{S_T0}, v1
            v_mul_u32_u24 v{b}, 3277, v{a}
            v_lshrrev_b32 v{b}, 16, v{b}
            v_mul_u32_u24 v{c}, 20, v{b}
            v_sub_u32 v{c}, v{a}, v{c}
            v_mul_u32_u24 v{b}, 3840, v{b}
            v_lshl_add_u32 v{V_RD+r}, v{c}, 4, v{b}
            """)
            if kind == "KV":
                em.e(f"""
                v_cmp_le_u32 vcc, 10, v{c}
                v_add_u32 v{b}, 1120, v{V_RD+r}
                s_nop 0
                v_cndmask_b32 v{V_RD+r}, v{V_RD+r}, v{b}, vcc
                s_mul_i32 s{R_OFF[r]}, s{S_C}, 160
                s_add_u32 s{R_OFF[r]}, s{R_OFF[r]}, 1280
                """)
            else:
                em.e(f"s_mul_i32 s{R_OFF[r]}, s{S_C}, 320")
            if second:
                em.e(f"""
                v_cmp_gt_u32 vcc, 640, v{a}
                v_mov_b32 v{b}, 0x80000000
                s_nop 0
                v_cndmask_b32 v{V_RD+r}, v{b}, v{V_RD+r}, vcc
                """)
            em.e(f"""
            s_mov_b32 s{sr}, s{S_QKV}
            s_mov_b32 s{sr+1}, s{S_QKV+1}
            s_mov_b32 s{sr+2}, {640*3840}
            s_mov_b32 s{sr+3}, 0x00020000
            """)
        elif rd[0] == "MIX":
            kind, f2off, qoff = rd[1], rd[2], rd[3]
            em.e(f"""
            v_lshrrev_b32 v{a}, 2, v1
            v_and_b32 v{b}, 3, v1
            s_and_b32 s{S_T0}, s{S_W8}, 2
            v_xor_b32 v{b}, s{S_T0}, v{b}
            s_and_b32 s{S_T0}, s{S_W8}, 1
            s_lshl_b32 s{S_T0}, s{S_T0}, 4
            v_add_u32 v{a}, s{S_T0}, v{a}
            v_mul_u32_u24 v{a}, 3456, v{a}
            v_lshl_add_u32 v{V_RD+r}, v{b}, 4, v{a}
            s_lshl_b32 s{R_OFF[r]}, s{S_FG2}, 7
            s_lshl_b32 s{S_T0}, s{S_TOFF}, 5
            s_add_u32 s{R_OFF[r]}, s{R_OFF[r]}, s{S_T0}
            s_mov_b32 s{S_RI}, {32*3456}
            s_add_u32 s{S_RM}, s{S_MW}, {f2off}
            s_cmp_lt_u32 s{S_W8}, 2
            s_cselect_b32 s{sr}, s{S_G}, s{S_U}
            s_cselect_b32 s{sr+1}, s{S_G+1}, s{S_U+1}
            s_mov_b32 s{sr+2}, {640*3456}
            s_mov_b32 s{sr+3}, 0x00020000
            """)
            if kind:
                em.e(f"""
                s_lshl_b32 s{S_T0}, s{S_W8}, 6
                s_add_u32 s{S_T0}, s{S_T0}, 256
                v_add_u32 v{a}, s{S_T0}, v1
                v_mul_u32_u24 v{b}, 3277, v{a}
                v_lshrrev_b32 v{b}, 16, v{b}
                v_mul_u32_u24 v{c}, 20, v{b}
                v_sub_u32 v{c}, v{a}, v{c}
                v_mul_u32_u24 v{b}, 3840, v{b}
                v_lshl_add_u32 v{d}, v{c}, 4, v{b}
                """)
                if kind == "KV":
                    em.e(f"""
                    v_cmp_le_u32 vcc, 10, v{c}
                    v_add_u32 v{b}, 1120, v{d}
                    s_nop 0
                    v_cndmask_b32 v{d}, v{d}, v{b}, vcc
                    """)
                em.e(f"""
                s_cmp_ge_u32 s{S_W8}, 4
                s_cselect_b64 vcc, -1, 0
                s_cselect_b32 s{sr}, s{S_QKV}, s{sr}
                s_cselect_b32 s{sr+1}, s{S_QKV+1}, s{sr+1}
                s_cselect_b32 s{sr+2}, {640*3840}, s{sr+2}
                s_cselect_b32 s{R_OFF[r]}, s{R_OFF[0]}, s{R_OFF[r]}
                s_cselect_b32 s{S_RI}, {32*3840}, s{S_RI}
                s_add_u32 s{S_T0}, s{S_MW}, {qoff - 4096}
                s_cmp_ge_u32 s{S_W8}, 4
                s_cselect_b32 s{S_RM}, s{S_T0}, s{S_RM}
                v_cndmask_b32 v{V_RD+r}, v{V_RD+r}, v{d}, vcc
                """)
            lim = 6 if kind else 4
            em.e(f"""
            s_cmp_ge_u32 s{S_W8}, {lim}
            s_cselect_b64 vcc, -1, 0
            v_mov_b32 v{b}, 0x80000000
            s_nop 0
            v_cndmask_b32 v{V_RD+r}, v{V_RD+r}, v{b}, vcc
            """)
        else:
            sg = rd[1]
            em.e(f"""
            v_lshrrev_b32 v{a}, 3, v1
            v_and_b32 v{b}, 7, v1
            v_bfe_u32 v{c}, v1, 4, 1
            v_lshlrev_b32 v{c}, 1, v{c}
            v_xor_b32 v{c}, v{c}, v{b}
            s_and_b32 s{S_T0}, s{S_W8}, 4
            v_xor_b32 v{c}, s{S_T0}, v{c}
            v_lshlrev_b32 v{c}, 4, v{c}
            s_lshl_b32 s{S_T0}, s{S_WV}, 3
            v_add_u32 v{a}, s{S_T0}, v{a}
            v_mul_u32_u24 v{a}, 3456, v{a}
            v_add_u32 v{V_RD+r}, v{a}, v{c}
            s_lshl_b32 s{R_OFF[r]}, s{sg}, 7
            s_cmp_lt_u32 s{S_W8}, 4
            s_cselect_b32 s{sr}, s{S_G}, s{S_U}
            s_cselect_b32 s{sr+1}, s{S_G+1}, s{S_U+1}
            s_mov_b32 s{sr+2}, {640*3456}
            s_mov_b32 s{sr+3}, 0x00020000
            """)

def setup3_reads(em):
    a, b, c, d, e = VT, VT + 1, VT + 2, VT + 3, VT + 4
    em.e(f"""
    v_and_b32 v{a}, 31, v1
    v_lshrrev_b32 v{b}, 5, v1
    v_bfe_u32 v{c}, v1, 1, 3
    v_xor_b32 v{c}, v{c}, v{b}
    v_lshlrev_b32 v{d}, 7, v{a}
    s_lshl_b32 s{S_T0}, s{S_WV}, 12
    s_add_u32 s{S_T0}, s{S_T0}, {XB3}
    v_add_u32 v{d}, s{S_T0}, v{d}
    """)
    for sp in range(4):
        em.e(f"v_xor_b32 v{e}, {2*sp}, v{c}\nv_lshl_add_u32 v{V_XR+sp}, v{e}, 4, v{d}")

def setup3_F(em):
    a, b, c, d, e = VT, VT + 1, VT + 2, VT + 3, VT + 4
    em.e(f"""
    v_bfe_u32 v{a}, v1, 4, 1
    v_lshrrev_b32 v{b}, 5, v1
    v_bfe_u32 v{c}, v1, 2, 2
    v_and_b32 v{d}, 3, v1
    v_lshlrev_b32 v{e}, 12, v{a}
    v_lshl_add_u32 v{e}, v{b}, 10, v{e}
    v_lshl_add_u32 v{e}, v{c}, 7, v{e}
    v_lshl_add_u32 v{e}, v{d}, 3, v{e}
    v_lshrrev_b32 v{c}, 1, v{c}
    v_lshl_or_b32 v{c}, v{a}, 1, v{c}
    """)
    for t in range(4):
        em.e(f"v_xor_b32 v{d}, {t}, v{c}\nv_lshl_add_u32 v{V_FT+t}, v{d}, 5, v{e}\nv_add_u32 v{V_FT+4+t}, 0x10000, v{V_FT+t}")
    em.e(f"""
    s_lshl_b32 s{S_T0}, s{S_WV}, 1
    v_add_u32 v{a}, s{S_T0}, v{a}
    s_mov_b32 s{S_T0+1}, {54*1024}
    v_mul_lo_u32 v{a}, v{a}, s{S_T0+1}
    v_and_b32 v{c}, 15, v1
    v_lshl_add_u32 v{c}, v{b}, 4, v{c}
    v_lshl_add_u32 v{V_FS}, v{c}, 4, v{a}
    s_mul_i32 s{S_HB}, s{S_M}, {8*54*1024}
    s_add_u32 s{S_HB}, s{S_HB}, {HF_OFF}
    s_lshl_b32 s{S_T0}, s{S_FG2}, 11
    s_add_u32 s{S_HB2}, s{S_HB}, s{S_T0}
    s_lshl_b32 s{S_T0}, s{S_TOFF}, 9
    s_add_u32 s{S_HB2}, s{S_HB2}, s{S_T0}
    s_lshl_b32 s{S_T0}, s{S_FG}, 11
    s_add_u32 s{S_HB}, s{S_HB}, s{S_T0}
    v_mov_b32 v{V_GC0}, {f32bits(GC0)}
    v_mov_b32 v{V_PKC}, {f32bits(GC1)}
    v_mov_b32 v{V_PKC+1}, {f32bits(GC1)}
    v_mov_b32 v{V_PKC+2}, {f32bits(GC0)}
    v_mov_b32 v{V_PKC+3}, {f32bits(GC0)}
    v_bfe_u32 v{a}, v1, 4, 1
    v_bfe_u32 v{c}, v1, 2, 2
    v_and_b32 v{d}, 3, v1
    v_lshlrev_b32 v{e}, 11, v{a}
    v_lshl_add_u32 v{e}, v{b}, 9, v{e}
    v_lshl_add_u32 v{e}, v{c}, 6, v{e}
    v_lshl_add_u32 v{e}, v{d}, 3, v{e}
    v_lshl_add_u32 v{V_F2T}, v{a}, 5, v{e}
    v_xor_b32 v{V_F2T+1}, 32, v{V_F2T}
    v_add_u32 v{V_F2T+2}, 0x10000, v{V_F2T}
    v_add_u32 v{V_F2T+3}, 0x10000, v{V_F2T+1}
    """)

def gpf3_setup(em):
    a, b = VT, VT + 1
    P = S_TA
    em.e(f"""
    s_cmp_eq_u32 s{S_WV}, 0
    s_cselect_b32 s{P}, s{S_G}, s{S_U}
    s_cselect_b32 s{P+1}, s{S_G+1}, s{S_U+1}
    s_mov_b32 s{P+2}, {640*3456}
    s_mov_b32 s61, {64*3456}
    s_mul_i32 s60, s2, 864
    s_cmp_eq_u32 s{S_WV}, 2
    s_cselect_b32 s{P}, s{S_QKV}, s{P}
    s_cselect_b32 s{P+1}, s{S_QKV+1}, s{P+1}
    s_cselect_b32 s{P+2}, {640*3840}, s{P+2}
    s_cselect_b32 s61, {64*3840}, s61
    s_mul_i32 s{S_T0}, s2, 960
    s_cselect_b32 s60, s{S_T0}, s60
    s_cmp_eq_u32 s{S_WV}, 3
    s_cselect_b32 s{P}, s{S_X}, s{P}
    s_cselect_b32 s{P+1}, s{S_X+1}, s{P+1}
    s_cselect_b32 s{P+2}, {2048*1280}, s{P+2}
    s_cselect_b32 s61, 128, s61
    s_mul_i32 s{S_T0}, s2, {8*1280}
    s_cselect_b32 s60, s{S_T0}, s60
    s_mov_b32 s{P+3}, 0x00020000
    s_movk_i32 s{S_T0}, 128
    s_cselect_b32 s{S_T0}, 1280, s{S_T0}
    v_mul_lo_u32 v{a}, v1, s{S_T0}
    v_mov_b32 v{b}, 0x80000000
    v_cmp_gt_u32 vcc, 8, v1
    s_nop 1
    v_cndmask_b32 v251, v{b}, v{a}, vcc
    """)
def gpf3_step(em, n=1):
    for _ in range(n):
        em.vm(f"buffer_load_dword v250, v251, s[{S_TA}:{S_TA+3}], s60 offen")
        em.e("s_add_u32 s60, s60, s61")

def engine3(em, rounds, dests, tiles, pro=None, gp=False, bgf=None):
    D = OPT.get('D3', 3)
    NST = 20; PW = NWS - 2; PX = NXS3 - 1
    incs = [32 * 3840 if rd[0] == "QKV" else 32 * 3456 for rd in rounds]
    w_last = {}; x_last = {}
    def issue_w(s):
        if s >= NST: return []
        if OPT.get("nodma") and s > 2:
            w_last[s] = 0; return []
        cl = []
        for r, rd in enumerate(rounds):
            def c(r=r, rd=rd):
                if rd[0] == "MIX":
                    em.e(f"s_add_u32 s{S_TMP}, s{S_RM}, {(s % NWS) * WPART}")
                    em.e(f"s_cmp_lt_u32 s{S_W8}, {6 if rd[1] else 4}")
                    em.e(f"s_cselect_b32 m0, s{S_TMP}, s{S_DUM}")
                    w_last[s] = em.vm(f"buffer_load_dwordx4 v{V_RD+r}, s[{R_SRD[r]}:{R_SRD[r]+3}], s{R_OFF[r]} offen lds")
                    em.e(f"s_add_u32 s{R_OFF[r]}, s{R_OFF[r]}, s{S_RI}")
                    return
                base = (s % NWS) * WPART + dests[r]
                em.e(f"s_add_u32 m0, s{S_MW}, {base}")
                em.e(f"s_add_u32 s{S_TMP}, s{R_OFF[r]}, {s*incs[r]}")
                w_last[s] = em.vm(f"buffer_load_dwordx4 v{V_RD+r}, s[{R_SRD[r]}:{R_SRD[r]+3}], s{S_TMP} offen lds")
            cl.append(c)
        return cl
    def issue_x(i):
        if i >= 10: return []
        if OPT.get("nodma") and i > 1:
            x_last[i] = 0; return []
        cl = []
        for n in range(2):
            def c(n=n):
                em.e(f"s_add_u32 m0, s{S_MX}, {(i % NXS3)*XSL3 + n*1024}")
                em.e(f"s_movk_i32 s{S_TMP}, {i*128}")
                x_last[i] = em.vm(f"buffer_load_dwordx4 v{V_XD+n}, s[{S_X}:{S_X+3}], s{S_TMP} offen lds")
            cl.append(c)
        return cl
    em.e(f"s_and_b32 s{S_DUM}, s{S_MW}, 1024\ns_add_u32 s{S_DUM}, s{S_DUM}, {DUMMY}")
    for c in issue_x(0) + issue_w(0) + issue_w(1) + issue_x(1) + issue_w(2): c()
    if pro: pro(em)
    LA = OPT.get("LA3", 0)
    gp = gp and LA > 0
    if gp:
        gpf3_setup(em)
        em.e("s_add_u32 s60, s60, s61")
        gpf3_step(em, LA - 1)
    T = len(tiles)
    mf = [(s, sp, t) for s in range(NST) for sp in range(2) for t in range(T)]
    N = len(mf)
    NB = len(WFR)
    rd_ = {}; xrd = {}
    pend = []
    bg = BG()
    if bgf: bg.add(bgf(em))
    def need_of(k):
        s, sp, t = mf[k]
        return max(rd_[k], xrd[2 * s + sp])
    for idx in range(-D, N):
        if idx >= 0:
            s, sp, t = mf[idx]
            em.wait(lds=need_of(idx))
            b = WFR[idx % NB]
            a = tiles[t][0]
            k16 = 2 * s + sp
            xr = V_XF + 4 * (k16 % 4)
            c = "0" if k16 == 0 else f"v[{a}:{a+15}]"
            em.e(f"v_mfma_f32_32x32x16_bf16 v[{a}:{a+15}], v[{b}:{b+3}], v[{xr}:{xr+3}], {c}")
        j = idx + D
        if j < N:
            s, sp, t = mf[j]
            if sp == 0 and t == 0:
                while pend: pend.pop(0)()
                need = w_last[s]
                if s % 2 == 0: need = max(need, x_last[s // 2])
                em.wait(vm=need)
                if not (OPT.get("nobar") and s > 0): em.e("s_barrier")
                if s in (0, 1, 5, 10, 15): stamp3(em, {0: 1, 1: 8, 5: 2, 10: 3, 15: 4}[s])
                pend += issue_w(s + PW)
                if gp and s % 2 == 0 and s // 2 + LA < 10: gpf3_step(em)
                if s % 2 == 1: pend += issue_x((s - 1) // 2 + PX)
                for q in range(2):
                    k16 = 2 * s + q
                    xr = V_XF + 4 * (k16 % 4)
                    xrd[k16] = em.lds(f"ds_read_b128 v[{xr}:{xr+3}], v{V_XR + (k16 % 4)} offset:{((s // 2) % NXS3)*XSL3}")
            b = WFR[j % NB]
            for hf in range(2):
                vr, off = tiles[t][1]((s % NWS) * WPART, sp, hf)
                rd_[j] = em.lds(f"ds_read_b64_tr_b16 v[{b+2*hf}:{b+2*hf+1}], v{vr} offset:{off}")
        if pend: pend.pop(0)()
        elif idx >= 0: bg.step(em, 3)
    bg.drain(em)

def f_tile(acc, part_off, t, f2=False):
    def fn(sb, sp, hf):
        off = sb + part_off + (sp * 1024 + hf * 256 if f2 else sp * 2048 + hf * 512)
        base = V_F2T if f2 else V_FT
        hi = 2 if f2 else 4
        if off >= 65536: return (base + hi + t, off - 65536)
        return (base + t, off)
    return (acc, fn)

def q_tile(acc, t):
    def fn(sb, sp, hf):
        off = sb + (16 * sp + 4 * hf) * 320 + t * 64
        if off >= 65536: return (V_TR + 1, off - 65536)
        return (V_TR, off)
    return (acc, fn)


class Rec:
    def __init__(self): self.ops = []; self.n = 0
    def e(self, text):
        for t in text.split("\n"):
            t = t.strip()
            if t: self.ops.append(("e", t, None))
    def vm(self, text):
        self.n += 1; self.ops.append(("vm", text, self.n)); return ("rec", self.n)
    def lds(self, text):
        self.n += 1; self.ops.append(("lds", text, self.n)); return ("rec", self.n)

def replay(em, rec, st):
    m = {}
    hold = False
    for kind, t, n in rec.ops:
        if kind == "e": em.e(t)
        elif kind == "vm": m[n] = em.vm(t)
        else: m[n] = em.lds(t)
        op = t.split()[0]
        if op.startswith("s_cmp"): hold = True
        elif hold and not (op.startswith("s_cselect") or op.startswith("s_mov") or op.startswith("s_mul") or op.startswith("s_movk")): hold = False
        if not hold: yield (3 if kind != "e" else 1)
    for k, v in list(st.items()):
        if isinstance(v, tuple) and v and v[0] == "rec": st[k] = m[v[1]]

def run(gen, em):
    for c in gen:
        if c == "BAR": em.e("s_barrier")

def f_tail(em, specs, bar_after=None):
    for n, (acc, sb, off) in enumerate(specs):
        run(f_epilogue_tile(em, acc, off, 160 + 16 * (n & 1), sb), em)
        if bar_after == n: em.e("s_barrier")

WBD3 = 0; PB3 = 20480; VB3 = PB3 + 4 * 32 * PITCH; KS3 = VB3 + 4 * 32 * 200; FSC3 = KS3 + 4 * 3360 + 64

def gen_special(em, kind):
    rounds = [("QKV", kind, 0), ("F", S_FG), ("MIX", kind, 18432, 8192)]
    dests = [0, 10240, 0]
    setup3(em, rounds)
    lab = "Q" if kind == "Q" else "KV"
    em.e(f"s_cmp_ge_u32 s{S_W8}, 4\ns_cbranch_scc1 L3_{lab}_h1")
    save = (em.vm_n, em.vm_done, em.lds_n, em.lds_done)
    st = {}
    nblk = 18 if kind == "Q" else 9
    def pro0(em):
        setup3_reads(em)
        setup_QKV_reads(em, kind)
    def bg0(em):
        r = Rec()
        r.e(f"s_lshl_b32 s{S_H0}, s{S_C}, {3 if kind == 'Q' else 2}")
        st["wl"], st["n_it"] = wbd_loads(r, nblk, 200, V_CH)
        yield from replay(em, r, st)
    engine3(em, rounds, dests, [q_tile(ACC0 + 16 * t, t) for t in range(5)], pro0, bgf=bg0)
    stamp3(em, 9)
    em.wait_lgkm0()
    em.e("s_barrier")
    run(wbd_writes(em, st["n_it"], st["wl"], WBD3, V_CH, V_SM), em)
    if kind == "Q":
        run(conv_qf(em, 10), em)
        em.e("s_barrier")
        em.e(f"""
        s_lshl_b32 s{S_T0}, s{S_M}, 3
        s_lshl_b32 s{S_T0+1}, s{S_WV}, 1
        s_add_u32 s{S_T0}, s{S_T0}, s{S_T0+1}
        s_mul_i32 s{S_OB}, s{S_T0}, 40960
        s_mul_i32 s{S_T0}, s{S_C}, {2*5120}
        s_add_u32 s{S_OB}, s{S_OB}, s{S_T0}
        s_add_u32 s{S_OB}, s{S_OB}, {PQF_OFF}
        """)
        run(chain(em, 5, 10, 4), em)
        def out_fn(em, ri, O):
            tr_, hh = ri >> 1, ri & 1
            em.e(f"s_add_u32 s{S_TMP2}, s{S_OB}, {tr_*40960 + hh*5120}"); yield 1
            for c in range(5):
                em.vm(f"buffer_store_dwordx4 v[{O+4*c}:{O+4*c+3}], v{V_OUT}, s[{S_WS}:{S_WS+3}], s{S_TMP2} offen offset:{c*256}"); yield 3
        run(softmax_rounds(em, [(ri >> 1) * 16 * PITCH + (ri & 1) * 160 for ri in range(4)], out_fn), em)
    else:
        run(kv_epi(em), em)
    stamp3(em, 10)
    em.e("s_endpgm")
    em.label(f"L3_{lab}_h1")
    em.vm_n, em.vm_done, em.lds_n, em.lds_done = save
    GR = 192
    def pro1(em):
        setup3_reads(em)
        setup3_F(em)
    def bg1(em):
        r = Rec()
        if kind == "KV": kv_zero(r, st)
        st["g"] = gate_issue3(r, GR)
        yield from replay(em, r, st)
        yield from gate_bg(em, st["g"], GR, delay=40)
    tiles = [f_tile(64 + 16 * t, 10240, t) for t in range(4)] + [f_tile(128 + 16 * t, 18432, t, f2=True) for t in range(2)]
    engine3(em, rounds, dests, tiles, pro1, gp=True, bgf=bg1)
    stamp3(em, 9)
    if kind == "KV": kv_signal(em, st)
    em.wait_lgkm0()
    em.e("s_barrier")
    st["f"] = frag_issue(em, FSC3, VT + 2)
    em.e("s_barrier")
    f_tail(em, [(64 + 16 * t, S_HB, t * 512) for t in range(4)] + [(128 + 16 * t, S_HB2, t * 512) for t in range(2)],
           bar_after=(OPT.get("b3", 3) if kind == "KV" else None))
    frag_finish(em, st["f"], FSC3, 160)
    stamp3(em, 10)
    em.e("s_endpgm")


def gate_issue3(em, R):
    import k1v2
    old = k1v2.S_TA
    k1v2.S_TA = 84
    try:
        return k1v2.gate_issue(em, R)
    finally:
        k1v2.S_TA = old

def setup_QKV_reads(em, kind):
    a, b, c, d, e = VT, VT + 1, VT + 2, VT + 3, VT + 4
    p_base, v_base, wbd_base = PB3, VB3, WBD3
    em.e(f"""
    v_and_b32 v{a}, 31, v1
    v_lshrrev_b32 v{b}, 5, v1
    s_mul_i32 s{S_T0}, s{S_WV}, {32*PITCH}
    s_add_u32 s{S_T0}, s{S_T0}, {p_base}
    v_mul_u32_u24 v{d}, {PITCH}, v{a}
    v_add_u32 v{d}, s{S_T0}, v{d}
    v_lshl_add_u32 v{V_PW}, v{b}, 3, v{d}
    """)
    if kind == "KV":
        em.e(f"""
        s_mul_i32 s{S_T0+1}, s{S_WV}, {32*200}
        s_add_u32 s{S_T0+1}, s{S_T0+1}, {v_base}
        v_mul_u32_u24 v{d}, 200, v{a}
        v_add_u32 v{d}, s{S_T0+1}, v{d}
        v_lshl_add_u32 v{V_VWA}, v{b}, 3, v{d}
        v_lshl_add_u32 v{V_VWB}, v{b}, 4, v{d}
        """)
    em.e(f"""
    v_and_b32 v{a}, 15, v1
    v_lshrrev_b32 v{b}, 4, v1
    v_mul_u32_u24 v{c}, {PITCH}, v{a}
    v_add_u32 v{c}, s{S_T0}, v{c}
    v_mul_u32_u24 v{d}, 40, v{b}
    v_add_u32 v{V_PR}, v{c}, v{d}
    """)
    if kind == "Q":
        em.e(f"v_mul_u32_u24 v{d}, 1280, v{b}\nv_lshl_add_u32 v{V_OUT}, v{a}, 4, v{d}")
    else:
        em.e(f"v_mul_u32_u24 v{d}, 80, v{b}\nv_add_u32 v{V_OUT}, v{c}, v{d}")
    em.e(f"""
    v_bfe_u32 v{a}, v1, 4, 1
    v_lshrrev_b32 v{b}, 5, v1
    v_bfe_u32 v{c}, v1, 2, 2
    v_and_b32 v{d}, 3, v1
    v_lshlrev_b32 v{a}, 5, v{a}
    v_lshl_add_u32 v{a}, v{d}, 3, v{a}
    v_lshl_add_u32 v{e}, v{b}, 3, v{c}
    v_mul_u32_u24 v{e}, 320, v{e}
    v_add_u32 v{V_TR}, v{e}, v{a}
    v_add_u32 v{V_TR+1}, 0x10000, v{V_TR}
    v_lshl_add_u32 v{e}, v{b}, 2, v{c}
    v_lshl_add_u32 v{e}, v{e}, 6, v{a}
    v_add_u32 v{V_WBD}, {wbd_base}, v{e}
    """)
    if kind == "KV":
        em.e(f"""
        v_lshrrev_b32 v{a}, 4, v1
        v_lshl_add_u32 v{a}, v{a}, 3, v{c}
        v_mul_u32_u24 v{b}, {PITCH}, v{a}
        v_lshl_add_u32 v{b}, v{d}, 3, v{b}
        s_mul_i32 s{S_T0}, s{S_WV}, 80
        s_add_u32 s{S_T0}, s{S_T0}, {p_base}
        v_add_u32 v{V_PHT}, s{S_T0}, v{b}
        v_mul_u32_u24 v{b}, 200, v{a}
        v_lshl_add_u32 v{b}, v{d}, 3, v{b}
        s_mul_i32 s{S_T0+1}, s{S_WV}, 48
        s_add_u32 s{S_T0+1}, s{S_T0+1}, {v_base}
        v_add_u32 v{V_VT}, s{S_T0+1}, v{b}
        """)
    em.e(f"s_mov_b32 s{S_L2E}, {f32bits(LOG2E)}")

def kv_zero(em, st):
    em.e(f"""
    s_mul_i32 s{S_T0}, s{S_C}, 15360
    s_mul_i32 s{S_T0+1}, s{S_M}, 960
    s_add_u32 s{S_T0}, s{S_T0}, s{S_T0+1}
    s_add_u32 s{S_T0}, s{S_T0}, {KVP_OFF}
    v_lshlrev_b32 v{VT}, 4, v0
    v_mov_b32 v{VT+1}, 0x80000000
    v_cmp_gt_u32 vcc, 60, v0
    v_mov_b32 v228, 0
    v_mov_b32 v229, 0
    v_mov_b32 v230, 0
    v_mov_b32 v231, 0
    v_cndmask_b32 v{VT}, v{VT+1}, v{VT}, vcc
    """)
    st["z"] = em.vm(f"buffer_store_dwordx4 v[228:231], v{VT}, s[{S_WS}:{S_WS+3}], s{S_T0} offen sc1")
    em.e("s_nop 1")

def kv_signal(em, st):
    em.wait(vm=st["z"])
    em.e(f"""
    s_lshl_b32 s{S_TMP2}, s{S_C}, 2
    v_mov_b32 v228, 0x80000000
    v_mov_b32 v229, 1
    v_mov_b32 v230, 0
    v_cmp_eq_u32 vcc, 0, v0
    s_nop 1
    v_cndmask_b32 v228, v228, v230, vcc
    """)
    em.vm(f"buffer_atomic_add v229, v228, s[{S_DBG}:{S_DBG+3}], s{S_TMP2} offen sc1")

def kv_epi(em):
    KW, KR, KL, KL2 = V_RD, V_RD + 1, V_RD + 2, V_RD + 3
    em.e(f"""
    v_lshrrev_b32 v{V_SM}, 5, v1
    v_mul_u32_u24 v{V_SM}, 88, v{V_SM}
    v_add_u32 v{V_SM}, v{V_SM}, v{V_VWA}
    v_mov_b32 v{V_SM+2}, 0x3f803f80
    v_mov_b32 v{V_SM+3}, 0x3f803f80
    """)
    em.lds(f"ds_write_b64 v{V_SM}, v[{V_SM+2}:{V_SM+3}] offset:40")
    em.lds(f"ds_write_b64 v{V_SM}, v[{V_SM+2}:{V_SM+3}] offset:88")
    for (t, a) in [(2, 2), (2, 3)] + [(t, a) for t in (3, 4) for a in range(4)]:
        c0 = 32 * t + 8 * a - 80
        p0 = c0 + 4 * (c0 // 20); p1 = (c0 + 4) + 4 * ((c0 + 4) // 20)
        va = V_VWA if p1 - p0 == 4 else V_VWB
        r = ACC0 + 16 * t + 4 * a
        em.e(f"v_cvt_pk_bf16_f32 v{r}, v{r}, v{r+1}")
        em.e(f"v_cvt_pk_bf16_f32 v{r+1}, v{r+2}, v{r+3}")
        em.lds(f"ds_write_b64 v{va}, v[{r}:{r+1}] offset:{p0*2}")
    yield from conv_qf(em, 5)
    yield "BAR"
    yield from chain(em, 3, 5, 2)
    def out_fn(em, ri, O):
        for c in range(5):
            em.last_p = em.lds(f"ds_write_b128 v{V_OUT}, v[{O+4*c}:{O+4*c+3}] offset:{ri*16*PITCH + 16*c}"); yield 3
    yield from softmax_rounds(em, [ri * 16 * PITCH for ri in range(2)], out_fn)
    x0, x1, x2 = V_CH, V_CH + 1, V_CH + 2
    em.e(f"""
    s_add_u32 s{S_TMP2}, s{S_H0}, s{S_WV}
    s_mul_i32 s{S_OB}, s{S_TMP2}, 3840
    s_add_u32 s{S_OB}, s{S_OB}, {KVP_OFF}
    s_mul_i32 s{S_TMP2}, s{S_WV}, 3360
    s_add_u32 s{S_TMP2}, s{S_TMP2}, {KS3}
    v_and_b32 v{x0}, 15, v1
    v_lshrrev_b32 v{x1}, 4, v1
    v_mul_u32_u24 v{x2}, 160, v{x0}
    v_lshl_add_u32 v{x2}, v{x1}, 4, v{x2}
    v_add_u32 v{KW}, s{S_TMP2}, v{x2}
    v_lshlrev_b32 v{KL}, 2, v1
    v_add_u32 v{KR}, s{S_TMP2}, v{KL}
    v_mov_b32 v{x2}, 0x80000000
    v_cmp_gt_u32 s[60:61], 8, v1
    v_cmp_gt_u32 s[62:63], 2, v{x1}
    v_cmp_gt_u32 s[90:91], 5, v{x0}
    v_cndmask_b32 v{KL2}, v{x2}, v{KL}, s[60:61]
    s_and_b64 s[88:89], s[62:63], s[90:91]
    s_lshl_b32 s{S_TMP2}, s{S_C}, 2
    v_mov_b32 v{V_CH}, 0
    """)
    pv = em.vm(f"buffer_load_dword v{V_CH+1}, v{V_CH}, s[{S_DBG}:{S_DBG+3}], s{S_TMP2} offen sc1")
    em.wait(lds=em.last_p)
    yield "BAR"
    KA = ACC0
    def issue(ks):
        b = V_SM + 20 * (ks % 2)
        for a in range(3):
            for hf in range(2):
                em.lds(f"ds_read_b64_tr_b16 v[{b+4*a+2*hf}:{b+4*a+2*hf+1}], v{V_PHT} offset:{(32*ks+4*hf)*PITCH + 32*a}")
        for bb in range(2):
            for hf in range(2):
                last = em.lds(f"ds_read_b64_tr_b16 v[{b+12+4*bb+2*hf}:{b+12+4*bb+2*hf+1}], v{V_VT} offset:{(32*ks+4*hf)*200 + 32*bb}")
        return last
    l0 = issue(0)
    for ks in range(4):
        if ks < 3: l1 = issue(ks + 1)
        em.wait(lds=l0)
        b = V_SM + 20 * (ks % 2)
        for a in range(3):
            for bb in range(2):
                r = KA + 8 * a + 4 * bb
                c = "0" if ks == 0 else f"v[{r}:{r+3}]"
                em.e(f"v_mfma_f32_16x16x32_bf16 v[{r}:{r+3}], v[{b+4*a}:{b+4*a+3}], v[{b+12+4*bb}:{b+12+4*bb+3}], {c}")
        l0 = l1
    for a in range(3):
        for bb in range(2):
            r = KA + 8 * a + 4 * bb
            msk = [[None, "s[90:91]"], [None, "s[90:91]"], ["s[62:63]", "s[88:89]"]][a][bb]
            if msk: em.e(f"s_mov_b64 exec, {msk}")
            lw = em.lds(f"ds_write_b128 v{KW}, v[{r}:{r+3}] offset:{bb*16*160 + a*64}")
            if msk: em.e("s_mov_b64 exec, -1")
    em.wait(lds=lw)
    rr = [em.lds(f"ds_read_b32 v{V_SM+i}, v{KR} offset:{i*256}") for i in range(14)]
    em.wait(vm=pv)
    em.e(f"""
    v_readfirstlane_b32 s{S_DUM}, v{V_CH+1}
    s_cmp_ge_u32 s{S_DUM}, 16
    s_cbranch_scc1 L3_kv_go
    """)
    em.label("L3_kv_poll")
    em.e(f"""
    s_sleep 8
    buffer_load_dword v{V_CH+1}, v{V_CH}, s[{S_DBG}:{S_DBG+3}], s{S_TMP2} offen sc1
    s_waitcnt vmcnt(0)
    v_readfirstlane_b32 s{S_DUM}, v{V_CH+1}
    s_cmp_lt_u32 s{S_DUM}, 16
    s_cbranch_scc1 L3_kv_poll
    """)
    em.label("L3_kv_go")
    for i in range(14):
        em.wait(lds=rr[i])
        em.vm(f"buffer_atomic_add_f32 v{V_SM+i}, v{KL if i < 13 else KL2}, s[{S_WS}:{S_WS+3}], s{S_OB} offen offset:{i*256}")
    yield 1

def gen_pureF(em, with_f2):
    S_FGB = 99
    rounds = [("F", S_FG), ("F", S_FGB)] + ([("MIX", None, 16384, 0)] if with_f2 else [])
    dests = [0, 8192, 0]
    setup3(em, rounds)
    lab = "C" if with_f2 else "D"
    st = {}; GR = 192
    em.e(f"s_cmp_ge_u32 s{S_W8}, 4\ns_cbranch_scc1 L3_{lab}_h1")
    save = (em.vm_n, em.vm_done, em.lds_n, em.lds_done)
    def pro0(em):
        setup3_reads(em); setup3_F(em)
    def bg0(em):
        r = Rec()
        st["g"] = gate_issue3(r, GR)
        yield from replay(em, r, st)
        yield from gate_bg(em, st["g"], GR, delay=30)
    engine3(em, rounds, dests, [f_tile(64 + 16 * t, 0, t) for t in range(4)], pro0, bgf=bg0)
    stamp3(em, 9)
    em.wait_lgkm0()
    em.e("s_barrier")
    st["f"] = frag_issue(em, FSC3, VT + 2)
    f_tail(em, [(64 + 16 * t, S_HB, t * 512) for t in range(4)])
    frag_finish(em, st["f"], FSC3, 160)
    stamp3(em, 10)
    em.e("s_endpgm")
    em.label(f"L3_{lab}_h1")
    em.vm_n, em.vm_done, em.lds_n, em.lds_done = save
    def pro1(em):
        setup3_reads(em); setup3_F(em)
    tiles = [f_tile(64 + 16 * t, 8192, t) for t in range(4)] + ([f_tile(128 + 16 * t, 16384, t, f2=True) for t in range(2)] if with_f2 else [])
    engine3(em, rounds, dests, tiles, pro1, gp=True)
    stamp3(em, 9)
    em.wait_lgkm0()
    em.e("s_barrier")
    f_tail(em, [(64 + 16 * t, S_HB, 2048 + t * 512) for t in range(4)] + ([(128 + 16 * t, S_HB2, t * 512) for t in range(2)] if with_f2 else []))
    stamp3(em, 10)
    em.e("s_endpgm")

def gen_k1():
    em = Em()
    em.raw(".text\n.globl k1_kernel\n.p2align 8\n.type k1_kernel,@function\nk1_kernel:")
    em.e("s_cmp_ge_u32 s2, 256\ns_cbranch_scc1 L_k1_done")
    T0 = S_T0
    em.e(f"""
    s_load_dwordx4 s[40:43], s[0:1], 0
    s_load_dwordx4 s[44:47], s[0:1], 16
    s_load_dwordx4 s[48:51], s[0:1], 40
    s_load_dwordx4 s[52:55], s[0:1], 56
    s_load_dwordx4 s[56:59], s[0:1], 80
    v_lshrrev_b32 v1, 6, v0
    v_and_b32 v0, 255, v0
    v_readfirstlane_b32 s{S_W8}, v1
    s_and_b32 s{T0}, s2, 1
    s_bfe_u32 s{T0+1}, s2, 0x20001
    s_lshr_b32 s{T0+2}, s2, 3
    s_lshl_b32 s{S_M}, s{T0}, 3
    s_and_b32 s{S_WV}, s{S_W8}, 3
    s_and_b32 s{T0+3}, s{T0+2}, 7
    s_add_u32 s{S_M}, s{S_M}, s{T0+3}
    s_lshr_b32 s{T0+2}, s{T0+2}, 3
    """)
    em.wait_lgkm0()
    srd(em, S_X, 40, 2048 * 1280)
    srd(em, S_WS, 58, WS_BYTES)
    srd(em, S_DBG, 56, 256)
    srd(em, S_G, 48, 640 * 3456)
    srd(em, S_U, 50, 640 * 3456)
    srd(em, S_QKV, 42, 640 * 3840)
    srd(em, S_PHI, 44, 32 * 800)
    stamp3(em, 0)
    em.e(f"""
    s_cmp_eq_u32 s{T0+2}, 3
    s_cbranch_scc1 L_k1_F
    s_lshl_b32 s{T0+4}, s{T0+1}, 1
    s_add_u32 s{T0+4}, s{T0+4}, s{T0+2}
    s_sub_u32 s{S_C}, s{T0+4}, 1
    s_add_u32 s{T0+4}, s{T0+4}, 3
    s_cmp_eq_u32 s{T0+2}, 0
    s_cselect_b32 s{S_C}, s{T0+1}, s{S_C}
    s_cselect_b32 s{S_FG}, s{T0+1}, s{T0+4}
    s_lshr_b32 s{S_FG2}, s{S_FG}, 1
    s_add_u32 s{S_FG2}, s{S_FG2}, 20
    s_and_b32 s{S_TOFF}, s{S_FG}, 1
    s_lshl_b32 s{S_TOFF}, s{S_TOFF}, 1
    s_cmp_lg_u32 s{T0+2}, 0
    s_cbranch_scc1 L_k1_KV
    """)
    save = (em.vm_n, em.vm_done, em.lds_n, em.lds_done)
    def restore(): em.vm_n, em.vm_done, em.lds_n, em.lds_done = save
    gen_special(em, "Q")
    em.label("L_k1_KV"); restore()
    gen_special(em, "KV")
    em.label("L_k1_F"); restore()
    em.e(f"""
    s_lshl_b32 s{S_FG}, s{T0+1}, 1
    s_add_u32 s{S_FG}, s{S_FG}, 12
    s_add_u32 s99, s{S_FG}, 1
    s_mov_b32 s{S_FG2}, 26
    s_and_b32 s{S_TOFF}, s{T0+1}, 1
    s_lshl_b32 s{S_TOFF}, s{S_TOFF}, 1
    s_cmp_ge_u32 s{T0+1}, 2
    s_cbranch_scc1 L_k1_F2
    """)
    gen_pureF(em, True)
    em.label("L_k1_F2"); restore()
    gen_pureF(em, False)
    em.label("L_k1_done")
    em.e("s_endpgm")
    return em.finish(), em
```

```python
import sys
import k1v2, k1v3 as k1, k2v2 as k2
k1v2.OPT.update(LA3=3, touch=0, k2nb=3, k2bar=0, k2pre=0, k2prio=1)
if "stamps" in sys.argv: k1v2.OPT["stamps"] = True
for a in sys.argv[1:]:
    if "=" in a:
        k, v = a.split("="); k1v2.OPT[k] = int(v)
b1, e1 = k1.gen_k1()
b2, e2 = k2.gen_k2()
hdr = open("gated_mix__linear_kernel_hedgehog__geglu_ffn__prompt.s.ref").read().split("; Override launch geometry")[0]
hdr += "; @launch kernel=k1_kernel grid=(256,1,1) block=(512,1,1) lds=163840\n"
hdr += "; @launch kernel=k2_kernel grid=(256,1,1) block=(512,1,1) lds=163840\n"
hdr += '.amdgcn_target "amdgcn-amd-amdhsa--gfx950"\n'
KD = k1v2.KD.replace("next_free_sgpr 100", "next_free_sgpr 102")
out = hdr + b1 + "\n" + b2 + "\n" + KD.format(name="k1_kernel", nv=256, ao=256) + KD.format(name="k2_kernel", nv=256, ao=256)
dst = "full_test.s" if "test" in sys.argv else "gated_mix__linear_kernel_hedgehog__geglu_ffn__prompt.s"
out = out.replace("\n    ", "\n ")
open(dst, "w").write(out)
print("k1 nops", e1.nops, "instrs", len(e1.items), "k2 nops", e2.nops, "instrs", len(e2.items), "bytes", len(out))
```

```python
from asmlib import *
import k1v2 as K
from k1v2 import *

S_W8 = 98
S_RS = 100
R_SRD = [40, 44 - 44 + 56, 60 - 60 + 80, 84]
R_OFF = [88, 89, 90, 91]
R_INC = [60, 61, 62, 63]
V_RD = 8
V_XF = 176

WPART = 22528
NWS = 5
XB3 = NWS * WPART
XSL3 = 16384; NXS3 = 3
DUMMY = XB3 + NXS3 * XSL3
S_RM = 62
S_RI = 63

def stamp3(em, k):
    if not OPT["stamps"]: return
    em.e(f"s_memrealtime s[30:31]" if (OPT.get("rt") and k in (0, 10)) else f"s_memtime s[30:31]")
    em.e("s_waitcnt lgkmcnt(0)"); em.lds_done = em.lds_n
    em.e(f"""
    s_lshl_b32 s28, s2, 9
    s_lshl_b32 s29, s{S_W8}, 6
    s_add_u32 s28, s28, s29
    s_add_u32 s28, s28, {STAMP_OFF + 4*k}
    v_mov_b32 v248, s30
    v_mov_b32 v249, 0
    """)
    em.vm(f"buffer_store_dword v248, v249, s[{S_WS}:{S_WS+3}], s28 offen")

def setup3(em, rounds):
    a, b, c, d, e = VT, VT + 1, VT + 2, VT + 3, VT + 4
    em.e(f"""
    v_and_b32 v1, 63, v0
    v_lshrrev_b32 v{a}, 3, v1
    v_and_b32 v{b}, 7, v1
    v_lshrrev_b32 v{c}, 4, v1
    v_xor_b32 v{c}, v{b}, v{c}
    v_lshlrev_b32 v{c}, 4, v{c}
    s_lshl_b32 s{S_T0}, s{S_M}, 7
    s_lshl_b32 s{S_T0+1}, s{S_W8}, 4
    s_add_u32 s{S_T0}, s{S_T0}, s{S_T0+1}
    v_add_u32 v{d}, s{S_T0}, v{a}
    v_mul_u32_u24 v{d}, 1280, v{d}
    v_add_u32 v{V_XD}, v{d}, v{c}
    v_xor_b32 v{c}, 64, v{c}
    v_add_u32 v{V_XD+1}, v{d}, v{c}
    v_add_u32 v{V_XD+1}, {8*1280}, v{V_XD+1}
    s_lshl_b32 s{S_MX}, s{S_W8}, 11
    s_add_u32 s{S_MX}, s{S_MX}, {XB3}
    s_lshl_b32 s{S_MW}, s{S_W8}, 10
    """)
    for r, rd in enumerate(rounds):
        sr = R_SRD[r]
        if rd[0] == "QKV":
            kind, second = rd[1], rd[2]
            em.e(f"""
            s_lshl_b32 s{S_T0}, s{S_W8}, 6
            s_add_u32 s{S_T0}, s{S_T0}, {512 if second else 0}
            v_add_u32 v{a}, s{S_T0}, v1
            v_mul_u32_u24 v{b}, 3277, v{a}
            v_lshrrev_b32 v{b}, 16, v{b}
            v_mul_u32_u24 v{c}, 20, v{b}
            v_sub_u32 v{c}, v{a}, v{c}
            v_mul_u32_u24 v{b}, 3840, v{b}
            v_lshl_add_u32 v{V_RD+r}, v{c}, 4, v{b}
            """)
            if kind == "KV":
                em.e(f"""
                v_cmp_le_u32 vcc, 10, v{c}
                v_add_u32 v{b}, 1120, v{V_RD+r}
                s_nop 0
                v_cndmask_b32 v{V_RD+r}, v{V_RD+r}, v{b}, vcc
                s_mul_i32 s{R_OFF[r]}, s{S_C}, 160
                s_add_u32 s{R_OFF[r]}, s{R_OFF[r]}, 1280
                """)
            else:
                em.e(f"s_mul_i32 s{R_OFF[r]}, s{S_C}, 320")
            if second:
                em.e(f"""
                v_cmp_gt_u32 vcc, 640, v{a}
                v_mov_b32 v{b}, 0x80000000
                s_nop 0
                v_cndmask_b32 v{V_RD+r}, v{b}, v{V_RD+r}, vcc
                """)
            em.e(f"""
            s_mov_b32 s{sr}, s{S_QKV}
            s_mov_b32 s{sr+1}, s{S_QKV+1}
            s_mov_b32 s{sr+2}, {640*3840}
            s_mov_b32 s{sr+3}, 0x00020000
            """)
        elif rd[0] == "MIX":
            kind, f2off, qoff = rd[1], rd[2], rd[3]
            em.e(f"""
            v_lshrrev_b32 v{a}, 2, v1
            v_and_b32 v{b}, 3, v1
            s_and_b32 s{S_T0}, s{S_W8}, 2
            v_xor_b32 v{b}, s{S_T0}, v{b}
            s_and_b32 s{S_T0}, s{S_W8}, 1
            s_lshl_b32 s{S_T0}, s{S_T0}, 4
            v_add_u32 v{a}, s{S_T0}, v{a}
            v_mul_u32_u24 v{a}, 3456, v{a}
            v_lshl_add_u32 v{V_RD+r}, v{b}, 4, v{a}
            s_lshl_b32 s{R_OFF[r]}, s{S_FG2}, 7
            s_lshl_b32 s{S_T0}, s{S_TOFF}, 5
            s_add_u32 s{R_OFF[r]}, s{R_OFF[r]}, s{S_T0}
            s_mov_b32 s{S_RI}, {32*3456}
            s_add_u32 s{S_RM}, s{S_MW}, {f2off}
            s_cmp_lt_u32 s{S_W8}, 2
            s_cselect_b32 s{sr}, s{S_G}, s{S_U}
            s_cselect_b32 s{sr+1}, s{S_G+1}, s{S_U+1}
            s_mov_b32 s{sr+2}, {640*3456}
            s_mov_b32 s{sr+3}, 0x00020000
            """)
            if kind:
                em.e(f"""
                s_lshl_b32 s{S_T0}, s{S_W8}, 6
                s_add_u32 s{S_T0}, s{S_T0}, 256
                v_add_u32 v{a}, s{S_T0}, v1
                v_mul_u32_u24 v{b}, 3277, v{a}
                v_lshrrev_b32 v{b}, 16, v{b}
                v_mul_u32_u24 v{c}, 20, v{b}
                v_sub_u32 v{c}, v{a}, v{c}
                v_mul_u32_u24 v{b}, 3840, v{b}
                v_lshl_add_u32 v{d}, v{c}, 4, v{b}
                """)
                if kind == "KV":
                    em.e(f"""
                    v_cmp_le_u32 vcc, 10, v{c}
                    v_add_u32 v{b}, 1120, v{d}
                    s_nop 0
                    v_cndmask_b32 v{d}, v{d}, v{b}, vcc
                    """)
                em.e(f"""
                s_cmp_ge_u32 s{S_W8}, 4
                s_cselect_b64 vcc, -1, 0
                s_cselect_b32 s{sr}, s{S_QKV}, s{sr}
                s_cselect_b32 s{sr+1}, s{S_QKV+1}, s{sr+1}
                s_cselect_b32 s{sr+2}, {640*3840}, s{sr+2}
                s_cselect_b32 s{R_OFF[r]}, s{R_OFF[0]}, s{R_OFF[r]}
                s_cselect_b32 s{S_RI}, {32*3840}, s{S_RI}
                s_add_u32 s{S_T0}, s{S_MW}, {qoff - 4096}
                s_cmp_ge_u32 s{S_W8}, 4
                s_cselect_b32 s{S_RM}, s{S_T0}, s{S_RM}
                v_cndmask_b32 v{V_RD+r}, v{V_RD+r}, v{d}, vcc
                """)
            lim = 6 if kind else 4
            em.e(f"""
            s_cmp_ge_u32 s{S_W8}, {lim}
            s_cselect_b64 vcc, -1, 0
            v_mov_b32 v{b}, 0x80000000
            s_nop 0
            v_cndmask_b32 v{V_RD+r}, v{V_RD+r}, v{b}, vcc
            """)
        else:
            sg = rd[1]
            em.e(f"""
            v_lshrrev_b32 v{a}, 3, v1
            v_and_b32 v{b}, 7, v1
            v_bfe_u32 v{c}, v1, 4, 1
            v_lshlrev_b32 v{c}, 1, v{c}
            v_xor_b32 v{c}, v{c}, v{b}
            s_and_b32 s{S_T0}, s{S_W8}, 4
            v_xor_b32 v{c}, s{S_T0}, v{c}
            v_lshlrev_b32 v{c}, 4, v{c}
            s_lshl_b32 s{S_T0}, s{S_WV}, 3
            v_add_u32 v{a}, s{S_T0}, v{a}
            v_mul_u32_u24 v{a}, 3456, v{a}
            v_add_u32 v{V_RD+r}, v{a}, v{c}
            s_lshl_b32 s{R_OFF[r]}, s{sg}, 7
            s_cmp_lt_u32 s{S_W8}, 4
            s_cselect_b32 s{sr}, s{S_G}, s{S_U}
            s_cselect_b32 s{sr+1}, s{S_G+1}, s{S_U+1}
            s_mov_b32 s{sr+2}, {640*3456}
            s_mov_b32 s{sr+3}, 0x00020000
            """)

def setup3_reads(em):
    a, b, c, d, e = VT, VT + 1, VT + 2, VT + 3, VT + 4
    em.e(f"""
    v_and_b32 v{a}, 31, v1
    v_lshrrev_b32 v{b}, 5, v1
    v_bfe_u32 v{c}, v1, 1, 3
    v_xor_b32 v{c}, v{c}, v{b}
    v_lshlrev_b32 v{d}, 7, v{a}
    s_lshl_b32 s{S_T0}, s{S_WV}, 12
    s_add_u32 s{S_T0}, s{S_T0}, {XB3}
    v_add_u32 v{d}, s{S_T0}, v{d}
    """)
    for sp in range(4):
        em.e(f"v_xor_b32 v{e}, {2*sp}, v{c}\nv_lshl_add_u32 v{V_XR+sp}, v{e}, 4, v{d}")

def setup3_F(em):
    a, b, c, d, e = VT, VT + 1, VT + 2, VT + 3, VT + 4
    em.e(f"""
    v_bfe_u32 v{a}, v1, 4, 1
    v_lshrrev_b32 v{b}, 5, v1
    v_bfe_u32 v{c}, v1, 2, 2
    v_and_b32 v{d}, 3, v1
    v_lshlrev_b32 v{e}, 12, v{a}
    v_lshl_add_u32 v{e}, v{b}, 10, v{e}
    v_lshl_add_u32 v{e}, v{c}, 7, v{e}
    v_lshl_add_u32 v{e}, v{d}, 3, v{e}
    v_lshrrev_b32 v{c}, 1, v{c}
    v_lshl_or_b32 v{c}, v{a}, 1, v{c}
    """)
    for t in range(4):
        em.e(f"v_xor_b32 v{d}, {t}, v{c}\nv_lshl_add_u32 v{V_FT+t}, v{d}, 5, v{e}\nv_add_u32 v{V_FT+4+t}, 0x10000, v{V_FT+t}")
    em.e(f"""
    s_lshl_b32 s{S_T0}, s{S_WV}, 1
    v_add_u32 v{a}, s{S_T0}, v{a}
    s_mov_b32 s{S_T0+1}, {54*1024}
    v_mul_lo_u32 v{a}, v{a}, s{S_T0+1}
    v_and_b32 v{c}, 15, v1
    v_lshl_add_u32 v{c}, v{b}, 4, v{c}
    v_lshl_add_u32 v{V_FS}, v{c}, 4, v{a}
    s_mul_i32 s{S_HB}, s{S_M}, {8*54*1024}
    s_add_u32 s{S_HB}, s{S_HB}, {HF_OFF}
    s_lshl_b32 s{S_T0}, s{S_FG2}, 11
    s_add_u32 s{S_HB2}, s{S_HB}, s{S_T0}
    s_lshl_b32 s{S_T0}, s{S_TOFF}, 9
    s_add_u32 s{S_HB2}, s{S_HB2}, s{S_T0}
    s_lshl_b32 s{S_T0}, s{S_FG}, 11
    s_add_u32 s{S_HB}, s{S_HB}, s{S_T0}
    v_mov_b32 v{V_GC0}, {f32bits(GC0)}
    v_mov_b32 v{V_PKC}, {f32bits(GC1)}
    v_mov_b32 v{V_PKC+1}, {f32bits(GC1)}
    v_mov_b32 v{V_PKC+2}, {f32bits(GC0)}
    v_mov_b32 v{V_PKC+3}, {f32bits(GC0)}
    v_bfe_u32 v{a}, v1, 4, 1
    v_bfe_u32 v{c}, v1, 2, 2
    v_and_b32 v{d}, 3, v1
    v_lshlrev_b32 v{e}, 11, v{a}
    v_lshl_add_u32 v{e}, v{b}, 9, v{e}
    v_lshl_add_u32 v{e}, v{c}, 6, v{e}
    v_lshl_add_u32 v{e}, v{d}, 3, v{e}
    v_lshl_add_u32 v{V_F2T}, v{a}, 5, v{e}
    v_xor_b32 v{V_F2T+1}, 32, v{V_F2T}
    v_add_u32 v{V_F2T+2}, 0x10000, v{V_F2T}
    v_add_u32 v{V_F2T+3}, 0x10000, v{V_F2T+1}
    """)

def gpf3_setup(em):
    a, b = VT, VT + 1
    P = S_TA
    em.e(f"""
    s_cmp_eq_u32 s{S_WV}, 0
    s_cselect_b32 s{P}, s{S_G}, s{S_U}
    s_cselect_b32 s{P+1}, s{S_G+1}, s{S_U+1}
    s_mov_b32 s{P+2}, {640*3456}
    s_mov_b32 s61, {64*3456}
    s_mul_i32 s60, s2, 864
    s_cmp_eq_u32 s{S_WV}, 2
    s_cselect_b32 s{P}, s{S_QKV}, s{P}
    s_cselect_b32 s{P+1}, s{S_QKV+1}, s{P+1}
    s_cselect_b32 s{P+2}, {640*3840}, s{P+2}
    s_cselect_b32 s61, {64*3840}, s61
    s_mul_i32 s{S_T0}, s2, 960
    s_cselect_b32 s60, s{S_T0}, s60
    s_cmp_eq_u32 s{S_WV}, 3
    s_cselect_b32 s{P}, s{S_X}, s{P}
    s_cselect_b32 s{P+1}, s{S_X+1}, s{P+1}
    s_cselect_b32 s{P+2}, {2048*1280}, s{P+2}
    s_cselect_b32 s61, 128, s61
    s_mul_i32 s{S_T0}, s2, {8*1280}
    s_cselect_b32 s60, s{S_T0}, s60
    s_mov_b32 s{P+3}, 0x00020000
    s_movk_i32 s{S_T0}, 128
    s_cselect_b32 s{S_T0}, 1280, s{S_T0}
    v_mul_lo_u32 v{a}, v1, s{S_T0}
    v_mov_b32 v{b}, 0x80000000
    v_cmp_gt_u32 vcc, 8, v1
    s_nop 1
    v_cndmask_b32 v251, v{b}, v{a}, vcc
    """)
def gpf3_step(em, n=1):
    for _ in range(n):
        em.vm(f"buffer_load_dword v250, v251, s[{S_TA}:{S_TA+3}], s60 offen")
        em.e("s_add_u32 s60, s60, s61")

def engine3(em, rounds, dests, tiles, pro=None, gp=False, bgf=None):
    D = OPT.get('D3', 3)
    NST = 20; PW = NWS - 2; PX = NXS3 - 1
    incs = [32 * 3840 if rd[0] == "QKV" else 32 * 3456 for rd in rounds]
    w_last = {}; x_last = {}
    def issue_w(s):
        if s >= NST: return []
        if OPT.get("nodma") and s > 2:
            w_last[s] = 0; return []
        cl = []
        for r, rd in enumerate(rounds):
            def c(r=r, rd=rd):
                if rd[0] == "MIX":
                    em.e(f"s_add_u32 s{S_TMP}, s{S_RM}, {(s % NWS) * WPART}")
                    em.e(f"s_cmp_lt_u32 s{S_W8}, {6 if rd[1] else 4}")
                    em.e(f"s_cselect_b32 m0, s{S_TMP}, s{S_DUM}")
                    w_last[s] = em.vm(f"buffer_load_dwordx4 v{V_RD+r}, s[{R_SRD[r]}:{R_SRD[r]+3}], s{R_OFF[r]} offen lds")
                    em.e(f"s_add_u32 s{R_OFF[r]}, s{R_OFF[r]}, s{S_RI}")
                    return
                base = (s % NWS) * WPART + dests[r]
                em.e(f"s_add_u32 m0, s{S_MW}, {base}")
                em.e(f"s_add_u32 s{S_TMP}, s{R_OFF[r]}, {s*incs[r]}")
                w_last[s] = em.vm(f"buffer_load_dwordx4 v{V_RD+r}, s[{R_SRD[r]}:{R_SRD[r]+3}], s{S_TMP} offen lds")
            cl.append(c)
        return cl
    def issue_x(i):
        if i >= 10: return []
        if OPT.get("nodma") and i > 1:
            x_last[i] = 0; return []
        cl = []
        for n in range(2):
            def c(n=n):
                em.e(f"s_add_u32 m0, s{S_MX}, {(i % NXS3)*XSL3 + n*1024}")
                em.e(f"s_movk_i32 s{S_TMP}, {i*128}")
                x_last[i] = em.vm(f"buffer_load_dwordx4 v{V_XD+n}, s[{S_X}:{S_X+3}], s{S_TMP} offen lds")
            cl.append(c)
        return cl
    em.e(f"s_and_b32 s{S_DUM}, s{S_MW}, 1024\ns_add_u32 s{S_DUM}, s{S_DUM}, {DUMMY}")
    for c in issue_x(0) + issue_w(0) + issue_w(1) + issue_x(1) + issue_w(2): c()
    if pro: pro(em)
    LA = OPT.get("LA3", 0)
    gp = gp and LA > 0
    if gp:
        gpf3_setup(em)
        em.e("s_add_u32 s60, s60, s61")
        gpf3_step(em, LA - 1)
    T = len(tiles)
    mf = [(s, sp, t) for s in range(NST) for sp in range(2) for t in range(T)]
    N = len(mf)
    NB = len(WFR)
    rd_ = {}; xrd = {}
    pend = []
    bg = BG()
    if bgf: bg.add(bgf(em))
    def need_of(k):
        s, sp, t = mf[k]
        return max(rd_[k], xrd[2 * s + sp])
    for idx in range(-D, N):
        if idx >= 0:
            s, sp, t = mf[idx]
            em.wait(lds=need_of(idx))
            b = WFR[idx % NB]
            a = tiles[t][0]
            k16 = 2 * s + sp
            xr = V_XF + 4 * (k16 % 4)
            c = "0" if k16 == 0 else f"v[{a}:{a+15}]"
            em.e(f"v_mfma_f32_32x32x16_bf16 v[{a}:{a+15}], v[{b}:{b+3}], v[{xr}:{xr+3}], {c}")
        j = idx + D
        if j < N:
            s, sp, t = mf[j]
            if sp == 0 and t == 0:
                while pend: pend.pop(0)()
                need = w_last[s]
                if s % 2 == 0: need = max(need, x_last[s // 2])
                em.wait(vm=need)
                if not (OPT.get("nobar") and s > 0): em.e("s_barrier")
                if s in (0, 1, 5, 10, 15): stamp3(em, {0: 1, 1: 8, 5: 2, 10: 3, 15: 4}[s])
                pend += issue_w(s + PW)
                if gp and s % 2 == 0 and s // 2 + LA < 10: gpf3_step(em)
                if s % 2 == 1: pend += issue_x((s - 1) // 2 + PX)
                for q in range(2):
                    k16 = 2 * s + q
                    xr = V_XF + 4 * (k16 % 4)
                    xrd[k16] = em.lds(f"ds_read_b128 v[{xr}:{xr+3}], v{V_XR + (k16 % 4)} offset:{((s // 2) % NXS3)*XSL3}")
            b = WFR[j % NB]
            for hf in range(2):
                vr, off = tiles[t][1]((s % NWS) * WPART, sp, hf)
                rd_[j] = em.lds(f"ds_read_b64_tr_b16 v[{b+2*hf}:{b+2*hf+1}], v{vr} offset:{off}")
        if pend: pend.pop(0)()
        elif idx >= 0: bg.step(em, 3)
    bg.drain(em)

def f_tile(acc, part_off, t, f2=False):
    def fn(sb, sp, hf):
        off = sb + part_off + (sp * 1024 + hf * 256 if f2 else sp * 2048 + hf * 512)
        base = V_F2T if f2 else V_FT
        hi = 2 if f2 else 4
        if off >= 65536: return (base + hi + t, off - 65536)
        return (base + t, off)
    return (acc, fn)

def q_tile(acc, t):
    def fn(sb, sp, hf):
        off = sb + (16 * sp + 4 * hf) * 320 + t * 64
        if off >= 65536: return (V_TR + 1, off - 65536)
        return (V_TR, off)
    return (acc, fn)


class Rec:
    def __init__(self): self.ops = []; self.n = 0
    def e(self, text):
        for t in text.split("\n"):
            t = t.strip()
            if t: self.ops.append(("e", t, None))
    def vm(self, text):
        self.n += 1; self.ops.append(("vm", text, self.n)); return ("rec", self.n)
    def lds(self, text):
        self.n += 1; self.ops.append(("lds", text, self.n)); return ("rec", self.n)

def replay(em, rec, st):
    m = {}
    hold = False
    for kind, t, n in rec.ops:
        if kind == "e": em.e(t)
        elif kind == "vm": m[n] = em.vm(t)
        else: m[n] = em.lds(t)
        op = t.split()[0]
        if op.startswith("s_cmp"): hold = True
        elif hold and not (op.startswith("s_cselect") or op.startswith("s_mov") or op.startswith("s_mul") or op.startswith("s_movk")): hold = False
        if not hold: yield (3 if kind != "e" else 1)
    for k, v in list(st.items()):
        if isinstance(v, tuple) and v and v[0] == "rec": st[k] = m[v[1]]

def run(gen, em):
    for c in gen:
        if c == "BAR": em.e("s_barrier")

def f_tail(em, specs, bar_after=None):
    for n, (acc, sb, off) in enumerate(specs):
        run(f_epilogue_tile(em, acc, off, 160 + 16 * (n & 1), sb), em)
        if bar_after == n: em.e("s_barrier")

WBD3 = 0; PB3 = 20480; VB3 = PB3 + 4 * 32 * PITCH; KS3 = VB3 + 4 * 32 * 200; FSC3 = KS3 + 4 * 3360 + 64

def gen_special(em, kind):
    rounds = [("QKV", kind, 0), ("F", S_FG), ("MIX", kind, 18432, 8192)]
    dests = [0, 10240, 0]
    setup3(em, rounds)
    lab = "Q" if kind == "Q" else "KV"
    em.e(f"s_cmp_ge_u32 s{S_W8}, 4\ns_cbranch_scc1 L3_{lab}_h1")
    save = (em.vm_n, em.vm_done, em.lds_n, em.lds_done)
    st = {}
    nblk = 18 if kind == "Q" else 9
    def pro0(em):
        setup3_reads(em)
        setup_QKV_reads(em, kind)
    def bg0(em):
        r = Rec()
        r.e(f"s_lshl_b32 s{S_H0}, s{S_C}, {3 if kind == 'Q' else 2}")
        st["wl"], st["n_it"] = wbd_loads(r, nblk, 200, V_CH)
        yield from replay(em, r, st)
    engine3(em, rounds, dests, [q_tile(ACC0 + 16 * t, t) for t in range(5)], pro0, bgf=bg0)
    stamp3(em, 9)
    em.wait_lgkm0()
    em.e("s_barrier")
    run(wbd_writes(em, st["n_it"], st["wl"], WBD3, V_CH, V_SM), em)
    if kind == "Q":
        run(conv_qf(em, 10), em)
        em.e("s_barrier")
        run(chain(em, 5, 10, 4), em)
        em.e(f"""
        s_lshl_b32 s{S_T0}, s{S_M}, 7
        s_lshl_b32 s{S_T0+1}, s{S_WV}, 5
        s_add_u32 s{S_T0}, s{S_T0}, s{S_T0+1}
        s_mul_i32 s{S_OB}, s{S_T0}, 1280
        s_mul_i32 s{S_T0}, s{S_C}, 320
        s_add_u32 s{S_OB}, s{S_OB}, s{S_T0}
        s_add_u32 s{S_OB}, s{S_OB}, {PQF_OFF}
        s_mul_i32 s{S_T0}, s{S_WV}, {32*PITCH}
        s_add_u32 s{S_T0}, s{S_T0}, {PB3}
        """)
        a_, b_, c_ = VT, VT + 1, VT + 2
        for i in range(10):
            em.e(f"""
            v_add_u32 v{a_}, {64*i}, v1
            v_mul_u32_u24 v{b_}, 3277, v{a_}
            v_lshrrev_b32 v{b_}, 16, v{b_}
            v_mul_u32_u24 v{c_}, 20, v{b_}
            v_sub_u32 v{c_}, v{a_}, v{c_}
            v_lshlrev_b32 v{c_}, 4, v{c_}
            v_mul_u32_u24 v{a_}, {PITCH}, v{b_}
            v_add3_u32 v{V_SM+40+i}, v{a_}, v{c_}, s{S_T0}
            v_mul_u32_u24 v{b_}, 1280, v{b_}
            v_add_u32 v{V_SM+50+i}, v{b_}, v{c_}
            """)
        em.wait(lds=em.last_p)
        ids = [em.lds(f"ds_read_b128 v[{V_SM+4*i}:{V_SM+4*i+3}], v{V_SM+40+i}") for i in range(10)]
        for i in range(10):
            em.wait(lds=ids[i])
            em.vm(f"buffer_store_dwordx4 v[{V_SM+4*i}:{V_SM+4*i+3}], v{V_SM+50+i}, s[{S_WS}:{S_WS+3}], s{S_OB} offen")
    else:
        run(kv_epi(em), em)
    stamp3(em, 10)
    em.e("s_endpgm")
    em.label(f"L3_{lab}_h1")
    em.vm_n, em.vm_done, em.lds_n, em.lds_done = save
    GR = 192
    def pro1(em):
        setup3_reads(em)
        setup3_F(em)
    def bg1(em):
        r = Rec()
        if kind == "KV": kv_zero(r, st)
        st["g"] = gate_issue3(r, GR)
        yield from replay(em, r, st)
        yield from gate_bg(em, st["g"], GR, delay=40)
        if kind == "KV":
            kv_signal(em, st); yield 8
    tiles = [f_tile(64 + 16 * t, 10240, t) for t in range(4)] + [f_tile(128 + 16 * t, 18432, t, f2=True) for t in range(2)]
    engine3(em, rounds, dests, tiles, pro1, gp=True, bgf=bg1)
    stamp3(em, 9)
    em.wait_lgkm0()
    em.e("s_barrier")
    st["f"] = frag_issue(em, FSC3, VT + 2)
    em.e("s_barrier")
    f_tail(em, [(64 + 16 * t, S_HB, t * 512) for t in range(4)] + [(128 + 16 * t, S_HB2, t * 512) for t in range(2)],
           bar_after=(OPT.get("b3", 3) if kind == "KV" else None))
    frag_finish(em, st["f"], FSC3, 160)
    stamp3(em, 10)
    em.e("s_endpgm")


def gate_issue3(em, R):
    import k1v2
    old = k1v2.S_TA
    k1v2.S_TA = 84
    try:
        return k1v2.gate_issue(em, R)
    finally:
        k1v2.S_TA = old

def setup_QKV_reads(em, kind):
    a, b, c, d, e = VT, VT + 1, VT + 2, VT + 3, VT + 4
    p_base, v_base, wbd_base = PB3, VB3, WBD3
    em.e(f"""
    v_and_b32 v{a}, 31, v1
    v_lshrrev_b32 v{b}, 5, v1
    s_mul_i32 s{S_T0}, s{S_WV}, {32*PITCH}
    s_add_u32 s{S_T0}, s{S_T0}, {p_base}
    v_mul_u32_u24 v{d}, {PITCH}, v{a}
    v_add_u32 v{d}, s{S_T0}, v{d}
    v_lshl_add_u32 v{V_PW}, v{b}, 3, v{d}
    """)
    if kind == "KV":
        em.e(f"""
        s_mul_i32 s{S_T0+1}, s{S_WV}, {32*200}
        s_add_u32 s{S_T0+1}, s{S_T0+1}, {v_base}
        v_mul_u32_u24 v{d}, 200, v{a}
        v_add_u32 v{d}, s{S_T0+1}, v{d}
        v_lshl_add_u32 v{V_VWA}, v{b}, 3, v{d}
        v_lshl_add_u32 v{V_VWB}, v{b}, 4, v{d}
        """)
    em.e(f"""
    v_and_b32 v{a}, 15, v1
    v_lshrrev_b32 v{b}, 4, v1
    v_mul_u32_u24 v{c}, {PITCH}, v{a}
    v_add_u32 v{c}, s{S_T0}, v{c}
    v_mul_u32_u24 v{d}, 40, v{b}
    v_add_u32 v{V_PR}, v{c}, v{d}
    """)
    if kind == "Q":
        em.e(f"v_mul_u32_u24 v{d}, 1280, v{b}\nv_lshl_add_u32 v{V_OUT}, v{a}, 4, v{d}")
    else:
        em.e(f"v_mul_u32_u24 v{d}, 80, v{b}\nv_add_u32 v{V_OUT}, v{c}, v{d}")
    em.e(f"""
    v_bfe_u32 v{a}, v1, 4, 1
    v_lshrrev_b32 v{b}, 5, v1
    v_bfe_u32 v{c}, v1, 2, 2
    v_and_b32 v{d}, 3, v1
    v_lshlrev_b32 v{a}, 5, v{a}
    v_lshl_add_u32 v{a}, v{d}, 3, v{a}
    v_lshl_add_u32 v{e}, v{b}, 3, v{c}
    v_mul_u32_u24 v{e}, 320, v{e}
    v_add_u32 v{V_TR}, v{e}, v{a}
    v_add_u32 v{V_TR+1}, 0x10000, v{V_TR}
    v_lshl_add_u32 v{e}, v{b}, 2, v{c}
    v_lshl_add_u32 v{e}, v{e}, 6, v{a}
    v_add_u32 v{V_WBD}, {wbd_base}, v{e}
    """)
    if kind == "KV":
        em.e(f"""
        v_lshrrev_b32 v{a}, 4, v1
        v_lshl_add_u32 v{a}, v{a}, 3, v{c}
        v_mul_u32_u24 v{b}, {PITCH}, v{a}
        v_lshl_add_u32 v{b}, v{d}, 3, v{b}
        s_mul_i32 s{S_T0}, s{S_WV}, 80
        s_add_u32 s{S_T0}, s{S_T0}, {p_base}
        v_add_u32 v{V_PHT}, s{S_T0}, v{b}
        v_mul_u32_u24 v{b}, 200, v{a}
        v_lshl_add_u32 v{b}, v{d}, 3, v{b}
        s_mul_i32 s{S_T0+1}, s{S_WV}, 48
        s_add_u32 s{S_T0+1}, s{S_T0+1}, {v_base}
        v_add_u32 v{V_VT}, s{S_T0+1}, v{b}
        """)
    em.e(f"s_mov_b32 s{S_L2E}, {f32bits(LOG2E)}")

def kv_zero(em, st):
    em.e(f"""
    s_mul_i32 s{S_T0}, s{S_C}, 15360
    s_mul_i32 s{S_T0+1}, s{S_M}, 960
    s_add_u32 s{S_T0}, s{S_T0}, s{S_T0+1}
    s_add_u32 s{S_T0}, s{S_T0}, {KVP_OFF}
    v_lshlrev_b32 v{VT}, 4, v0
    v_mov_b32 v{VT+1}, 0x80000000
    v_cmp_gt_u32 vcc, 60, v0
    v_mov_b32 v228, 0
    v_mov_b32 v229, 0
    v_mov_b32 v230, 0
    v_mov_b32 v231, 0
    v_cndmask_b32 v{VT}, v{VT+1}, v{VT}, vcc
    """)
    st["z"] = em.vm(f"buffer_store_dwordx4 v[228:231], v{VT}, s[{S_WS}:{S_WS+3}], s{S_T0} offen sc1")
    em.e("s_nop 1")

def kv_signal(em, st):
    em.wait(vm=st["z"])
    em.e(f"""
    s_lshl_b32 s{S_TMP2}, s{S_C}, 2
    v_mov_b32 v228, 0x80000000
    v_mov_b32 v229, 1
    v_mov_b32 v230, 0
    v_cmp_eq_u32 vcc, 0, v0
    s_nop 1
    v_cndmask_b32 v228, v228, v230, vcc
    """)
    em.vm(f"buffer_atomic_add v229, v228, s[{S_DBG}:{S_DBG+3}], s{S_TMP2} offen sc1")

def kv_epi(em):
    KW, KR, KL, KL2 = V_RD, V_RD + 1, V_RD + 2, V_RD + 3
    em.e(f"""
    v_lshrrev_b32 v{V_SM}, 5, v1
    v_mul_u32_u24 v{V_SM}, 88, v{V_SM}
    v_add_u32 v{V_SM}, v{V_SM}, v{V_VWA}
    v_mov_b32 v{V_SM+2}, 0x3f803f80
    v_mov_b32 v{V_SM+3}, 0x3f803f80
    """)
    em.lds(f"ds_write_b64 v{V_SM}, v[{V_SM+2}:{V_SM+3}] offset:40")
    em.lds(f"ds_write_b64 v{V_SM}, v[{V_SM+2}:{V_SM+3}] offset:88")
    for (t, a) in [(2, 2), (2, 3)] + [(t, a) for t in (3, 4) for a in range(4)]:
        c0 = 32 * t + 8 * a - 80
        p0 = c0 + 4 * (c0 // 20); p1 = (c0 + 4) + 4 * ((c0 + 4) // 20)
        va = V_VWA if p1 - p0 == 4 else V_VWB
        r = ACC0 + 16 * t + 4 * a
        em.e(f"v_cvt_pk_bf16_f32 v{r}, v{r}, v{r+1}")
        em.e(f"v_cvt_pk_bf16_f32 v{r+1}, v{r+2}, v{r+3}")
        em.lds(f"ds_write_b64 v{va}, v[{r}:{r+1}] offset:{p0*2}")
    yield from conv_qf(em, 5)
    yield "BAR"
    stamp3(em, 5)
    yield from chain(em, 3, 5, 2)
    stamp3(em, 6)
    def out_fn(em, ri, O):
        for c in range(5):
            em.last_p = em.lds(f"ds_write_b128 v{V_OUT}, v[{O+4*c}:{O+4*c+3}] offset:{ri*16*PITCH + 16*c}"); yield 3
    yield from softmax_rounds(em, [ri * 16 * PITCH for ri in range(2)], out_fn)
    em.wait(lds=em.last_p)
    stamp3(em, 7)
    x0, x1, x2 = V_CH, V_CH + 1, V_CH + 2
    em.e(f"""
    s_add_u32 s{S_TMP2}, s{S_H0}, s{S_WV}
    s_mul_i32 s{S_OB}, s{S_TMP2}, 3840
    s_add_u32 s{S_OB}, s{S_OB}, {KVP_OFF}
    s_mul_i32 s{S_TMP2}, s{S_WV}, 3360
    s_add_u32 s{S_TMP2}, s{S_TMP2}, {KS3}
    v_and_b32 v{x0}, 15, v1
    v_lshrrev_b32 v{x1}, 4, v1
    v_mul_u32_u24 v{x2}, 160, v{x0}
    v_lshl_add_u32 v{x2}, v{x1}, 4, v{x2}
    v_add_u32 v{KW}, s{S_TMP2}, v{x2}
    v_lshlrev_b32 v{KL}, 2, v1
    v_add_u32 v{KR}, s{S_TMP2}, v{KL}
    v_mov_b32 v{x2}, 0x80000000
    v_cmp_gt_u32 s[60:61], 8, v1
    v_cmp_gt_u32 s[62:63], 2, v{x1}
    v_cmp_gt_u32 s[90:91], 5, v{x0}
    v_cndmask_b32 v{KL2}, v{x2}, v{KL}, s[60:61]
    s_and_b64 s[88:89], s[62:63], s[90:91]
    s_lshl_b32 s{S_TMP2}, s{S_C}, 2
    v_mov_b32 v{V_CH}, 0
    """)
    pv = em.vm(f"buffer_load_dword v{V_CH+1}, v{V_CH}, s[{S_DBG}:{S_DBG+3}], s{S_TMP2} offen sc1")
    em.wait(lds=em.last_p)
    yield "BAR"
    stamp3(em, 11)
    KA = ACC0
    def issue(ks):
        b = V_SM + 20 * (ks % 2)
        for a in range(3):
            for hf in range(2):
                em.lds(f"ds_read_b64_tr_b16 v[{b+4*a+2*hf}:{b+4*a+2*hf+1}], v{V_PHT} offset:{(32*ks+4*hf)*PITCH + 32*a}")
        for bb in range(2):
            for hf in range(2):
                last = em.lds(f"ds_read_b64_tr_b16 v[{b+12+4*bb+2*hf}:{b+12+4*bb+2*hf+1}], v{V_VT} offset:{(32*ks+4*hf)*200 + 32*bb}")
        return last
    l0 = issue(0)
    for ks in range(4):
        if ks < 3: l1 = issue(ks + 1)
        em.wait(lds=l0)
        b = V_SM + 20 * (ks % 2)
        for a in range(3):
            for bb in range(2):
                r = KA + 8 * a + 4 * bb
                c = "0" if ks == 0 else f"v[{r}:{r+3}]"
                em.e(f"v_mfma_f32_16x16x32_bf16 v[{r}:{r+3}], v[{b+4*a}:{b+4*a+3}], v[{b+12+4*bb}:{b+12+4*bb+3}], {c}")
        l0 = l1
    for a in range(3):
        for bb in range(2):
            r = KA + 8 * a + 4 * bb
            msk = [[None, "s[90:91]"], [None, "s[90:91]"], ["s[62:63]", "s[88:89]"]][a][bb]
            if msk: em.e(f"s_mov_b64 exec, {msk}")
            lw = em.lds(f"ds_write_b128 v{KW}, v[{r}:{r+3}] offset:{bb*16*160 + a*64}")
            if msk: em.e("s_mov_b64 exec, -1")
    em.wait(lds=lw)
    stamp3(em, 12)
    rr = [em.lds(f"ds_read_b32 v{V_SM+i}, v{KR} offset:{i*256}") for i in range(14)]
    em.wait(vm=pv)
    em.e(f"""
    v_readfirstlane_b32 s{S_DUM}, v{V_CH+1}
    s_cmp_ge_u32 s{S_DUM}, 16
    s_cbranch_scc1 L3_kv_go
    """)
    em.label("L3_kv_poll")
    em.e(f"""
    s_sleep 8
    buffer_load_dword v{V_CH+1}, v{V_CH}, s[{S_DBG}:{S_DBG+3}], s{S_TMP2} offen sc1
    s_waitcnt vmcnt(0)
    v_readfirstlane_b32 s{S_DUM}, v{V_CH+1}
    s_cmp_lt_u32 s{S_DUM}, 16
    s_cbranch_scc1 L3_kv_poll
    """)
    em.label("L3_kv_go")
    for i in range(14):
        em.wait(lds=rr[i])
        em.vm(f"buffer_atomic_add_f32 v{V_SM+i}, v{KL if i < 13 else KL2}, s[{S_WS}:{S_WS+3}], s{S_OB} offen offset:{i*256}")
    yield 1

def gen_pureF(em, with_f2):
    S_FGB = 99
    rounds = [("F", S_FG), ("F", S_FGB)] + ([("MIX", None, 16384, 0)] if with_f2 else [])
    dests = [0, 8192, 0]
    setup3(em, rounds)
    lab = "C" if with_f2 else "D"
    st = {}; GR = 192
    em.e(f"s_cmp_ge_u32 s{S_W8}, 4\ns_cbranch_scc1 L3_{lab}_h1")
    save = (em.vm_n, em.vm_done, em.lds_n, em.lds_done)
    def pro0(em):
        setup3_reads(em); setup3_F(em)
    def bg0(em):
        r = Rec()
        st["g"] = gate_issue3(r, GR)
        yield from replay(em, r, st)
        yield from gate_bg(em, st["g"], GR, delay=30)
    engine3(em, rounds, dests, [f_tile(64 + 16 * t, 0, t) for t in range(4)], pro0, bgf=bg0)
    stamp3(em, 9)
    em.wait_lgkm0()
    em.e("s_barrier")
    st["f"] = frag_issue(em, FSC3, VT + 2)
    f_tail(em, [(64 + 16 * t, S_HB, t * 512) for t in range(4)])
    frag_finish(em, st["f"], FSC3, 160)
    stamp3(em, 10)
    em.e("s_endpgm")
    em.label(f"L3_{lab}_h1")
    em.vm_n, em.vm_done, em.lds_n, em.lds_done = save
    def pro1(em):
        setup3_reads(em); setup3_F(em)
    tiles = [f_tile(64 + 16 * t, 8192, t) for t in range(4)] + ([f_tile(128 + 16 * t, 16384, t, f2=True) for t in range(2)] if with_f2 else [])
    engine3(em, rounds, dests, tiles, pro1, gp=True)
    stamp3(em, 9)
    em.wait_lgkm0()
    em.e("s_barrier")
    f_tail(em, [(64 + 16 * t, S_HB, 2048 + t * 512) for t in range(4)] + ([(128 + 16 * t, S_HB2, t * 512) for t in range(2)] if with_f2 else []))
    stamp3(em, 10)
    em.e("s_endpgm")

def gen_k1():
    em = Em()
    em.raw(".text\n.globl k1_kernel\n.p2align 8\n.type k1_kernel,@function\nk1_kernel:")
    em.e("s_cmp_ge_u32 s2, 256\ns_cbranch_scc1 L_k1_done")
    T0 = S_T0
    em.e(f"""
    s_load_dwordx4 s[40:43], s[0:1], 0
    s_load_dwordx4 s[44:47], s[0:1], 16
    s_load_dwordx4 s[48:51], s[0:1], 40
    s_load_dwordx4 s[52:55], s[0:1], 56
    s_load_dwordx4 s[56:59], s[0:1], 80
    v_lshrrev_b32 v1, 6, v0
    v_and_b32 v0, 255, v0
    v_readfirstlane_b32 s{S_W8}, v1
    s_and_b32 s{T0}, s2, 1
    s_bfe_u32 s{T0+1}, s2, 0x20001
    s_lshr_b32 s{T0+2}, s2, 3
    s_lshl_b32 s{S_M}, s{T0}, 3
    s_and_b32 s{S_WV}, s{S_W8}, 3
    s_and_b32 s{T0+3}, s{T0+2}, 7
    s_add_u32 s{S_M}, s{S_M}, s{T0+3}
    s_lshr_b32 s{T0+2}, s{T0+2}, 3
    """)
    if OPT.get("codepf"):
        em.e(f"""
        s_getpc_b64 s[28:29]
        s_lshr_b32 s30, s2, 3
        s_mul_i32 s30, s30, 3584
        s_and_b32 s28, s28, 0xffffff00
        s_add_u32 s28, s28, s30
        s_addc_u32 s29, s29, 0
        v_and_b32 v2, 63, v0
        v_min_u32 v2, 27, v2
        v_lshlrev_b32 v2, 7, v2
        s_cmp_lg_u32 s{S_W8}, 7
        s_cbranch_scc1 L_k1_nocp
        global_load_dword v250, v2, s[28:29]
        """)
        em.label("L_k1_nocp")
    em.wait_lgkm0()
    srd(em, S_X, 40, 2048 * 1280)
    srd(em, S_WS, 58, WS_BYTES)
    srd(em, S_DBG, 56, 256)
    srd(em, S_G, 48, 640 * 3456)
    srd(em, S_U, 50, 640 * 3456)
    srd(em, S_QKV, 42, 640 * 3840)
    srd(em, S_PHI, 44, 32 * 800)
    stamp3(em, 0)
    em.e(f"""
    s_cmp_eq_u32 s{T0+2}, 3
    s_cbranch_scc1 L_k1_F
    s_lshl_b32 s{T0+4}, s{T0+1}, 1
    s_add_u32 s{T0+4}, s{T0+4}, s{T0+2}
    s_sub_u32 s{S_C}, s{T0+4}, 1
    s_add_u32 s{T0+4}, s{T0+4}, 3
    s_cmp_eq_u32 s{T0+2}, 0
    s_cselect_b32 s{S_C}, s{T0+1}, s{S_C}
    s_cselect_b32 s{S_FG}, s{T0+1}, s{T0+4}
    s_lshr_b32 s{S_FG2}, s{S_FG}, 1
    s_add_u32 s{S_FG2}, s{S_FG2}, 20
    s_and_b32 s{S_TOFF}, s{S_FG}, 1
    s_lshl_b32 s{S_TOFF}, s{S_TOFF}, 1
    s_cmp_lg_u32 s{T0+2}, 0
    s_cbranch_scc1 L_k1_KV
    """)
    save = (em.vm_n, em.vm_done, em.lds_n, em.lds_done)
    def restore(): em.vm_n, em.vm_done, em.lds_n, em.lds_done = save
    gen_special(em, "Q")
    em.label("L_k1_KV"); restore()
    gen_special(em, "KV")
    em.label("L_k1_F"); restore()
    em.e(f"""
    s_lshl_b32 s{S_FG}, s{T0+1}, 1
    s_add_u32 s{S_FG}, s{S_FG}, 12
    s_add_u32 s99, s{S_FG}, 1
    s_mov_b32 s{S_FG2}, 26
    s_and_b32 s{S_TOFF}, s{T0+1}, 1
    s_lshl_b32 s{S_TOFF}, s{S_TOFF}, 1
    s_cmp_ge_u32 s{T0+1}, 2
    s_cbranch_scc1 L_k1_F2
    """)
    gen_pureF(em, True)
    em.label("L_k1_F2"); restore()
    gen_pureF(em, False)
    em.label("L_k1_done")
    em.e("s_endpgm")
    return em.finish(), em
```

```python
from asmlib import *
import k1v2 as k1
from k1v2 import HF_OFF, PQF_OFF, WDF_OFF, OF_OFF, KVP_OFF, G_OFF, FLAG_OFF, WS_BYTES, f32bits, srd

S_WS2 = 4; S_OUT = 8
S_WV2 = 16; S_MT = 17; S_NT = 18; S_A0 = 19; S_B0 = 20; S_U = 21
T = 24
ACC = 16
BUF = 96
NBUF = 4

def stamp2(em, k):
    if not k1.OPT['stamps']: return
    em.e(f"s_memrealtime s[60:61]" if (k1.OPT.get("rt") and k in (0, 9)) else f"s_memtime s[60:61]")
    em.e("s_waitcnt lgkmcnt(0)"); em.lds_done = em.lds_n
    em.e(f"""
    s_lshl_b32 s62, s2, 9
    s_lshl_b32 s63, s{S_WV2}, 6
    s_add_u32 s62, s62, s63
    s_add_u32 s62, s62, {0x14A0000 + 4*k}
    v_mov_b32 v250, s60
    v_mov_b32 v251, 0
    """)
    em.vm(f"buffer_store_dword v250, v251, s[{S_WS2}:{S_WS2+3}], s62 offen")

def stream(em, nsteps, b_tt_stride, b_sc1, gate=None, last_optional=None, NBUF=4):
    ids = {}
    def issue_a(s):
        b = BUF + 36 * (s % NBUF)
        em.e(f"s_add_u32 s{T}, s{S_A0}, {s*5120}")
        for j in range(4):
            em.vm(f"buffer_load_dwordx4 v[{b+4*j}:{b+4*j+3}], v2, s[{S_WS2}:{S_WS2+3}], s{T} offen offset:{j*1024}")
        em.e(f"s_add_u32 s{T}, s{T}, 4096")
        return em.vm(f"buffer_load_dwordx4 v[{b+16}:{b+19}], v2, s[{S_WS2}:{S_WS2+3}], s{T} offen")
    def issue_b(s):
        b = BUF + 36 * (s % NBUF) + 20
        for tt in range(4):
            em.e(f"s_add_u32 s{T}, s{S_B0}, {s*1024 + tt*b_tt_stride}")
            last = em.vm(f"buffer_load_dwordx4 v[{b+4*tt}:{b+4*tt+3}], v2, s[{S_WS2}:{S_WS2+3}], s{T} offen{' sc1' if b_sc1 else ''}")
        return last
    npre = min(NBUF, nsteps)
    if gate is None:
        for s in range(npre):
            if s == k1.OPT.get("k2pre", 0): em.e("s_barrier")
            issue_a(s); ids[s] = issue_b(s)
    else:
        gate(em)
        for s in range(npre):
            issue_a(s); ids[s] = issue_b(s)
    for s in range(nsteps):
        if last_optional and s == nsteps - 1:
            em.e(f"s_cmp_eq_u32 s{T+6}, 0\ns_cbranch_scc1 {last_optional}")
        em.wait(vm=ids[s])
        if s == 0: stamp2(em, 5)
        if s == 4: stamp2(em, 6)
        b = BUF + 36 * (s % NBUF)
        for j in range(5):
            for tt in range(4):
                a = ACC + 4 * (4 * j + tt)
                c = "0" if s == 0 else f"v[{a}:{a+3}]"
                em.e(f"v_mfma_f32_16x16x32_bf16 v[{a}:{a+3}], v[{b+4*j}:{b+4*j+3}], v[{b+20+4*tt}:{b+20+4*tt+3}], {c}")
        if s + NBUF < nsteps:
            issue_a(s + NBUF); ids[s + NBUF] = issue_b(s + NBUF)


def softmax_regs(em, R):
    PK = R; P = R + 10; E = R + 30; Tm = R + 50; O = R + 56
    L = T + 8
    em.e(f"s_mov_b32 s{L}, {f32bits(1.4426950408889634)}")
    for i in range(10):
        em.e(f"v_lshlrev_b32 v{P+2*i}, 16, v{PK+i}\nv_and_b32 v{P+2*i+1}, 0xffff0000, v{PK+i}")
    mx, mn, mx2, mn2 = Tm, Tm + 1, Tm + 2, Tm + 3
    em.e(f"""v_max3_f32 v{mx}, v{P}, v{P+1}, v{P+2}
    v_min3_f32 v{mn}, v{P}, v{P+1}, v{P+2}
    v_max3_f32 v{mx2}, v{P+3}, v{P+4}, v{P+5}
    v_min3_f32 v{mn2}, v{P+3}, v{P+4}, v{P+5}""")
    for i in range(6, 18, 4):
        em.e(f"""v_max3_f32 v{mx}, v{mx}, v{P+i}, v{P+i+1}
        v_min3_f32 v{mn}, v{mn}, v{P+i}, v{P+i+1}
        v_max3_f32 v{mx2}, v{mx2}, v{P+i+2}, v{P+i+3}
        v_min3_f32 v{mn2}, v{mn2}, v{P+i+2}, v{P+i+3}""")
    em.e(f"""v_max3_f32 v{mx}, v{mx}, v{P+18}, v{P+19}
    v_min3_f32 v{mn}, v{mn}, v{P+18}, v{P+19}
    v_max_f32 v{mx}, v{mx}, v{mx2}
    v_min_f32 v{mn}, v{mn}, v{mn2}
    v_mul_f32 v{mx}, s{L}, v{mx}
    v_mul_f32 v{mn}, s{L}, v{mn}""")
    for i in range(0, 20, 2):
        em.e(f"""v_fma_f32 v{E+i}, -v{P+i}, s{L}, v{mn}
        v_fma_f32 v{P+i}, v{P+i}, s{L}, -v{mx}
        v_fma_f32 v{E+i+1}, -v{P+i+1}, s{L}, v{mn}
        v_fma_f32 v{P+i+1}, v{P+i+1}, s{L}, -v{mx}
        v_exp_f32 v{E+i}, v{E+i}
        v_exp_f32 v{P+i}, v{P+i}
        v_exp_f32 v{E+i+1}, v{E+i+1}
        v_exp_f32 v{P+i+1}, v{P+i+1}""")
    sp, sn_, sp2, sn2 = Tm, Tm + 1, Tm + 2, Tm + 3
    em.e(f"""v_add_f32 v{sp}, v{P}, v{P+1}
    v_add_f32 v{sn_}, v{E}, v{E+1}
    v_add_f32 v{sp2}, v{P+2}, v{P+3}
    v_add_f32 v{sn2}, v{E+2}, v{E+3}""")
    for i in range(4, 20, 2):
        em.e(f"""v_add_f32 v{sp}, v{sp}, v{P+i}
        v_add_f32 v{sn_}, v{sn_}, v{E+i}
        v_add_f32 v{sp2}, v{sp2}, v{P+i+1}
        v_add_f32 v{sn2}, v{sn2}, v{E+i+1}""")
    em.e(f"""v_add_f32 v{sp}, v{sp}, v{sp2}
    v_add_f32 v{sn_}, v{sn_}, v{sn2}
    v_rcp_f32 v{sp}, v{sp}
    v_rcp_f32 v{sn_}, v{sn_}""")
    for i in range(10):
        em.e(f"""v_mul_f32 v{P+2*i}, v{P+2*i}, v{sp}
        v_mul_f32 v{P+2*i+1}, v{P+2*i+1}, v{sp}
        v_mul_f32 v{E+2*i}, v{E+2*i}, v{sn_}
        v_mul_f32 v{E+2*i+1}, v{E+2*i+1}, v{sn_}
        v_cvt_pk_bf16_f32 v{O+i}, v{P+2*i}, v{P+2*i+1}
        v_cvt_pk_bf16_f32 v{O+10+i}, v{E+2*i}, v{E+2*i+1}""")

def gen_k2():
    em = Em()
    em.raw(".text\n.globl k2_kernel\n.p2align 8\n.type k2_kernel,@function\nk2_kernel:")
    em.e("s_cmp_ge_u32 s2, 256\ns_cbranch_scc1 L_k2_done")
    em.e(f"""
    s_load_dwordx2 s[40:41], s[0:1], 72
    s_load_dwordx2 s[44:45], s[0:1], 88
    v_lshrrev_b32 v1, 6, v0
    v_and_b32 v3, 63, v0
    v_readfirstlane_b32 s{S_WV2}, v1
    v_lshlrev_b32 v2, 4, v3
    s_lshr_b32 s{T+1}, s2, 3
    s_and_b32 s{S_NT}, s{T+1}, 3
    s_and_b32 s{T}, s2, 1
    s_lshl_b32 s{T}, s{T}, 2
    s_add_u32 s{S_NT}, s{S_NT}, s{T}
    s_lshr_b32 s{T+1}, s{T+1}, 2
    s_bfe_u32 s{T}, s2, 0x20001
    s_lshl_b32 s{S_MT}, s{T}, 3
    s_add_u32 s{S_MT}, s{S_MT}, s{T+1}
    s_mul_i32 s{S_A0}, s{S_NT}, {74*5120}
    s_add_u32 s{S_A0}, s{S_A0}, {WDF_OFF}
    """)
    em.wait_lgkm0()
    srd(em, S_OUT, 40, 2048 * 1280)
    srd(em, S_WS2, 44, WS_BYTES)
    CNT = 4 * 20480 + 8192
    stamp2(em, 0)
    em.e(f"s_cmp_ge_u32 s{S_WV2}, 4\ns_cbranch_scc1 L_k2_owave")
    save = (em.vm_n, em.vm_done, em.lds_n, em.lds_done)
    em.e(f"""
    s_mul_i32 s{T}, s{S_WV2}, 14
    s_cmp_eq_u32 s{S_WV2}, 3
    s_cselect_b32 s{T+1}, 1, 0
    s_sub_u32 s{T}, s{T}, s{T+1}
    s_cmp_lt_u32 s{S_WV2}, 2
    s_cselect_b32 s{T+6}, 1, 0
    s_mul_i32 s{T+1}, s{T}, 5120
    s_add_u32 s{S_A0}, s{S_A0}, s{T+1}
    s_mul_i32 s{S_B0}, s{S_MT}, {4*54*1024}
    s_lshl_b32 s{T+1}, s{T}, 10
    s_add_u32 s{S_B0}, s{S_B0}, s{T+1}
    s_add_u32 s{S_B0}, s{S_B0}, {HF_OFF}
    """)
    stream(em, 14, 54 * 1024, False, last_optional="L_k2_final", NBUF=k1.OPT.get("k2nb", 4))
    em.e("s_branch L_k2_final")
    em.label("L_k2_owave")
    em.vm_n, em.vm_done, em.lds_n, em.lds_done = save
    MP = 144
    if k1.OPT.get("k2prio", 0): em.e("s_setprio 3")
    em.e(f"""
    s_sub_u32 s{S_U}, s{S_WV2}, 4
    s_mul_i32 s{T+2}, s{S_WV2}, 20480
    s_lshl_b32 s{T}, s{S_NT}, 2
    s_add_u32 s{T}, s{T}, s{S_U}
    s_mul_i32 s{T}, s{T}, 3840
    s_add_u32 s{T}, s{T}, {KVP_OFF}
    """)
    KV = 16
    for i in range(4):
        kvl = em.vm(f"buffer_load_dwordx4 v[{KV+4*i}:{KV+4*i+3}], v2, s[{S_WS2}:{S_WS2+3}], s{T} offen offset:{i*1024}")
    em.e(f"""
    s_mul_i32 s{T}, s{S_MT}, {64*1280}
    s_lshl_b32 s{T+1}, s{S_NT}, 2
    s_add_u32 s{T+1}, s{T+1}, s{S_U}
    s_mul_i32 s{T+1}, s{T+1}, 40
    s_add_u32 s{T}, s{T}, s{T+1}
    s_add_u32 s{T}, s{T}, {PQF_OFF}
    v_mul_u32_u24 v8, 1280, v3
    """)
    PF = 176; SMR = 96
    for i in range(5):
        pf_last = em.vm(f"buffer_load_dwordx2 v[{SMR+2*i}:{SMR+2*i+1}], v8, s[{S_WS2}:{S_WS2+3}], s{T} offen offset:{8*i}")
    em.e(f"""
    v_mov_b32 v4, 0
    v_mov_b32 v5, 0
    v_mov_b32 v6, 0
    v_mov_b32 v7, 0
    v_add_u32 v9, s{T+2}, v2
    """)
    for i in range(16):
        em.lds(f"ds_write_b128 v9, v[4:7] offset:{i*1024}")
    if k1.OPT.get("k2bar", 1) == 0: em.e("s_barrier")
    em.e(f"s_mov_b32 s{T+4}, s{T+2}")
    for i in range(4):
        em.e(f"""
        v_add_u32 v9, {64*i}, v3
        v_mul_u32_u24 v10, 6554, v9
        v_lshrrev_b32 v10, 16, v10
        v_mul_u32_u24 v11, 10, v10
        v_sub_u32 v11, v9, v11
        v_mul_u32_u24 v12, {MP}, v10
        v_lshl_add_u32 v12, v11, 3, v12
        v_add_u32 v{40+i}, s{T+4}, v12
        """)
        if i == 3:
            em.e(f"""
            v_lshlrev_b32 v12, 3, v11
            v_add_u32 v44, s{T+4}, v12
            v_cmp_eq_u32 s[46:47], 20, v10
            v_cmp_gt_u32 s[48:49], 20, v10
            """)
    em.e(f"""
    v_and_b32 v9, 15, v3
    v_lshrrev_b32 v10, 4, v3
    v_mul_u32_u24 v11, {MP}, v9
    v_lshl_add_u32 v11, v10, 4, v11
    v_add_u32 v11, s{T+2}, v11
    s_mul_i32 s{T}, s{S_NT}, 20
    s_mul_i32 s{T+1}, s{S_U}, 5
    s_add_u32 s{T}, s{T}, s{T+1}
    v_add_u32 v12, s{T}, v10
    v_add_u32 v13, 4, v12
    v_lshrrev_b32 v14, 1, v12
    v_lshlrev_b32 v14, 8, v14
    v_and_b32 v12, 1, v12
    v_lshl_add_u32 v12, v12, 3, v14
    v_lshl_add_u32 v12, v9, 4, v12
    v_lshrrev_b32 v14, 1, v13
    v_lshlrev_b32 v14, 8, v14
    v_and_b32 v13, 1, v13
    v_lshl_add_u32 v13, v13, 3, v14
    v_lshl_add_u32 v13, v9, 4, v13
    v_mov_b32 v14, 0x80000000
    v_cmp_eq_u32 vcc, 0, v10
    s_mul_i32 s{T}, s{S_MT}, {4*20480}
    s_add_u32 s{T}, s{T}, {OF_OFF}
    v_cndmask_b32 v13, v14, v13, vcc
    """)
    em.wait(vm=kvl)
    if k1.OPT.get("k2bar", 1) == 1:
        em.wait(vm=pf_last); em.e("s_barrier")
    stamp2(em, 1)
    for i in range(4):
        r = KV + 4 * i
        em.e(f"v_cvt_pk_bf16_f32 v{r}, v{r}, v{r+1}\nv_cvt_pk_bf16_f32 v{r+1}, v{r+2}, v{r+3}")
    for i in range(3):
        r = KV + 4 * i
        em.lds(f"ds_write_b64 v{40+i}, v[{r}:{r+1}]")
    r = KV + 12
    em.e("s_mov_b64 s[50:51], exec\ns_mov_b64 exec, s[48:49]")
    em.lds(f"ds_write_b64 v43, v[{r}:{r+1}]")
    em.e("s_mov_b64 exec, s[46:47]")
    for d in range(16):
        em.lds(f"ds_write_b64 v44, v[{r}:{r+1}] offset:{(32 + d)*MP}")
    em.e("s_mov_b64 exec, s[50:51]")
    em.wait_lgkm0()
    AF = 48
    for t in range(3):
        for s in range(2):
            r = AF + 4 * (2 * t + s)
            em.lds(f"ds_read_b128 v[{r}:{r+3}], v11 offset:{16*t*MP + 64*s}")
    em.wait(vm=pf_last)
    softmax_regs(em, SMR)
    O = SMR + 56
    PHB = 48 * MP
    em.e(f"v_mul_u32_u24 v8, {MP}, v3\nv_add_u32 v8, s{T+2}, v8")
    for c in range(5):
        em.lds(f"ds_write_b128 v8, v[{O+4*c}:{O+4*c+3}] offset:{PHB + 16*c}")
    em.wait_lgkm0()
    for tt in range(4):
        for s_ in range(2):
            r = PF + 4 * (2 * tt + s_)
            em.lds(f"ds_read_b128 v[{r}:{r+3}], v11 offset:{PHB + 16*tt*MP + 64*s_}")
    em.wait_lgkm0()
    stamp2(em, 2)
    OA = 72
    for tt in range(4):
        for t in range(3):
            for s in range(2):
                a = OA + 12 * tt + 4 * t
                c = "0" if s == 0 else f"v[{a}:{a+3}]"
                r = AF + 4 * (2 * t + s); p = PF + 4 * (2 * tt + s)
                em.e(f"v_mfma_f32_16x16x32_bf16 v[{a}:{a+3}], v[{r}:{r+3}], v[{p}:{p+3}], {c}")
    for tt in range(4):
        de = OA + 12 * tt + 8
        em.e(f"""
        v_cvt_pk_bf16_f32 v6, v{de}, v{de}
        v_lshlrev_b32 v6, 16, v6
        v_add_f32 v6, {f32bits(1e-6)}, v6
        v_cvt_pk_bf16_f32 v6, v6, v6
        v_lshlrev_b32 v6, 16, v6
        v_rcp_f32 v6, v6
        """)
        for t in range(2):
            nu = OA + 12 * tt + 4 * t
            em.e(f"""
            v_cvt_pk_bf16_f32 v4, v{nu}, v{nu+1}
            v_cvt_pk_bf16_f32 v5, v{nu+2}, v{nu+3}
            v_lshlrev_b32 v{nu}, 16, v4
            v_and_b32 v{nu+1}, 0xffff0000, v4
            v_lshlrev_b32 v{nu+2}, 16, v5
            v_and_b32 v{nu+3}, 0xffff0000, v5
            v_mul_f32 v{nu}, v{nu}, v6
            v_mul_f32 v{nu+1}, v{nu+1}, v6
            v_mul_f32 v{nu+2}, v{nu+2}, v6
            v_mul_f32 v{nu+3}, v{nu+3}, v6
            v_cvt_pk_bf16_f32 v{nu}, v{nu}, v{nu+1}
            v_cvt_pk_bf16_f32 v{nu+1}, v{nu+2}, v{nu+3}
            """)
            em.vm(f"buffer_store_dwordx2 v[{nu}:{nu+1}], v{12 + t}, s[{S_WS2}:{S_WS2+3}], s{T} offen sc1")
        em.e(f"s_add_u32 s{T}, s{T}, 20480")
    em.e(f"""
    s_mul_i32 s{T}, s{S_U}, {5*5120}
    s_add_u32 s{S_A0}, s{S_A0}, s{T}
    s_add_u32 s{S_A0}, s{S_A0}, {54*5120}
    s_mul_i32 s{S_B0}, s{S_MT}, {4*20480}
    s_mul_i32 s{T}, s{S_U}, {5*1024}
    s_add_u32 s{S_B0}, s{S_B0}, s{T}
    s_add_u32 s{S_B0}, s{S_B0}, {OF_OFF}
    """)
    if k1.OPT.get("k2bar", 1) == 2: em.e("s_barrier")
    stamp2(em, 3)
    BB = 96; AA = 176
    def issue_a(s):
        b = AA + 20 * (s % 2)
        em.e(f"s_add_u32 s{T}, s{S_A0}, {s*5120}")
        for j in range(4):
            em.vm(f"buffer_load_dwordx4 v[{b+4*j}:{b+4*j+3}], v2, s[{S_WS2}:{S_WS2+3}], s{T} offen offset:{j*1024}")
        em.e(f"s_add_u32 s{T}, s{T}, 4096")
        return em.vm(f"buffer_load_dwordx4 v[{b+16}:{b+19}], v2, s[{S_WS2}:{S_WS2+3}], s{T} offen")
    em.e("s_nop 1")
    issue_a(0); issue_a(1)
    em.label("L_k2_prepoll")
    em.e(f"s_add_u32 s{T}, s{S_B0}, {3*20480}")
    for s in range(4):
        r = BB + 16 * s + 12
        em.e(f"buffer_load_dwordx4 v[{r}:{r+3}], v2, s[{S_WS2}:{S_WS2+3}], s{T} offen offset:{s*1024} sc1")
    em.e(f"s_add_u32 s{T}, s{T}, 4096")
    em.e(f"buffer_load_dwordx4 v[{BB+76}:{BB+79}], v2, s[{S_WS2}:{S_WS2+3}], s{T} offen sc1")
    em.e("s_waitcnt vmcnt(0)")
    em.e(f"v_max_u32 v4, v{BB+12}, v{BB+14}")
    for s in range(1, 5):
        em.e(f"v_max3_u32 v4, v4, v{BB+16*s+12}, v{BB+16*s+14}")
    em.e(f"""
    v_cmp_eq_u32 vcc, -1, v4
    s_nop 1
    s_cmp_eq_u64 vcc, 0
    s_cbranch_scc1 L_k2_poll
    s_sleep {k1.OPT.get("k2sleep", 8)}
    s_branch L_k2_prepoll
    """)
    em.label("L_k2_poll")
    for tt in range(4):
        em.e(f"s_add_u32 s{T}, s{S_B0}, {tt*20480}")
        for s in range(4):
            r = BB + 16 * s + 4 * tt
            em.e(f"buffer_load_dwordx4 v[{r}:{r+3}], v2, s[{S_WS2}:{S_WS2+3}], s{T} offen offset:{s*1024} sc1")
        r = BB + 64 + 4 * tt
        em.e(f"s_add_u32 s{T}, s{T}, 4096")
        em.e(f"buffer_load_dwordx4 v[{r}:{r+3}], v2, s[{S_WS2}:{S_WS2+3}], s{T} offen sc1")
    em.e("s_waitcnt vmcnt(0)")
    em.vm_done = em.vm_n
    em.e(f"v_max_u32 v4, v{BB}, v{BB+2}\nv_max_u32 v5, v{BB+4}, v{BB+6}")
    for k in range(2, 20, 2):
        em.e(f"v_max3_u32 v4, v4, v{BB+4*k}, v{BB+4*k+2}\nv_max3_u32 v5, v5, v{BB+4*k+4}, v{BB+4*k+6}")
    em.e("""
    v_max_u32 v4, v4, v5
    v_cmp_eq_u32 vcc, -1, v4
    s_nop 1
    s_cmp_eq_u64 vcc, 0
    s_cbranch_scc1 L_k2_go
    s_sleep 2
    s_branch L_k2_poll
    """)
    em.label("L_k2_go")
    stamp2(em, 4)
    aid = {}
    for s in range(5):
        if s in aid: em.wait(vm=aid[s])
        b = AA + 20 * (s % 2)
        for j in range(5):
            for tt in range(4):
                a = ACC + 4 * (4 * j + tt)
                c = "0" if s == 0 else f"v[{a}:{a+3}]"
                r = BB + 16 * s + 4 * tt
                em.e(f"v_mfma_f32_16x16x32_bf16 v[{a}:{a+3}], v[{b+4*j}:{b+4*j+3}], v[{r}:{r+3}], {c}")
        if s + 2 < 5: aid[s + 2] = issue_a(s + 2)
    em.label("L_k2_final")
    em.e("s_nop 7\ns_nop 7")
    em.e("s_waitcnt vmcnt(0)")
    em.lds_done = em.lds_n; em.vm_done = em.vm_n
    stamp2(em, 7)
    em.e(f"s_mul_i32 s{T}, s{S_WV2}, 20480\nv_add_u32 v8, s{T}, v2")
    for k in range(20):
        em.lds(f"ds_write_b128 v8, v[{ACC+4*k}:{ACC+4*k+3}] offset:{k*1024}")
    em.e(f"""
    v_and_b32 v9, 15, v3
    v_lshrrev_b32 v10, 4, v3
    s_and_b32 s{T+7}, s{S_WV2}, 3
    s_lshl_b32 s{T}, s{S_MT}, 6
    s_lshl_b32 s{T+1}, s{T+7}, 4
    s_add_u32 s{T}, s{T}, s{T+1}
    v_add_u32 v11, s{T}, v9
    v_lshlrev_b32 v12, 2, v11
    s_mov_b32 s{T+2}, {G_OFF}
    """)
    gl = em.vm(f"buffer_load_dword v13, v12, s[{S_WS2}:{S_WS2+3}], s{T+2} offen")
    em.wait_lgkm0()
    em.e("s_barrier")
    stamp2(em, 8)
    em.e(f"""
    s_lshl_b32 s{T+1}, s{T+7}, 10
    s_cmp_ge_u32 s{S_WV2}, 4
    s_cselect_b32 s{T+3}, {3*4096}, 0
    s_cselect_b32 s{T+5}, 96, 0
    s_add_u32 s{T+1}, s{T+1}, s{T+3}
    v_add_u32 v8, s{T+1}, v2
    v_add_u32 v14, 61440, v8
    v_add_u32 v15, 122880, v8
    s_movk_i32 s{T+3}, 1280
    v_mul_lo_u32 v11, v11, s{T+3}
    v_lshl_add_u32 v11, v10, 3, v11
    s_mul_i32 s{T+4}, s{S_NT}, 160
    s_add_u32 s{T+4}, s{T+4}, s{T+5}
    """)
    R0 = 16
    ids = []
    for j in range(3):
        for p in range(8):
            r = R0 + 32 * j + 4 * p
            ids.append(em.lds(f"ds_read_b128 v[{r}:{r+3}], v{[8,14,15][p//3]} offset:{(p%3)*20480 + (j*4096 if j < 2 else 0)}") if j < 2 else None)
        if j == 0:
            em.wait(vm=gl)
            em.e(f"""
            v_sub_f32 v12, 1.0, v13
            v_cvt_pk_bf16_f32 v12, v12, v12
            v_lshlrev_b32 v12, 16, v12
            """)
    def fin(j, lastid):
        em.wait(lds=lastid)
        r = R0 + 32 * j
        for i in range(4):
            em.e(f"""
            v_add_f32 v{r+i}, v{r+i}, v{r+4+i}
            v_add_f32 v{r+8+i}, v{r+8+i}, v{r+12+i}
            v_add_f32 v{r+16+i}, v{r+16+i}, v{r+20+i}
            v_add_f32 v{r+24+i}, v{r+24+i}, v{r+28+i}
            """)
        for i in range(4):
            em.e(f"v_add_f32 v{r+i}, v{r+i}, v{r+8+i}\nv_add_f32 v{r+24+i}, v{r+24+i}, v{r+16+i}")
        for h in range(2):
            b0, a0 = r + 2 * h, r + 24 + 2 * h
            em.e(f"""
            v_cvt_pk_bf16_f32 v4, v{b0}, v{b0+1}
            v_cvt_pk_bf16_f32 v5, v{a0}, v{a0+1}
            v_lshlrev_b32 v{b0}, 16, v4
            v_and_b32 v{b0+1}, 0xffff0000, v4
            v_lshlrev_b32 v{a0}, 16, v5
            v_and_b32 v{a0+1}, 0xffff0000, v5
            v_mul_f32 v{b0}, v{b0}, v12
            v_mul_f32 v{b0+1}, v{b0+1}, v12
            v_mul_f32 v{a0}, v{a0}, v13
            v_mul_f32 v{a0+1}, v{a0+1}, v13
            v_cvt_pk_bf16_f32 v4, v{b0}, v{b0+1}
            v_cvt_pk_bf16_f32 v5, v{a0}, v{a0+1}
            v_lshlrev_b32 v{b0}, 16, v4
            v_and_b32 v{b0+1}, 0xffff0000, v4
            v_lshlrev_b32 v{a0}, 16, v5
            v_and_b32 v{a0+1}, 0xffff0000, v5
            v_add_f32 v{b0}, v{b0}, v{a0}
            v_add_f32 v{b0+1}, v{b0+1}, v{a0+1}
            v_cvt_pk_bf16_f32 v{r+4+h}, v{b0}, v{b0+1}
            """)
        em.vm(f"buffer_store_dwordx2 v[{r+4}:{r+5}], v11, s[{S_OUT}:{S_OUT+3}], s{T+4} offen offset:{j*32}")
    fin(0, ids[7]); fin(1, ids[15])
    em.e(f"s_cmp_ge_u32 s{S_WV2}, 4\ns_cbranch_scc1 L_k2_done")
    for p in range(8):
        r = R0 + 64 + 4 * p
        last = em.lds(f"ds_read_b128 v[{r}:{r+3}], v{[8,14,15][p//3]} offset:{(p%3)*20480 + 2*4096}")
    fin(2, last)
    stamp2(em, 9)
    em.label("L_k2_done")
    em.e("s_endpgm")
    return em.finish(), em
```

```python
import sys
import k1v2, k1v3 as k1, k2v2 as k2
k1v2.OPT.update(k2pf=1, stq=1, prio1=1, b3=3, stf=3, codepf=1, LA3=3, touch=0, k2nb=3, k2bar=0, k2pre=0, k2prio=2)
if "stamps" in sys.argv: k1v2.OPT["stamps"] = True
for a in sys.argv[1:]:
    if "=" in a:
        k, v = a.split("="); k1v2.OPT[k] = int(v)
b1, e1 = k1.gen_k1()
b2, e2 = k2.gen_k2()
fl = {0: "", 1: " sc1", 2: " nt", 3: " sc0 sc1", 4: " sc1 nt"}[k1v2.OPT.get("stf", 0)]
if fl:
    import re
    b1 = "\n".join((l + fl) if (("buffer_store_dwordx4" in l or ("buffer_store_dwordx2" in l and k1v2.OPT.get("stq"))) and "sc1" not in l and ("v[218:221]" not in l or k1v2.OPT.get("sts"))) else l for l in b1.split("\n"))
hdr = open("gated_mix__linear_kernel_hedgehog__geglu_ffn__prompt.s.ref").read().split("; Override launch geometry")[0]
hdr += "; @launch kernel=k1_kernel grid=(256,1,1) block=(512,1,1) lds=163840\n"
hdr += "; @launch kernel=k2_kernel grid=(256,1,1) block=(512,1,1) lds=163840\n"
hdr += '.amdgcn_target "amdgcn-amd-amdhsa--gfx950"\n'
KD = k1v2.KD.replace("next_free_sgpr 100", "next_free_sgpr 102")
out = hdr + b1 + "\n" + b2 + "\nL_text_end:\n" + KD.format(name="k1_kernel", nv=256, ao=256) + KD.format(name="k2_kernel", nv=256, ao=256)
dst = "full_test.s" if "test" in sys.argv else "gated_mix__linear_kernel_hedgehog__geglu_ffn__prompt.s"
out = out.replace("\n    ", "\n ")
open(dst, "w").write(out)
print("k1 nops", e1.nops, "instrs", len(e1.items), "k2 nops", e2.nops, "instrs", len(e2.items), "bytes", len(out))
```

```python
from asmlib import *
import k1v2 as K
from k1v2 import *

S_W8 = 98
S_RS = 100
R_SRD = [40, 44 - 44 + 56, 60 - 60 + 80, 84]
R_OFF = [88, 89, 90, 91]
R_INC = [60, 61, 62, 63]
V_RD = 8
V_XF = 176

WPART = 22528
NWS = 5
XB3 = NWS * WPART
XSL3 = 16384; NXS3 = 3
DUMMY = XB3 + NXS3 * XSL3
S_RM = 62
S_RI = 63

def stamp3(em, k):
    if not OPT["stamps"]: return
    em.e(f"s_memrealtime s[30:31]" if (OPT.get("rt") and k in (0, 10)) else f"s_memtime s[30:31]")
    em.e("s_waitcnt lgkmcnt(0)"); em.lds_done = em.lds_n
    em.e(f"""
    s_lshl_b32 s28, s2, 9
    s_lshl_b32 s29, s{S_W8}, 6
    s_add_u32 s28, s28, s29
    s_add_u32 s28, s28, {STAMP_OFF + 4*k}
    v_mov_b32 v248, s30
    v_mov_b32 v249, 0
    """)
    em.vm(f"buffer_store_dword v248, v249, s[{S_WS}:{S_WS+3}], s28 offen")

def setup3(em, rounds):
    a, b, c, d, e = VT, VT + 1, VT + 2, VT + 3, VT + 4
    em.e(f"""
    v_and_b32 v1, 63, v0
    v_lshrrev_b32 v{a}, 3, v1
    v_and_b32 v{b}, 7, v1
    v_lshrrev_b32 v{c}, 4, v1
    v_xor_b32 v{c}, v{b}, v{c}
    v_lshlrev_b32 v{c}, 4, v{c}
    s_lshl_b32 s{S_T0}, s{S_M}, 7
    s_lshl_b32 s{S_T0+1}, s{S_W8}, 4
    s_add_u32 s{S_T0}, s{S_T0}, s{S_T0+1}
    v_add_u32 v{d}, s{S_T0}, v{a}
    v_mul_u32_u24 v{d}, 1280, v{d}
    v_add_u32 v{V_XD}, v{d}, v{c}
    v_xor_b32 v{c}, 64, v{c}
    v_add_u32 v{V_XD+1}, v{d}, v{c}
    v_add_u32 v{V_XD+1}, {8*1280}, v{V_XD+1}
    s_lshl_b32 s{S_MX}, s{S_W8}, 11
    s_add_u32 s{S_MX}, s{S_MX}, {XB3}
    s_lshl_b32 s{S_MW}, s{S_W8}, 10
    """)
    for r, rd in enumerate(rounds):
        sr = R_SRD[r]
        if rd[0] == "QKV":
            kind, second = rd[1], rd[2]
            em.e(f"""
            s_lshl_b32 s{S_T0}, s{S_W8}, 6
            s_add_u32 s{S_T0}, s{S_T0}, {512 if second else 0}
            v_add_u32 v{a}, s{S_T0}, v1
            v_mul_u32_u24 v{b}, 3277, v{a}
            v_lshrrev_b32 v{b}, 16, v{b}
            v_mul_u32_u24 v{c}, 20, v{b}
            v_sub_u32 v{c}, v{a}, v{c}
            v_mul_u32_u24 v{b}, 3840, v{b}
            v_lshl_add_u32 v{V_RD+r}, v{c}, 4, v{b}
            """)
            if kind == "KV":
                em.e(f"""
                v_cmp_le_u32 vcc, 10, v{c}
                v_add_u32 v{b}, 1120, v{V_RD+r}
                s_nop 0
                v_cndmask_b32 v{V_RD+r}, v{V_RD+r}, v{b}, vcc
                s_mul_i32 s{R_OFF[r]}, s{S_C}, 160
                s_add_u32 s{R_OFF[r]}, s{R_OFF[r]}, 1280
                """)
            else:
                em.e(f"s_mul_i32 s{R_OFF[r]}, s{S_C}, 320")
            if second:
                em.e(f"""
                v_cmp_gt_u32 vcc, 640, v{a}
                v_mov_b32 v{b}, 0x80000000
                s_nop 0
                v_cndmask_b32 v{V_RD+r}, v{b}, v{V_RD+r}, vcc
                """)
            em.e(f"""
            s_mov_b32 s{sr}, s{S_QKV}
            s_mov_b32 s{sr+1}, s{S_QKV+1}
            s_mov_b32 s{sr+2}, {640*3840}
            s_mov_b32 s{sr+3}, 0x00020000
            """)
        elif rd[0] == "MIX":
            kind, f2off, qoff = rd[1], rd[2], rd[3]
            em.e(f"""
            v_lshrrev_b32 v{a}, 2, v1
            v_and_b32 v{b}, 3, v1
            s_and_b32 s{S_T0}, s{S_W8}, 2
            v_xor_b32 v{b}, s{S_T0}, v{b}
            s_and_b32 s{S_T0}, s{S_W8}, 1
            s_lshl_b32 s{S_T0}, s{S_T0}, 4
            v_add_u32 v{a}, s{S_T0}, v{a}
            v_mul_u32_u24 v{a}, 3456, v{a}
            v_lshl_add_u32 v{V_RD+r}, v{b}, 4, v{a}
            s_lshl_b32 s{R_OFF[r]}, s{S_FG2}, 7
            s_lshl_b32 s{S_T0}, s{S_TOFF}, 5
            s_add_u32 s{R_OFF[r]}, s{R_OFF[r]}, s{S_T0}
            s_mov_b32 s{S_RI}, {32*3456}
            s_add_u32 s{S_RM}, s{S_MW}, {f2off}
            s_cmp_lt_u32 s{S_W8}, 2
            s_cselect_b32 s{sr}, s{S_G}, s{S_U}
            s_cselect_b32 s{sr+1}, s{S_G+1}, s{S_U+1}
            s_mov_b32 s{sr+2}, {640*3456}
            s_mov_b32 s{sr+3}, 0x00020000
            """)
            if kind:
                em.e(f"""
                s_lshl_b32 s{S_T0}, s{S_W8}, 6
                s_add_u32 s{S_T0}, s{S_T0}, 256
                v_add_u32 v{a}, s{S_T0}, v1
                v_mul_u32_u24 v{b}, 3277, v{a}
                v_lshrrev_b32 v{b}, 16, v{b}
                v_mul_u32_u24 v{c}, 20, v{b}
                v_sub_u32 v{c}, v{a}, v{c}
                v_mul_u32_u24 v{b}, 3840, v{b}
                v_lshl_add_u32 v{d}, v{c}, 4, v{b}
                """)
                if kind == "KV":
                    em.e(f"""
                    v_cmp_le_u32 vcc, 10, v{c}
                    v_add_u32 v{b}, 1120, v{d}
                    s_nop 0
                    v_cndmask_b32 v{d}, v{d}, v{b}, vcc
                    """)
                em.e(f"""
                s_cmp_ge_u32 s{S_W8}, 4
                s_cselect_b64 vcc, -1, 0
                s_cselect_b32 s{sr}, s{S_QKV}, s{sr}
                s_cselect_b32 s{sr+1}, s{S_QKV+1}, s{sr+1}
                s_cselect_b32 s{sr+2}, {640*3840}, s{sr+2}
                s_cselect_b32 s{R_OFF[r]}, s{R_OFF[0]}, s{R_OFF[r]}
                s_cselect_b32 s{S_RI}, {32*3840}, s{S_RI}
                s_add_u32 s{S_T0}, s{S_MW}, {qoff - 4096}
                s_cmp_ge_u32 s{S_W8}, 4
                s_cselect_b32 s{S_RM}, s{S_T0}, s{S_RM}
                v_cndmask_b32 v{V_RD+r}, v{V_RD+r}, v{d}, vcc
                """)
            lim = 6 if kind else 4
            em.e(f"""
            s_cmp_ge_u32 s{S_W8}, {lim}
            s_cselect_b64 vcc, -1, 0
            v_mov_b32 v{b}, 0x80000000
            s_nop 0
            v_cndmask_b32 v{V_RD+r}, v{V_RD+r}, v{b}, vcc
            """)
        else:
            sg = rd[1]
            em.e(f"""
            v_lshrrev_b32 v{a}, 3, v1
            v_and_b32 v{b}, 7, v1
            v_bfe_u32 v{c}, v1, 4, 1
            v_lshlrev_b32 v{c}, 1, v{c}
            v_xor_b32 v{c}, v{c}, v{b}
            s_and_b32 s{S_T0}, s{S_W8}, 4
            v_xor_b32 v{c}, s{S_T0}, v{c}
            v_lshlrev_b32 v{c}, 4, v{c}
            s_lshl_b32 s{S_T0}, s{S_WV}, 3
            v_add_u32 v{a}, s{S_T0}, v{a}
            v_mul_u32_u24 v{a}, 3456, v{a}
            v_add_u32 v{V_RD+r}, v{a}, v{c}
            s_lshl_b32 s{R_OFF[r]}, s{sg}, 7
            s_cmp_lt_u32 s{S_W8}, 4
            s_cselect_b32 s{sr}, s{S_G}, s{S_U}
            s_cselect_b32 s{sr+1}, s{S_G+1}, s{S_U+1}
            s_mov_b32 s{sr+2}, {640*3456}
            s_mov_b32 s{sr+3}, 0x00020000
            """)

def setup3_reads(em):
    a, b, c, d, e = VT, VT + 1, VT + 2, VT + 3, VT + 4
    em.e(f"""
    v_and_b32 v{a}, 31, v1
    v_lshrrev_b32 v{b}, 5, v1
    v_bfe_u32 v{c}, v1, 1, 3
    v_xor_b32 v{c}, v{c}, v{b}
    v_lshlrev_b32 v{d}, 7, v{a}
    s_lshl_b32 s{S_T0}, s{S_WV}, 12
    s_add_u32 s{S_T0}, s{S_T0}, {XB3}
    v_add_u32 v{d}, s{S_T0}, v{d}
    """)
    for sp in range(4):
        em.e(f"v_xor_b32 v{e}, {2*sp}, v{c}\nv_lshl_add_u32 v{V_XR+sp}, v{e}, 4, v{d}")

def setup3_F(em):
    a, b, c, d, e = VT, VT + 1, VT + 2, VT + 3, VT + 4
    em.e(f"""
    v_bfe_u32 v{a}, v1, 4, 1
    v_lshrrev_b32 v{b}, 5, v1
    v_bfe_u32 v{c}, v1, 2, 2
    v_and_b32 v{d}, 3, v1
    v_lshlrev_b32 v{e}, 12, v{a}
    v_lshl_add_u32 v{e}, v{b}, 10, v{e}
    v_lshl_add_u32 v{e}, v{c}, 7, v{e}
    v_lshl_add_u32 v{e}, v{d}, 3, v{e}
    v_lshrrev_b32 v{c}, 1, v{c}
    v_lshl_or_b32 v{c}, v{a}, 1, v{c}
    """)
    for t in range(4):
        em.e(f"v_xor_b32 v{d}, {t}, v{c}\nv_lshl_add_u32 v{V_FT+t}, v{d}, 5, v{e}\nv_add_u32 v{V_FT+4+t}, 0x10000, v{V_FT+t}")
    em.e(f"""
    s_lshl_b32 s{S_T0}, s{S_WV}, 1
    v_add_u32 v{a}, s{S_T0}, v{a}
    s_mov_b32 s{S_T0+1}, {54*1024}
    v_mul_lo_u32 v{a}, v{a}, s{S_T0+1}
    v_and_b32 v{c}, 15, v1
    v_lshl_add_u32 v{c}, v{b}, 4, v{c}
    v_lshl_add_u32 v{V_FS}, v{c}, 4, v{a}
    s_mul_i32 s{S_HB}, s{S_M}, {8*54*1024}
    s_add_u32 s{S_HB}, s{S_HB}, {HF_OFF}
    s_lshl_b32 s{S_T0}, s{S_FG2}, 11
    s_add_u32 s{S_HB2}, s{S_HB}, s{S_T0}
    s_lshl_b32 s{S_T0}, s{S_TOFF}, 9
    s_add_u32 s{S_HB2}, s{S_HB2}, s{S_T0}
    s_lshl_b32 s{S_T0}, s{S_FG}, 11
    s_add_u32 s{S_HB}, s{S_HB}, s{S_T0}
    v_mov_b32 v{V_GC0}, {f32bits(GC0)}
    v_mov_b32 v{V_PKC}, {f32bits(GC1)}
    v_mov_b32 v{V_PKC+1}, {f32bits(GC1)}
    v_mov_b32 v{V_PKC+2}, {f32bits(GC0)}
    v_mov_b32 v{V_PKC+3}, {f32bits(GC0)}
    v_bfe_u32 v{a}, v1, 4, 1
    v_bfe_u32 v{c}, v1, 2, 2
    v_and_b32 v{d}, 3, v1
    v_lshlrev_b32 v{e}, 11, v{a}
    v_lshl_add_u32 v{e}, v{b}, 9, v{e}
    v_lshl_add_u32 v{e}, v{c}, 6, v{e}
    v_lshl_add_u32 v{e}, v{d}, 3, v{e}
    v_lshl_add_u32 v{V_F2T}, v{a}, 5, v{e}
    v_xor_b32 v{V_F2T+1}, 32, v{V_F2T}
    v_add_u32 v{V_F2T+2}, 0x10000, v{V_F2T}
    v_add_u32 v{V_F2T+3}, 0x10000, v{V_F2T+1}
    """)

def gpf3_setup(em):
    a, b = VT, VT + 1
    P = S_TA
    em.e(f"""
    s_cmp_eq_u32 s{S_WV}, 0
    s_cselect_b32 s{P}, s{S_G}, s{S_U}
    s_cselect_b32 s{P+1}, s{S_G+1}, s{S_U+1}
    s_mov_b32 s{P+2}, {640*3456}
    s_mov_b32 s61, {64*3456}
    s_mul_i32 s60, s2, 864
    s_cmp_eq_u32 s{S_WV}, 2
    s_cselect_b32 s{P}, s{S_QKV}, s{P}
    s_cselect_b32 s{P+1}, s{S_QKV+1}, s{P+1}
    s_cselect_b32 s{P+2}, {640*3840}, s{P+2}
    s_cselect_b32 s61, {64*3840}, s61
    s_mul_i32 s{S_T0}, s2, 960
    s_cselect_b32 s60, s{S_T0}, s60
    s_cmp_eq_u32 s{S_WV}, 3
    s_cselect_b32 s{P}, s{S_X}, s{P}
    s_cselect_b32 s{P+1}, s{S_X+1}, s{P+1}
    s_cselect_b32 s{P+2}, {2048*1280}, s{P+2}
    s_cselect_b32 s61, 128, s61
    s_mul_i32 s{S_T0}, s2, {8*1280}
    s_cselect_b32 s60, s{S_T0}, s60
    s_mov_b32 s{P+3}, 0x00020000
    s_movk_i32 s{S_T0}, 128
    s_cselect_b32 s{S_T0}, 1280, s{S_T0}
    v_mul_lo_u32 v{a}, v1, s{S_T0}
    v_mov_b32 v{b}, 0x80000000
    v_cmp_gt_u32 vcc, 8, v1
    s_nop 1
    v_cndmask_b32 v251, v{b}, v{a}, vcc
    """)
def gpf3_step(em, n=1):
    for _ in range(n):
        em.vm(f"buffer_load_dword v250, v251, s[{S_TA}:{S_TA+3}], s60 offen")
        em.e("s_add_u32 s60, s60, s61")

def engine3(em, rounds, dests, tiles, pro=None, gp=False, bgf=None):
    D = OPT.get('D3', 3)
    NST = 20; PW = NWS - 2; PX = NXS3 - 1
    incs = [32 * 3840 if rd[0] == "QKV" else 32 * 3456 for rd in rounds]
    w_last = {}; x_last = {}
    def issue_w(s):
        if s >= NST: return []
        if OPT.get("nodma") and s > 2:
            w_last[s] = 0; return []
        cl = []
        for r, rd in enumerate(rounds):
            def c(r=r, rd=rd):
                if rd[0] == "MIX":
                    em.e(f"s_add_u32 s{S_TMP}, s{S_RM}, {(s % NWS) * WPART}")
                    em.e(f"s_cmp_lt_u32 s{S_W8}, {6 if rd[1] else 4}")
                    em.e(f"s_cselect_b32 m0, s{S_TMP}, s{S_DUM}")
                    w_last[s] = em.vm(f"buffer_load_dwordx4 v{V_RD+r}, s[{R_SRD[r]}:{R_SRD[r]+3}], s{R_OFF[r]} offen lds")
                    em.e(f"s_add_u32 s{R_OFF[r]}, s{R_OFF[r]}, s{S_RI}")
                    return
                base = (s % NWS) * WPART + dests[r]
                em.e(f"s_add_u32 m0, s{S_MW}, {base}")
                em.e(f"s_add_u32 s{S_TMP}, s{R_OFF[r]}, {s*incs[r]}")
                w_last[s] = em.vm(f"buffer_load_dwordx4 v{V_RD+r}, s[{R_SRD[r]}:{R_SRD[r]+3}], s{S_TMP} offen lds")
            cl.append(c)
        return cl
    def issue_x(i):
        if i >= 10: return []
        if OPT.get("nodma") and i > 1:
            x_last[i] = 0; return []
        cl = []
        for n in range(2):
            def c(n=n):
                em.e(f"s_add_u32 m0, s{S_MX}, {(i % NXS3)*XSL3 + n*1024}")
                em.e(f"s_movk_i32 s{S_TMP}, {i*128}")
                x_last[i] = em.vm(f"buffer_load_dwordx4 v{V_XD+n}, s[{S_X}:{S_X+3}], s{S_TMP} offen lds")
            cl.append(c)
        return cl
    em.e(f"s_and_b32 s{S_DUM}, s{S_MW}, 1024\ns_add_u32 s{S_DUM}, s{S_DUM}, {DUMMY}")
    for c in issue_x(0) + issue_w(0) + issue_w(1) + issue_x(1) + issue_w(2): c()
    if pro: pro(em)
    LA = OPT.get("LA3", 0)
    gp = gp and LA > 0
    if gp:
        gpf3_setup(em)
        em.e("s_add_u32 s60, s60, s61")
        gpf3_step(em, LA - 1)
    if gp and OPT.get("prio1"): em.e(f"s_setprio {OPT['prio1']}")
    T = len(tiles)
    mf = [(s, sp, t) for s in range(NST) for sp in range(2) for t in range(T)]
    N = len(mf)
    NB = len(WFR)
    rd_ = {}; xrd = {}
    pend = []
    bg = BG()
    if bgf: bg.add(bgf(em))
    def need_of(k):
        s, sp, t = mf[k]
        return max(rd_[k], xrd[2 * s + sp])
    for idx in range(-D, N):
        if idx >= 0:
            s, sp, t = mf[idx]
            em.wait(lds=need_of(idx))
            b = WFR[idx % NB]
            a = tiles[t][0]
            k16 = 2 * s + sp
            xr = V_XF + 4 * (k16 % 4)
            c = "0" if k16 == 0 else f"v[{a}:{a+15}]"
            em.e(f"v_mfma_f32_32x32x16_bf16 v[{a}:{a+15}], v[{b}:{b+3}], v[{xr}:{xr+3}], {c}")
        j = idx + D
        if j < N:
            s, sp, t = mf[j]
            if sp == 0 and t == 0:
                while pend: pend.pop(0)()
                need = w_last[s]
                if s % 2 == 0: need = max(need, x_last[s // 2])
                em.wait(vm=need)
                if not (OPT.get("nobar") and s > 0): em.e("s_barrier")
                if s in (0, 1, 5, 10, 15): stamp3(em, {0: 1, 1: 8, 5: 2, 10: 3, 15: 4}[s])
                pend += issue_w(s + PW)
                if gp and s % 2 == 0 and s // 2 + LA < 10: gpf3_step(em)
                if s % 2 == 1: pend += issue_x((s - 1) // 2 + PX)
                for q in range(2):
                    k16 = 2 * s + q
                    xr = V_XF + 4 * (k16 % 4)
                    xrd[k16] = em.lds(f"ds_read_b128 v[{xr}:{xr+3}], v{V_XR + (k16 % 4)} offset:{((s // 2) % NXS3)*XSL3}")
            b = WFR[j % NB]
            for hf in range(2):
                vr, off = tiles[t][1]((s % NWS) * WPART, sp, hf)
                rd_[j] = em.lds(f"ds_read_b64_tr_b16 v[{b+2*hf}:{b+2*hf+1}], v{vr} offset:{off}")
        if pend: pend.pop(0)()
        elif idx >= 0: bg.step(em, 3)
    bg.drain(em)
    if gp and OPT.get("prio1"): em.e("s_setprio 0")

def f_tile(acc, part_off, t, f2=False):
    def fn(sb, sp, hf):
        off = sb + part_off + (sp * 1024 + hf * 256 if f2 else sp * 2048 + hf * 512)
        base = V_F2T if f2 else V_FT
        hi = 2 if f2 else 4
        if off >= 65536: return (base + hi + t, off - 65536)
        return (base + t, off)
    return (acc, fn)

def q_tile(acc, t):
    def fn(sb, sp, hf):
        off = sb + (16 * sp + 4 * hf) * 320 + t * 64
        if off >= 65536: return (V_TR + 1, off - 65536)
        return (V_TR, off)
    return (acc, fn)


class Rec:
    def __init__(self): self.ops = []; self.n = 0
    def e(self, text):
        for t in text.split("\n"):
            t = t.strip()
            if t: self.ops.append(("e", t, None))
    def vm(self, text):
        self.n += 1; self.ops.append(("vm", text, self.n)); return ("rec", self.n)
    def lds(self, text):
        self.n += 1; self.ops.append(("lds", text, self.n)); return ("rec", self.n)

def replay(em, rec, st):
    m = {}
    hold = False
    for kind, t, n in rec.ops:
        if kind == "e": em.e(t)
        elif kind == "vm": m[n] = em.vm(t)
        else: m[n] = em.lds(t)
        op = t.split()[0]
        if op.startswith("s_cmp"): hold = True
        elif hold and not (op.startswith("s_cselect") or op.startswith("s_mov") or op.startswith("s_mul") or op.startswith("s_movk")): hold = False
        if not hold: yield (3 if kind != "e" else 1)
    for k, v in list(st.items()):
        if isinstance(v, tuple) and v and v[0] == "rec": st[k] = m[v[1]]

def run(gen, em):
    for c in gen:
        if c == "BAR": em.e("s_barrier")

def f_tail(em, specs, bar_after=None):
    for n, (acc, sb, off) in enumerate(specs):
        run(f_epilogue_tile(em, acc, off, 160 + 16 * (n & 1), sb), em)
        if bar_after == n: em.e("s_barrier")

WBD3 = 0; PB3 = 20480; VB3 = PB3 + 4 * 32 * PITCH; KS3 = VB3 + 4 * 32 * 200; FSC3 = KS3 + 4 * 3360 + 64

def gen_special(em, kind):
    rounds = [("QKV", kind, 0), ("F", S_FG), ("MIX", kind, 18432, 8192)]
    dests = [0, 10240, 0]
    setup3(em, rounds)
    lab = "Q" if kind == "Q" else "KV"
    em.e(f"s_cmp_ge_u32 s{S_W8}, 4\ns_cbranch_scc1 L3_{lab}_h1")
    save = (em.vm_n, em.vm_done, em.lds_n, em.lds_done)
    st = {}
    nblk = 18 if kind == "Q" else 9
    def pro0(em):
        setup3_reads(em)
        setup_QKV_reads(em, kind)
    def bg0(em):
        r = Rec()
        r.e(f"s_lshl_b32 s{S_H0}, s{S_C}, {3 if kind == 'Q' else 2}")
        st["wl"], st["n_it"] = wbd_loads(r, nblk, 200, V_CH)
        yield from replay(em, r, st)
    engine3(em, rounds, dests, [q_tile(ACC0 + 16 * t, t) for t in range(5)], pro0, bgf=bg0)
    stamp3(em, 9)
    em.wait_lgkm0()
    em.e("s_barrier")
    run(wbd_writes(em, st["n_it"], st["wl"], WBD3, V_CH, V_SM), em)
    if kind == "Q":
        run(conv_qf(em, 10), em)
        em.e("s_barrier")
        run(chain(em, 5, 10, 4), em)
        em.e(f"""
        s_lshl_b32 s{S_T0}, s{S_M}, 1
        s_lshr_b32 s{S_T0+1}, s{S_WV}, 1
        s_add_u32 s{S_T0}, s{S_T0}, s{S_T0+1}
        s_mul_i32 s{S_OB}, s{S_T0}, {64*1280}
        s_and_b32 s{S_T0+1}, s{S_WV}, 1
        s_mul_i32 s{S_T0+1}, s{S_T0+1}, 1280
        s_add_u32 s{S_OB}, s{S_OB}, s{S_T0+1}
        s_mul_i32 s{S_T0}, s{S_C}, {8*2560}
        s_add_u32 s{S_OB}, s{S_OB}, s{S_T0}
        s_add_u32 s{S_OB}, s{S_OB}, {PQF_OFF}
        s_mul_i32 s{S_T0}, s{S_WV}, {32*PITCH}
        s_add_u32 s{S_T0}, s{S_T0}, {PB3}
        """)
        a_, b_, c_ = VT, VT + 1, VT + 2
        for j in range(3):
            em.e(f"""
            v_add_u32 v{a_}, {64*j}, v1
            v_min_u32 v{b_}, 159, v{a_}
            v_mul_u32_u24 v{c_}, 13108, v{b_}
            v_lshrrev_b32 v{c_}, 16, v{c_}
            v_mul_u32_u24 v{V_SM+50+j}, 5, v{c_}
            v_sub_u32 v{b_}, v{b_}, v{V_SM+50+j}
            v_mul_u32_u24 v{c_}, {PITCH}, v{c_}
            v_lshl_add_u32 v{c_}, v{b_}, 3, v{c_}
            v_add_u32 v{V_SM+50+j}, s{S_T0}, v{c_}
            v_lshlrev_b32 v{V_SM+53+j}, 3, v{a_}
            """)
        em.e(f"""
        v_mov_b32 v{b_}, 0x80000000
        v_cmp_gt_u32 vcc, 160, v{a_}
        s_nop 1
        v_cndmask_b32 v{V_SM+55}, v{b_}, v{V_SM+55}, vcc
        """)
        em.wait(lds=em.last_p)
        ids = {}
        for h in range(8):
            for j in range(3):
                r = V_SM + 2 * (3 * h + j)
                ids[(h, j)] = em.lds(f"ds_read_b64 v[{r}:{r+1}], v{V_SM+50+j} offset:{h*40}")
        for h in range(8):
            em.e(f"s_add_u32 s{S_TMP2}, s{S_OB}, {h*2560}")
            for j in range(3):
                r = V_SM + 2 * (3 * h + j)
                em.wait(lds=ids[(h, j)])
                em.vm(f"buffer_store_dwordx2 v[{r}:{r+1}], v{V_SM+53+j}, s[{S_WS}:{S_WS+3}], s{S_TMP2} offen")
    else:
        run(kv_epi(em), em)
    stamp3(em, 10)
    em.e("s_endpgm")
    em.label(f"L3_{lab}_h1")
    em.vm_n, em.vm_done, em.lds_n, em.lds_done = save
    GR = 192
    def pro1(em):
        setup3_reads(em)
        setup3_F(em)
    def bg1(em):
        r = Rec()
        if kind == "KV": kv_zero(r, st)
        st["g"] = gate_issue3(r, GR)
        yield from replay(em, r, st)
        yield from gate_bg(em, st["g"], GR, delay=40)
        if kind == "KV":
            kv_signal(em, st); yield 8
    tiles = [f_tile(64 + 16 * t, 10240, t) for t in range(4)] + [f_tile(128 + 16 * t, 18432, t, f2=True) for t in range(2)]
    engine3(em, rounds, dests, tiles, pro1, gp=True, bgf=bg1)
    stamp3(em, 9)
    em.wait_lgkm0()
    em.e("s_barrier")
    st["f"] = frag_issue(em, FSC3, VT + 2)
    em.e("s_barrier")
    f_tail(em, [(64 + 16 * t, S_HB, t * 512) for t in range(4)] + [(128 + 16 * t, S_HB2, t * 512) for t in range(2)],
           bar_after=(OPT.get("b3", 3) if kind == "KV" else None))
    frag_finish(em, st["f"], FSC3, 160)
    stamp3(em, 10)
    em.e("s_endpgm")


def gate_issue3(em, R):
    import k1v2
    old = k1v2.S_TA
    k1v2.S_TA = 84
    try:
        return k1v2.gate_issue(em, R)
    finally:
        k1v2.S_TA = old

def setup_QKV_reads(em, kind):
    a, b, c, d, e = VT, VT + 1, VT + 2, VT + 3, VT + 4
    p_base, v_base, wbd_base = PB3, VB3, WBD3
    em.e(f"""
    v_and_b32 v{a}, 31, v1
    v_lshrrev_b32 v{b}, 5, v1
    s_mul_i32 s{S_T0}, s{S_WV}, {32*PITCH}
    s_add_u32 s{S_T0}, s{S_T0}, {p_base}
    v_mul_u32_u24 v{d}, {PITCH}, v{a}
    v_add_u32 v{d}, s{S_T0}, v{d}
    v_lshl_add_u32 v{V_PW}, v{b}, 3, v{d}
    """)
    if kind == "KV":
        em.e(f"""
        s_mul_i32 s{S_T0+1}, s{S_WV}, {32*200}
        s_add_u32 s{S_T0+1}, s{S_T0+1}, {v_base}
        v_mul_u32_u24 v{d}, 200, v{a}
        v_add_u32 v{d}, s{S_T0+1}, v{d}
        v_lshl_add_u32 v{V_VWA}, v{b}, 3, v{d}
        v_lshl_add_u32 v{V_VWB}, v{b}, 4, v{d}
        """)
    em.e(f"""
    v_and_b32 v{a}, 15, v1
    v_lshrrev_b32 v{b}, 4, v1
    v_mul_u32_u24 v{c}, {PITCH}, v{a}
    v_add_u32 v{c}, s{S_T0}, v{c}
    v_mul_u32_u24 v{d}, 40, v{b}
    v_add_u32 v{V_PR}, v{c}, v{d}
    """)
    if kind == "Q":
        em.e(f"v_mul_u32_u24 v{d}, 1280, v{b}\nv_lshl_add_u32 v{V_OUT}, v{a}, 4, v{d}")
    else:
        em.e(f"v_mul_u32_u24 v{d}, 80, v{b}\nv_add_u32 v{V_OUT}, v{c}, v{d}")
    em.e(f"""
    v_bfe_u32 v{a}, v1, 4, 1
    v_lshrrev_b32 v{b}, 5, v1
    v_bfe_u32 v{c}, v1, 2, 2
    v_and_b32 v{d}, 3, v1
    v_lshlrev_b32 v{a}, 5, v{a}
    v_lshl_add_u32 v{a}, v{d}, 3, v{a}
    v_lshl_add_u32 v{e}, v{b}, 3, v{c}
    v_mul_u32_u24 v{e}, 320, v{e}
    v_add_u32 v{V_TR}, v{e}, v{a}
    v_add_u32 v{V_TR+1}, 0x10000, v{V_TR}
    v_lshl_add_u32 v{e}, v{b}, 2, v{c}
    v_lshl_add_u32 v{e}, v{e}, 6, v{a}
    v_add_u32 v{V_WBD}, {wbd_base}, v{e}
    """)
    if kind == "KV":
        em.e(f"""
        v_lshrrev_b32 v{a}, 4, v1
        v_lshl_add_u32 v{a}, v{a}, 3, v{c}
        v_mul_u32_u24 v{b}, {PITCH}, v{a}
        v_lshl_add_u32 v{b}, v{d}, 3, v{b}
        s_mul_i32 s{S_T0}, s{S_WV}, 80
        s_add_u32 s{S_T0}, s{S_T0}, {p_base}
        v_add_u32 v{V_PHT}, s{S_T0}, v{b}
        v_mul_u32_u24 v{b}, 200, v{a}
        v_lshl_add_u32 v{b}, v{d}, 3, v{b}
        s_mul_i32 s{S_T0+1}, s{S_WV}, 48
        s_add_u32 s{S_T0+1}, s{S_T0+1}, {v_base}
        v_add_u32 v{V_VT}, s{S_T0+1}, v{b}
        """)
    em.e(f"s_mov_b32 s{S_L2E}, {f32bits(LOG2E)}")

def kv_zero(em, st):
    em.e(f"""
    s_mul_i32 s{S_T0}, s{S_C}, 15360
    s_mul_i32 s{S_T0+1}, s{S_M}, 960
    s_add_u32 s{S_T0}, s{S_T0}, s{S_T0+1}
    s_add_u32 s{S_T0}, s{S_T0}, {KVP_OFF}
    v_lshlrev_b32 v{VT}, 4, v0
    v_mov_b32 v{VT+1}, 0x80000000
    v_cmp_gt_u32 vcc, 60, v0
    v_mov_b32 v228, 0
    v_mov_b32 v229, 0
    v_mov_b32 v230, 0
    v_mov_b32 v231, 0
    v_cndmask_b32 v{VT}, v{VT+1}, v{VT}, vcc
    """)
    st["z"] = em.vm(f"buffer_store_dwordx4 v[228:231], v{VT}, s[{S_WS}:{S_WS+3}], s{S_T0} offen sc1")
    em.e("s_nop 1")

def kv_signal(em, st):
    em.wait(vm=st["z"])
    em.e(f"""
    s_lshl_b32 s{S_TMP2}, s{S_C}, 2
    v_mov_b32 v228, 0x80000000
    v_mov_b32 v229, 1
    v_mov_b32 v230, 0
    v_cmp_eq_u32 vcc, 0, v0
    s_nop 1
    v_cndmask_b32 v228, v228, v230, vcc
    """)
    em.vm(f"buffer_atomic_add v229, v228, s[{S_DBG}:{S_DBG+3}], s{S_TMP2} offen sc1")

def kv_epi(em):
    KW, KR, KL, KL2 = V_RD, V_RD + 1, V_RD + 2, V_RD + 3
    em.e(f"""
    v_lshrrev_b32 v{V_SM}, 5, v1
    v_mul_u32_u24 v{V_SM}, 88, v{V_SM}
    v_add_u32 v{V_SM}, v{V_SM}, v{V_VWA}
    v_mov_b32 v{V_SM+2}, 0x3f803f80
    v_mov_b32 v{V_SM+3}, 0x3f803f80
    """)
    em.lds(f"ds_write_b64 v{V_SM}, v[{V_SM+2}:{V_SM+3}] offset:40")
    em.lds(f"ds_write_b64 v{V_SM}, v[{V_SM+2}:{V_SM+3}] offset:88")
    for (t, a) in [(2, 2), (2, 3)] + [(t, a) for t in (3, 4) for a in range(4)]:
        c0 = 32 * t + 8 * a - 80
        p0 = c0 + 4 * (c0 // 20); p1 = (c0 + 4) + 4 * ((c0 + 4) // 20)
        va = V_VWA if p1 - p0 == 4 else V_VWB
        r = ACC0 + 16 * t + 4 * a
        em.e(f"v_cvt_pk_bf16_f32 v{r}, v{r}, v{r+1}")
        em.e(f"v_cvt_pk_bf16_f32 v{r+1}, v{r+2}, v{r+3}")
        em.lds(f"ds_write_b64 v{va}, v[{r}:{r+1}] offset:{p0*2}")
    yield from conv_qf(em, 5)
    yield "BAR"
    stamp3(em, 5)
    yield from chain(em, 3, 5, 2)
    stamp3(em, 6)
    def out_fn(em, ri, O):
        for c in range(5):
            em.last_p = em.lds(f"ds_write_b128 v{V_OUT}, v[{O+4*c}:{O+4*c+3}] offset:{ri*16*PITCH + 16*c}"); yield 3
    yield from softmax_rounds(em, [ri * 16 * PITCH for ri in range(2)], out_fn)
    em.wait(lds=em.last_p)
    stamp3(em, 7)
    x0, x1, x2 = V_CH, V_CH + 1, V_CH + 2
    em.e(f"""
    s_add_u32 s{S_TMP2}, s{S_H0}, s{S_WV}
    s_mul_i32 s{S_OB}, s{S_TMP2}, 3840
    s_add_u32 s{S_OB}, s{S_OB}, {KVP_OFF}
    s_mul_i32 s{S_TMP2}, s{S_WV}, 3360
    s_add_u32 s{S_TMP2}, s{S_TMP2}, {KS3}
    v_and_b32 v{x0}, 15, v1
    v_lshrrev_b32 v{x1}, 4, v1
    v_mul_u32_u24 v{x2}, 160, v{x0}
    v_lshl_add_u32 v{x2}, v{x1}, 4, v{x2}
    v_add_u32 v{KW}, s{S_TMP2}, v{x2}
    v_lshlrev_b32 v{KL}, 2, v1
    v_add_u32 v{KR}, s{S_TMP2}, v{KL}
    v_mov_b32 v{x2}, 0x80000000
    v_cmp_gt_u32 s[60:61], 8, v1
    v_cmp_gt_u32 s[62:63], 2, v{x1}
    v_cmp_gt_u32 s[90:91], 5, v{x0}
    v_cndmask_b32 v{KL2}, v{x2}, v{KL}, s[60:61]
    s_and_b64 s[88:89], s[62:63], s[90:91]
    s_lshl_b32 s{S_TMP2}, s{S_C}, 2
    v_mov_b32 v{V_CH}, 0
    """)
    pv = em.vm(f"buffer_load_dword v{V_CH+1}, v{V_CH}, s[{S_DBG}:{S_DBG+3}], s{S_TMP2} offen sc1")
    em.wait(lds=em.last_p)
    yield "BAR"
    stamp3(em, 11)
    KA = ACC0
    def issue(ks):
        b = V_SM + 20 * (ks % 2)
        for a in range(3):
            for hf in range(2):
                em.lds(f"ds_read_b64_tr_b16 v[{b+4*a+2*hf}:{b+4*a+2*hf+1}], v{V_PHT} offset:{(32*ks+4*hf)*PITCH + 32*a}")
        for bb in range(2):
            for hf in range(2):
                last = em.lds(f"ds_read_b64_tr_b16 v[{b+12+4*bb+2*hf}:{b+12+4*bb+2*hf+1}], v{V_VT} offset:{(32*ks+4*hf)*200 + 32*bb}")
        return last
    l0 = issue(0)
    for ks in range(4):
        if ks < 3: l1 = issue(ks + 1)
        em.wait(lds=l0)
        b = V_SM + 20 * (ks % 2)
        for a in range(3):
            for bb in range(2):
                r = KA + 8 * a + 4 * bb
                c = "0" if ks == 0 else f"v[{r}:{r+3}]"
                em.e(f"v_mfma_f32_16x16x32_bf16 v[{r}:{r+3}], v[{b+4*a}:{b+4*a+3}], v[{b+12+4*bb}:{b+12+4*bb+3}], {c}")
        l0 = l1
    for a in range(3):
        for bb in range(2):
            r = KA + 8 * a + 4 * bb
            msk = [[None, "s[90:91]"], [None, "s[90:91]"], ["s[62:63]", "s[88:89]"]][a][bb]
            if msk: em.e(f"s_mov_b64 exec, {msk}")
            lw = em.lds(f"ds_write_b128 v{KW}, v[{r}:{r+3}] offset:{bb*16*160 + a*64}")
            if msk: em.e("s_mov_b64 exec, -1")
    em.wait(lds=lw)
    stamp3(em, 12)
    rr = [em.lds(f"ds_read_b32 v{V_SM+i}, v{KR} offset:{i*256}") for i in range(14)]
    em.wait(vm=pv)
    em.e(f"""
    v_readfirstlane_b32 s{S_DUM}, v{V_CH+1}
    s_cmp_ge_u32 s{S_DUM}, 16
    s_cbranch_scc1 L3_kv_go
    """)
    em.label("L3_kv_poll")
    em.e(f"""
    s_sleep 8
    buffer_load_dword v{V_CH+1}, v{V_CH}, s[{S_DBG}:{S_DBG+3}], s{S_TMP2} offen sc1
    s_waitcnt vmcnt(0)
    v_readfirstlane_b32 s{S_DUM}, v{V_CH+1}
    s_cmp_lt_u32 s{S_DUM}, 16
    s_cbranch_scc1 L3_kv_poll
    """)
    em.label("L3_kv_go")
    for i in range(14):
        em.wait(lds=rr[i])
        em.vm(f"buffer_atomic_add_f32 v{V_SM+i}, v{KL if i < 13 else KL2}, s[{S_WS}:{S_WS+3}], s{S_OB} offen offset:{i*256}")
    yield 1

def gen_pureF(em, with_f2):
    S_FGB = 99
    rounds = [("F", S_FG), ("F", S_FGB)] + ([("MIX", None, 16384, 0)] if with_f2 else [])
    dests = [0, 8192, 0]
    setup3(em, rounds)
    lab = "C" if with_f2 else "D"
    st = {}; GR = 192
    em.e(f"s_cmp_ge_u32 s{S_W8}, 4\ns_cbranch_scc1 L3_{lab}_h1")
    save = (em.vm_n, em.vm_done, em.lds_n, em.lds_done)
    def pro0(em):
        setup3_reads(em); setup3_F(em)
    def bg0(em):
        r = Rec()
        st["g"] = gate_issue3(r, GR)
        yield from replay(em, r, st)
        yield from gate_bg(em, st["g"], GR, delay=30)
    engine3(em, rounds, dests, [f_tile(64 + 16 * t, 0, t) for t in range(4)], pro0, bgf=bg0)
    stamp3(em, 9)
    em.wait_lgkm0()
    em.e("s_barrier")
    st["f"] = frag_issue(em, FSC3, VT + 2)
    f_tail(em, [(64 + 16 * t, S_HB, t * 512) for t in range(4)])
    frag_finish(em, st["f"], FSC3, 160)
    stamp3(em, 10)
    em.e("s_endpgm")
    em.label(f"L3_{lab}_h1")
    em.vm_n, em.vm_done, em.lds_n, em.lds_done = save
    def pro1(em):
        setup3_reads(em); setup3_F(em)
    tiles = [f_tile(64 + 16 * t, 8192, t) for t in range(4)] + ([f_tile(128 + 16 * t, 16384, t, f2=True) for t in range(2)] if with_f2 else [])
    engine3(em, rounds, dests, tiles, pro1, gp=True)
    stamp3(em, 9)
    em.wait_lgkm0()
    em.e("s_barrier")
    f_tail(em, [(64 + 16 * t, S_HB, 2048 + t * 512) for t in range(4)] + ([(128 + 16 * t, S_HB2, t * 512) for t in range(2)] if with_f2 else []))
    stamp3(em, 10)
    em.e("s_endpgm")

def gen_k1():
    em = Em()
    em.raw(".text\n.globl k1_kernel\n.p2align 8\n.type k1_kernel,@function\nk1_kernel:")
    em.e("s_cmp_ge_u32 s2, 256\ns_cbranch_scc1 L_k1_done")
    T0 = S_T0
    em.e(f"""
    s_load_dwordx4 s[40:43], s[0:1], 0
    s_load_dwordx4 s[44:47], s[0:1], 16
    s_load_dwordx4 s[48:51], s[0:1], 40
    s_load_dwordx4 s[52:55], s[0:1], 56
    s_load_dwordx4 s[56:59], s[0:1], 80
    v_lshrrev_b32 v1, 6, v0
    v_and_b32 v0, 255, v0
    v_readfirstlane_b32 s{S_W8}, v1
    s_and_b32 s{T0}, s2, 1
    s_bfe_u32 s{T0+1}, s2, 0x20001
    s_lshr_b32 s{T0+2}, s2, 3
    s_lshl_b32 s{S_M}, s{T0}, 3
    s_and_b32 s{S_WV}, s{S_W8}, 3
    s_and_b32 s{T0+3}, s{T0+2}, 7
    s_add_u32 s{S_M}, s{S_M}, s{T0+3}
    s_lshr_b32 s{T0+2}, s{T0+2}, 3
    """)
    if OPT.get("codepf"):
        em.e(f"""
        s_getpc_b64 s[28:29]
        s_lshr_b32 s30, s2, 3
        s_mul_i32 s30, s30, ((L_text_end - k1_kernel) / 4096) * 128
        s_and_b32 s28, s28, 0xffffff00
        s_add_u32 s28, s28, s30
        s_addc_u32 s29, s29, 0
        v_and_b32 v2, 63, v0
        v_min_u32 v2, ((L_text_end - k1_kernel) / 4096) - 1, v2
        v_lshlrev_b32 v2, 7, v2
        s_cmp_lg_u32 s{S_W8}, 7
        s_cbranch_scc1 L_k1_nocp
        global_load_dword v250, v2, s[28:29]
        """)
        em.label("L_k1_nocp")
    em.wait_lgkm0()
    srd(em, S_X, 40, 2048 * 1280)
    srd(em, S_WS, 58, WS_BYTES)
    srd(em, S_DBG, 56, 256)
    srd(em, S_G, 48, 640 * 3456)
    srd(em, S_U, 50, 640 * 3456)
    srd(em, S_QKV, 42, 640 * 3840)
    srd(em, S_PHI, 44, 32 * 800)
    stamp3(em, 0)
    em.e(f"""
    s_cmp_eq_u32 s{T0+2}, 3
    s_cbranch_scc1 L_k1_F
    s_lshl_b32 s{T0+4}, s{T0+1}, 1
    s_add_u32 s{T0+4}, s{T0+4}, s{T0+2}
    s_sub_u32 s{S_C}, s{T0+4}, 1
    s_add_u32 s{T0+4}, s{T0+4}, 3
    s_cmp_eq_u32 s{T0+2}, 0
    s_cselect_b32 s{S_C}, s{T0+1}, s{S_C}
    s_cselect_b32 s{S_FG}, s{T0+1}, s{T0+4}
    s_lshr_b32 s{S_FG2}, s{S_FG}, 1
    s_add_u32 s{S_FG2}, s{S_FG2}, 20
    s_and_b32 s{S_TOFF}, s{S_FG}, 1
    s_lshl_b32 s{S_TOFF}, s{S_TOFF}, 1
    s_cmp_lg_u32 s{T0+2}, 0
    s_cbranch_scc1 L_k1_KV
    """)
    save = (em.vm_n, em.vm_done, em.lds_n, em.lds_done)
    def restore(): em.vm_n, em.vm_done, em.lds_n, em.lds_done = save
    gen_special(em, "Q")
    em.label("L_k1_KV"); restore()
    gen_special(em, "KV")
    em.label("L_k1_F"); restore()
    em.e(f"""
    s_lshl_b32 s{S_FG}, s{T0+1}, 1
    s_add_u32 s{S_FG}, s{S_FG}, 12
    s_add_u32 s99, s{S_FG}, 1
    s_mov_b32 s{S_FG2}, 26
    s_and_b32 s{S_TOFF}, s{T0+1}, 1
    s_lshl_b32 s{S_TOFF}, s{S_TOFF}, 1
    s_cmp_ge_u32 s{T0+1}, 2
    s_cbranch_scc1 L_k1_F2
    """)
    gen_pureF(em, True)
    em.label("L_k1_F2"); restore()
    gen_pureF(em, False)
    em.label("L_k1_done")
    em.e("s_endpgm")
    return em.finish(), em
```

```python
from asmlib import *
import k1v2 as k1
from k1v2 import HF_OFF, PQF_OFF, WDF_OFF, OF_OFF, KVP_OFF, G_OFF, FLAG_OFF, WS_BYTES, f32bits, srd

S_WS2 = 4; S_OUT = 8
S_WV2 = 16; S_MT = 17; S_NT = 18; S_A0 = 19; S_B0 = 20; S_U = 21
T = 24
ACC = 16
BUF = 96
NBUF = 4

def stamp2(em, k):
    if not k1.OPT['stamps']: return
    em.e(f"s_memrealtime s[60:61]" if (k1.OPT.get("rt") and k in (0, 9)) else f"s_memtime s[60:61]")
    em.e("s_waitcnt lgkmcnt(0)"); em.lds_done = em.lds_n
    em.e(f"""
    s_lshl_b32 s62, s2, 9
    s_lshl_b32 s63, s{S_WV2}, 6
    s_add_u32 s62, s62, s63
    s_add_u32 s62, s62, {0x14A0000 + 4*k}
    v_mov_b32 v6, s60
    v_mov_b32 v7, 0
    """)
    em.vm(f"buffer_store_dword v6, v7, s[{S_WS2}:{S_WS2+3}], s62 offen")

def stream(em, nsteps, b_tt_stride, b_sc1, gate=None, last_optional=None, NBUF=4):
    ids = {}
    def issue_a(s):
        b = BUF + 36 * (s % NBUF)
        em.e(f"s_add_u32 s{T}, s{S_A0}, {s*5120}")
        for j in range(4):
            em.vm(f"buffer_load_dwordx4 v[{b+4*j}:{b+4*j+3}], v2, s[{S_WS2}:{S_WS2+3}], s{T} offen offset:{j*1024}")
        em.e(f"s_add_u32 s{T}, s{T}, 4096")
        return em.vm(f"buffer_load_dwordx4 v[{b+16}:{b+19}], v2, s[{S_WS2}:{S_WS2+3}], s{T} offen")
    def issue_b(s):
        b = BUF + 36 * (s % NBUF) + 20
        for tt in range(4):
            em.e(f"s_add_u32 s{T}, s{S_B0}, {s*1024 + tt*b_tt_stride}")
            last = em.vm(f"buffer_load_dwordx4 v[{b+4*tt}:{b+4*tt+3}], v2, s[{S_WS2}:{S_WS2+3}], s{T} offen{' sc1' if b_sc1 else ''}")
        return last
    npre = min(NBUF, nsteps)
    if gate is None:
        for s in range(npre):
            if s == k1.OPT.get("k2pre", 0): em.e("s_barrier")
            issue_a(s); ids[s] = issue_b(s)
    else:
        gate(em)
        for s in range(npre):
            issue_a(s); ids[s] = issue_b(s)
    for s in range(nsteps):
        if last_optional and s == nsteps - 1:
            em.e(f"s_cmp_eq_u32 s{T+6}, 0\ns_cbranch_scc1 {last_optional}")
        em.wait(vm=ids[s])
        if s == 0: stamp2(em, 5)
        if s == 4: stamp2(em, 6)
        if s == 1: stamp2(em, 10)
        if s == 2: stamp2(em, 11)
        if s == 8: stamp2(em, 12)
        b = BUF + 36 * (s % NBUF)
        for j in range(5):
            for tt in range(4):
                a = ACC + 4 * (4 * j + tt)
                c = "0" if s == 0 else f"v[{a}:{a+3}]"
                em.e(f"v_mfma_f32_16x16x32_bf16 v[{a}:{a+3}], v[{b+4*j}:{b+4*j+3}], v[{b+20+4*tt}:{b+20+4*tt+3}], {c}")
        if s + NBUF < nsteps:
            issue_a(s + NBUF); ids[s + NBUF] = issue_b(s + NBUF)


def softmax_regs(em, R):
    PK = R; P = R + 10; E = R + 30; Tm = R + 50; O = R + 56
    L = T + 8
    em.e(f"s_mov_b32 s{L}, {f32bits(1.4426950408889634)}")
    for i in range(10):
        em.e(f"v_lshlrev_b32 v{P+2*i}, 16, v{PK+i}\nv_and_b32 v{P+2*i+1}, 0xffff0000, v{PK+i}")
    mx, mn, mx2, mn2 = Tm, Tm + 1, Tm + 2, Tm + 3
    em.e(f"""v_max3_f32 v{mx}, v{P}, v{P+1}, v{P+2}
    v_min3_f32 v{mn}, v{P}, v{P+1}, v{P+2}
    v_max3_f32 v{mx2}, v{P+3}, v{P+4}, v{P+5}
    v_min3_f32 v{mn2}, v{P+3}, v{P+4}, v{P+5}""")
    for i in range(6, 18, 4):
        em.e(f"""v_max3_f32 v{mx}, v{mx}, v{P+i}, v{P+i+1}
        v_min3_f32 v{mn}, v{mn}, v{P+i}, v{P+i+1}
        v_max3_f32 v{mx2}, v{mx2}, v{P+i+2}, v{P+i+3}
        v_min3_f32 v{mn2}, v{mn2}, v{P+i+2}, v{P+i+3}""")
    em.e(f"""v_max3_f32 v{mx}, v{mx}, v{P+18}, v{P+19}
    v_min3_f32 v{mn}, v{mn}, v{P+18}, v{P+19}
    v_max_f32 v{mx}, v{mx}, v{mx2}
    v_min_f32 v{mn}, v{mn}, v{mn2}
    v_mul_f32 v{mx}, s{L}, v{mx}
    v_mul_f32 v{mn}, s{L}, v{mn}""")
    for i in range(0, 20, 2):
        em.e(f"""v_fma_f32 v{E+i}, -v{P+i}, s{L}, v{mn}
        v_fma_f32 v{P+i}, v{P+i}, s{L}, -v{mx}
        v_fma_f32 v{E+i+1}, -v{P+i+1}, s{L}, v{mn}
        v_fma_f32 v{P+i+1}, v{P+i+1}, s{L}, -v{mx}
        v_exp_f32 v{E+i}, v{E+i}
        v_exp_f32 v{P+i}, v{P+i}
        v_exp_f32 v{E+i+1}, v{E+i+1}
        v_exp_f32 v{P+i+1}, v{P+i+1}""")
    sp, sn_, sp2, sn2 = Tm, Tm + 1, Tm + 2, Tm + 3
    em.e(f"""v_add_f32 v{sp}, v{P}, v{P+1}
    v_add_f32 v{sn_}, v{E}, v{E+1}
    v_add_f32 v{sp2}, v{P+2}, v{P+3}
    v_add_f32 v{sn2}, v{E+2}, v{E+3}""")
    for i in range(4, 20, 2):
        em.e(f"""v_add_f32 v{sp}, v{sp}, v{P+i}
        v_add_f32 v{sn_}, v{sn_}, v{E+i}
        v_add_f32 v{sp2}, v{sp2}, v{P+i+1}
        v_add_f32 v{sn2}, v{sn2}, v{E+i+1}""")
    em.e(f"""v_add_f32 v{sp}, v{sp}, v{sp2}
    v_add_f32 v{sn_}, v{sn_}, v{sn2}
    v_rcp_f32 v{sp}, v{sp}
    v_rcp_f32 v{sn_}, v{sn_}""")
    for i in range(10):
        em.e(f"""v_mul_f32 v{P+2*i}, v{P+2*i}, v{sp}
        v_mul_f32 v{P+2*i+1}, v{P+2*i+1}, v{sp}
        v_mul_f32 v{E+2*i}, v{E+2*i}, v{sn_}
        v_mul_f32 v{E+2*i+1}, v{E+2*i+1}, v{sn_}
        v_cvt_pk_bf16_f32 v{O+i}, v{P+2*i}, v{P+2*i+1}
        v_cvt_pk_bf16_f32 v{O+10+i}, v{E+2*i}, v{E+2*i+1}""")

def gen_k2():
    em = Em()
    em.raw(".text\n.globl k2_kernel\n.p2align 8\n.type k2_kernel,@function\nk2_kernel:")
    em.e("s_cmp_ge_u32 s2, 256\ns_cbranch_scc1 L_k2_done")
    em.e(f"""
    s_load_dwordx2 s[40:41], s[0:1], 72
    s_load_dwordx2 s[44:45], s[0:1], 88
    v_lshrrev_b32 v1, 6, v0
    v_and_b32 v3, 63, v0
    v_readfirstlane_b32 s{S_WV2}, v1
    v_lshlrev_b32 v2, 4, v3
    s_lshr_b32 s{T+1}, s2, 3
    s_and_b32 s{S_NT}, s{T+1}, 3
    s_and_b32 s{T}, s2, 1
    s_lshl_b32 s{T}, s{T}, 2
    s_add_u32 s{S_NT}, s{S_NT}, s{T}
    s_lshr_b32 s{T+1}, s{T+1}, 2
    s_bfe_u32 s{T}, s2, 0x20001
    s_lshl_b32 s{S_MT}, s{T}, 3
    s_add_u32 s{S_MT}, s{S_MT}, s{T+1}
    s_mul_i32 s{S_A0}, s{S_NT}, {74*5120}
    s_add_u32 s{S_A0}, s{S_A0}, {WDF_OFF}
    """)
    em.wait_lgkm0()
    srd(em, S_OUT, 40, 2048 * 1280)
    srd(em, S_WS2, 44, WS_BYTES)
    CNT = 4 * 20480 + 8192
    stamp2(em, 0)
    em.e(f"s_cmp_ge_u32 s{S_WV2}, 4\ns_cbranch_scc1 L_k2_owave")
    save = (em.vm_n, em.vm_done, em.lds_n, em.lds_done)
    em.e(f"""
    s_mul_i32 s{T}, s{S_WV2}, 14
    s_cmp_eq_u32 s{S_WV2}, 3
    s_cselect_b32 s{T+1}, 1, 0
    s_sub_u32 s{T}, s{T}, s{T+1}
    s_cmp_lt_u32 s{S_WV2}, 2
    s_cselect_b32 s{T+6}, 1, 0
    s_mul_i32 s{T+1}, s{T}, 5120
    s_add_u32 s{S_A0}, s{S_A0}, s{T+1}
    s_mul_i32 s{S_B0}, s{S_MT}, {4*54*1024}
    s_lshl_b32 s{T+1}, s{T}, 10
    s_add_u32 s{S_B0}, s{S_B0}, s{T+1}
    s_add_u32 s{S_B0}, s{S_B0}, {HF_OFF}
    """)
    stream(em, 14, 54 * 1024, False, last_optional="L_k2_final", NBUF=k1.OPT.get("k2nb", 4))
    em.e("s_branch L_k2_final")
    em.label("L_k2_owave")
    em.vm_n, em.vm_done, em.lds_n, em.lds_done = save
    MP = 144
    if k1.OPT.get("k2noo"): em.e("s_barrier\ns_branch L_k2_final")
    if k1.OPT.get("k2prio", 0): em.e("s_setprio 3")
    em.e(f"""
    s_sub_u32 s{S_U}, s{S_WV2}, 4
    s_mul_i32 s{T+2}, s{S_WV2}, 20480
    s_lshl_b32 s{T}, s{S_NT}, 2
    s_add_u32 s{T}, s{T}, s{S_U}
    s_mul_i32 s{T}, s{T}, 3840
    s_add_u32 s{T}, s{T}, {KVP_OFF}
    """)
    KV = 16
    for i in range(4):
        kvl = em.vm(f"buffer_load_dwordx4 v[{KV+4*i}:{KV+4*i+3}], v2, s[{S_WS2}:{S_WS2+3}], s{T} offen offset:{i*1024}")
    em.e(f"""
    s_mul_i32 s{T}, s{S_MT}, {64*1280}
    s_lshl_b32 s{T+1}, s{S_NT}, 2
    s_add_u32 s{T+1}, s{T+1}, s{S_U}
    s_mul_i32 s{T+1}, s{T+1}, 2560
    s_add_u32 s{T}, s{T}, s{T+1}
    s_add_u32 s{T}, s{T}, {PQF_OFF}
    v_mul_u32_u24 v8, 40, v3
    """)
    PF = 176; SMR = 96
    for i in range(5):
        pf_last = em.vm(f"buffer_load_dwordx2 v[{SMR+2*i}:{SMR+2*i+1}], v8, s[{S_WS2}:{S_WS2+3}], s{T} offen offset:{8*i}")
    em.e(f"""
    v_mov_b32 v4, 0
    v_mov_b32 v5, 0
    v_mov_b32 v6, 0
    v_mov_b32 v7, 0
    v_add_u32 v9, s{T+2}, v2
    """)
    for i in range(16):
        em.lds(f"ds_write_b128 v9, v[4:7] offset:{i*1024}")
    if k1.OPT.get("k2bar", 1) == 0: em.e("s_barrier")
    em.e(f"s_mov_b32 s{T+4}, s{T+2}")
    for i in range(4):
        em.e(f"""
        v_add_u32 v9, {64*i}, v3
        v_mul_u32_u24 v10, 6554, v9
        v_lshrrev_b32 v10, 16, v10
        v_mul_u32_u24 v11, 10, v10
        v_sub_u32 v11, v9, v11
        v_mul_u32_u24 v12, {MP}, v10
        v_lshl_add_u32 v12, v11, 3, v12
        v_add_u32 v{40+i}, s{T+4}, v12
        """)
        if i == 3:
            em.e(f"""
            v_lshlrev_b32 v12, 3, v11
            v_add_u32 v44, s{T+4}, v12
            v_cmp_eq_u32 s[46:47], 20, v10
            v_cmp_gt_u32 s[48:49], 20, v10
            """)
    em.e(f"""
    v_and_b32 v9, 15, v3
    v_lshrrev_b32 v10, 4, v3
    v_mul_u32_u24 v11, {MP}, v9
    v_lshl_add_u32 v11, v10, 4, v11
    v_add_u32 v11, s{T+2}, v11
    s_mul_i32 s{T}, s{S_NT}, 20
    s_mul_i32 s{T+1}, s{S_U}, 5
    s_add_u32 s{T}, s{T}, s{T+1}
    v_add_u32 v12, s{T}, v10
    v_add_u32 v13, 4, v12
    v_lshrrev_b32 v14, 1, v12
    v_lshlrev_b32 v14, 8, v14
    v_and_b32 v12, 1, v12
    v_lshl_add_u32 v12, v12, 3, v14
    v_lshl_add_u32 v12, v9, 4, v12
    v_lshrrev_b32 v14, 1, v13
    v_lshlrev_b32 v14, 8, v14
    v_and_b32 v13, 1, v13
    v_lshl_add_u32 v13, v13, 3, v14
    v_lshl_add_u32 v13, v9, 4, v13
    v_mov_b32 v14, 0x80000000
    v_cmp_eq_u32 vcc, 0, v10
    s_mul_i32 s{T}, s{S_MT}, {4*20480}
    s_add_u32 s{T}, s{T}, {OF_OFF}
    v_cndmask_b32 v13, v14, v13, vcc
    """)
    em.wait(vm=kvl)
    if k1.OPT.get("k2bar", 1) == 1:
        em.wait(vm=pf_last); em.e("s_barrier")
    stamp2(em, 1)
    for i in range(4):
        r = KV + 4 * i
        em.e(f"v_cvt_pk_bf16_f32 v{r}, v{r}, v{r+1}\nv_cvt_pk_bf16_f32 v{r+1}, v{r+2}, v{r+3}")
    for i in range(3):
        r = KV + 4 * i
        em.lds(f"ds_write_b64 v{40+i}, v[{r}:{r+1}]")
    r = KV + 12
    em.e("s_mov_b64 s[50:51], exec\ns_mov_b64 exec, s[48:49]")
    em.lds(f"ds_write_b64 v43, v[{r}:{r+1}]")
    em.e("s_mov_b64 exec, s[46:47]")
    for d in range(16):
        em.lds(f"ds_write_b64 v44, v[{r}:{r+1}] offset:{(32 + d)*MP}")
    em.e("s_mov_b64 exec, s[50:51]")
    em.wait_lgkm0()
    AF = 48
    for t in range(3):
        for s in range(2):
            r = AF + 4 * (2 * t + s)
            em.lds(f"ds_read_b128 v[{r}:{r+3}], v11 offset:{16*t*MP + 64*s}")
    em.wait(vm=pf_last)
    softmax_regs(em, SMR)
    O = SMR + 56
    PHB = 48 * MP
    em.e(f"v_mul_u32_u24 v8, {MP}, v3\nv_add_u32 v8, s{T+2}, v8")
    for c in range(5):
        em.lds(f"ds_write_b128 v8, v[{O+4*c}:{O+4*c+3}] offset:{PHB + 16*c}")
    em.wait_lgkm0()
    for tt in range(4):
        for s_ in range(2):
            r = PF + 4 * (2 * tt + s_)
            em.lds(f"ds_read_b128 v[{r}:{r+3}], v11 offset:{PHB + 16*tt*MP + 64*s_}")
    em.wait_lgkm0()
    stamp2(em, 2)
    OA = 72
    for tt in range(4):
        for t in range(3):
            for s in range(2):
                a = OA + 12 * tt + 4 * t
                c = "0" if s == 0 else f"v[{a}:{a+3}]"
                r = AF + 4 * (2 * t + s); p = PF + 4 * (2 * tt + s)
                em.e(f"v_mfma_f32_16x16x32_bf16 v[{a}:{a+3}], v[{r}:{r+3}], v[{p}:{p+3}], {c}")
    for tt in range(4):
        de = OA + 12 * tt + 8
        em.e(f"""
        v_cvt_pk_bf16_f32 v6, v{de}, v{de}
        v_lshlrev_b32 v6, 16, v6
        v_add_f32 v6, {f32bits(1e-6)}, v6
        v_cvt_pk_bf16_f32 v6, v6, v6
        v_lshlrev_b32 v6, 16, v6
        v_rcp_f32 v6, v6
        """)
        for t in range(2):
            nu = OA + 12 * tt + 4 * t
            em.e(f"""
            v_cvt_pk_bf16_f32 v4, v{nu}, v{nu+1}
            v_cvt_pk_bf16_f32 v5, v{nu+2}, v{nu+3}
            v_lshlrev_b32 v{nu}, 16, v4
            v_and_b32 v{nu+1}, 0xffff0000, v4
            v_lshlrev_b32 v{nu+2}, 16, v5
            v_and_b32 v{nu+3}, 0xffff0000, v5
            v_mul_f32 v{nu}, v{nu}, v6
            v_mul_f32 v{nu+1}, v{nu+1}, v6
            v_mul_f32 v{nu+2}, v{nu+2}, v6
            v_mul_f32 v{nu+3}, v{nu+3}, v6
            v_cvt_pk_bf16_f32 v{nu}, v{nu}, v{nu+1}
            v_cvt_pk_bf16_f32 v{nu+1}, v{nu+2}, v{nu+3}
            """)
            em.vm(f"buffer_store_dwordx2 v[{nu}:{nu+1}], v{12 + t}, s[{S_WS2}:{S_WS2+3}], s{T} offen sc1")
        em.e(f"s_add_u32 s{T}, s{T}, 20480")
    em.e(f"""
    s_mul_i32 s{T}, s{S_U}, {5*5120}
    s_add_u32 s{S_A0}, s{S_A0}, s{T}
    s_add_u32 s{S_A0}, s{S_A0}, {54*5120}
    s_mul_i32 s{S_B0}, s{S_MT}, {4*20480}
    s_mul_i32 s{T}, s{S_U}, {5*1024}
    s_add_u32 s{S_B0}, s{S_B0}, s{T}
    s_add_u32 s{S_B0}, s{S_B0}, {OF_OFF}
    """)
    if k1.OPT.get("k2bar", 1) == 2: em.e("s_barrier")
    stamp2(em, 3)
    BB = 96; AA = 176
    def issue_a(s):
        b = AA + 20 * (s % 4)
        em.e(f"s_add_u32 s{T}, s{S_A0}, {s*5120}")
        for j in range(4):
            em.vm(f"buffer_load_dwordx4 v[{b+4*j}:{b+4*j+3}], v2, s[{S_WS2}:{S_WS2+3}], s{T} offen offset:{j*1024}")
        em.e(f"s_add_u32 s{T}, s{T}, 4096")
        return em.vm(f"buffer_load_dwordx4 v[{b+16}:{b+19}], v2, s[{S_WS2}:{S_WS2+3}], s{T} offen")
    em.e("s_nop 1")
    if k1.OPT.get("k2prio", 0) == 2: em.e("s_setprio 0")
    issue_a(0); issue_a(1); issue_a(2); issue_a(3)
    em.label("L_k2_prepoll")
    em.e(f"s_add_u32 s{T}, s{S_B0}, {3*20480}")
    for s in range(4):
        r = BB + 16 * s + 12
        em.e(f"buffer_load_dwordx4 v[{r}:{r+3}], v2, s[{S_WS2}:{S_WS2+3}], s{T} offen offset:{s*1024} sc1")
    em.e(f"s_add_u32 s{T}, s{T}, 4096")
    em.e(f"buffer_load_dwordx4 v[{BB+76}:{BB+79}], v2, s[{S_WS2}:{S_WS2+3}], s{T} offen sc1")
    em.e("s_waitcnt vmcnt(0)")
    em.e(f"v_max_u32 v4, v{BB+12}, v{BB+14}")
    for s in range(1, 5):
        em.e(f"v_max3_u32 v4, v4, v{BB+16*s+12}, v{BB+16*s+14}")
    em.e(f"""
    v_cmp_eq_u32 vcc, -1, v4
    s_nop 1
    s_cmp_eq_u64 vcc, 0
    s_cbranch_scc1 L_k2_poll
    s_sleep {k1.OPT.get("k2sleep", 8)}
    s_branch L_k2_prepoll
    """)
    def bulk(flag, tts):
        for tt in tts:
            em.e(f"s_add_u32 s{T}, s{S_B0}, {tt*20480}")
            for s in range(4):
                r = BB + 16 * s + 4 * tt
                em.e(f"buffer_load_dwordx4 v[{r}:{r+3}], v2, s[{S_WS2}:{S_WS2+3}], s{T} offen offset:{s*1024}{flag}")
            r = BB + 64 + 4 * tt
            em.e(f"s_add_u32 s{T}, s{T}, 4096")
            em.e(f"buffer_load_dwordx4 v[{r}:{r+3}], v2, s[{S_WS2}:{S_WS2+3}], s{T} offen{flag}")
        em.e("s_waitcnt vmcnt(0)")
        em.vm_done = em.vm_n
        em.e(f"v_max_u32 v4, v{BB}, v{BB+2}\nv_max_u32 v5, v{BB+4}, v{BB+6}")
        for k in range(2, 20, 2):
            em.e(f"v_max3_u32 v4, v4, v{BB+4*k}, v{BB+4*k+2}\nv_max3_u32 v5, v5, v{BB+4*k+4}, v{BB+4*k+6}")
        em.e("""
        v_max_u32 v4, v4, v5
        v_cmp_eq_u32 vcc, -1, v4
        s_nop 1
        s_cmp_eq_u64 vcc, 0
        s_cbranch_scc1 L_k2_go
        """)
    em.label("L_k2_poll")
    bulk("", [0, 1, 2])
    em.label("L_k2_poll2")
    bulk(" sc1", [0, 1, 2])
    em.e("s_sleep 2\ns_branch L_k2_poll2")
    em.label("L_k2_go")
    stamp2(em, 4)
    aid = {}
    for s in range(5):
        if s in aid: em.wait(vm=aid[s])
        b = AA + 20 * (s % 4)
        for j in range(5):
            for tt in range(4):
                a = ACC + 4 * (4 * j + tt)
                c = "0" if s == 0 else f"v[{a}:{a+3}]"
                r = BB + 16 * s + 4 * tt
                em.e(f"v_mfma_f32_16x16x32_bf16 v[{a}:{a+3}], v[{b+4*j}:{b+4*j+3}], v[{r}:{r+3}], {c}")
        if s == 0: aid[4] = issue_a(4)
    em.label("L_k2_final")
    em.e("s_nop 7\ns_nop 7")
    em.e("s_waitcnt vmcnt(0)")
    em.lds_done = em.lds_n; em.vm_done = em.vm_n
    stamp2(em, 7)
    em.e(f"s_mul_i32 s{T}, s{S_WV2}, 20480\nv_add_u32 v8, s{T}, v2")
    for k in range(20):
        em.lds(f"ds_write_b128 v8, v[{ACC+4*k}:{ACC+4*k+3}] offset:{k*1024}")
    em.e(f"""
    v_and_b32 v9, 15, v3
    v_lshrrev_b32 v10, 4, v3
    s_and_b32 s{T+7}, s{S_WV2}, 3
    s_lshl_b32 s{T}, s{S_MT}, 6
    s_lshl_b32 s{T+1}, s{T+7}, 4
    s_add_u32 s{T}, s{T}, s{T+1}
    v_add_u32 v11, s{T}, v9
    v_lshlrev_b32 v12, 2, v11
    s_mov_b32 s{T+2}, {G_OFF}
    """)
    gl = em.vm(f"buffer_load_dword v13, v12, s[{S_WS2}:{S_WS2+3}], s{T+2} offen")
    em.wait_lgkm0()
    em.e("s_barrier")
    stamp2(em, 8)
    em.e(f"""
    s_lshl_b32 s{T+1}, s{T+7}, 10
    s_cmp_ge_u32 s{S_WV2}, 4
    s_cselect_b32 s{T+3}, {3*4096}, 0
    s_cselect_b32 s{T+5}, 96, 0
    s_add_u32 s{T+1}, s{T+1}, s{T+3}
    v_add_u32 v8, s{T+1}, v2
    v_add_u32 v14, 61440, v8
    v_add_u32 v15, 122880, v8
    s_movk_i32 s{T+3}, 1280
    v_mul_lo_u32 v11, v11, s{T+3}
    v_lshl_add_u32 v11, v10, 3, v11
    s_mul_i32 s{T+4}, s{S_NT}, 160
    s_add_u32 s{T+4}, s{T+4}, s{T+5}
    """)
    R0 = 16
    ids = []
    for j in range(3):
        for p in range(8):
            r = R0 + 32 * j + 4 * p
            ids.append(em.lds(f"ds_read_b128 v[{r}:{r+3}], v{[8,14,15][p//3]} offset:{(p%3)*20480 + (j*4096 if j < 2 else 0)}") if j < 2 else None)
        if j == 0:
            em.wait(vm=gl)
            em.e(f"""
            v_sub_f32 v12, 1.0, v13
            v_cvt_pk_bf16_f32 v12, v12, v12
            v_lshlrev_b32 v12, 16, v12
            """)
    def fin(j, lastid):
        em.wait(lds=lastid)
        r = R0 + 32 * j
        for i in range(4):
            em.e(f"""
            v_add_f32 v{r+i}, v{r+i}, v{r+4+i}
            v_add_f32 v{r+8+i}, v{r+8+i}, v{r+12+i}
            v_add_f32 v{r+16+i}, v{r+16+i}, v{r+20+i}
            v_add_f32 v{r+24+i}, v{r+24+i}, v{r+28+i}
            """)
        for i in range(4):
            em.e(f"v_add_f32 v{r+i}, v{r+i}, v{r+8+i}\nv_add_f32 v{r+24+i}, v{r+24+i}, v{r+16+i}")
        for h in range(2):
            b0, a0 = r + 2 * h, r + 24 + 2 * h
            em.e(f"""
            v_cvt_pk_bf16_f32 v4, v{b0}, v{b0+1}
            v_cvt_pk_bf16_f32 v5, v{a0}, v{a0+1}
            v_lshlrev_b32 v{b0}, 16, v4
            v_and_b32 v{b0+1}, 0xffff0000, v4
            v_lshlrev_b32 v{a0}, 16, v5
            v_and_b32 v{a0+1}, 0xffff0000, v5
            v_mul_f32 v{b0}, v{b0}, v12
            v_mul_f32 v{b0+1}, v{b0+1}, v12
            v_mul_f32 v{a0}, v{a0}, v13
            v_mul_f32 v{a0+1}, v{a0+1}, v13
            v_cvt_pk_bf16_f32 v4, v{b0}, v{b0+1}
            v_cvt_pk_bf16_f32 v5, v{a0}, v{a0+1}
            v_lshlrev_b32 v{b0}, 16, v4
            v_and_b32 v{b0+1}, 0xffff0000, v4
            v_lshlrev_b32 v{a0}, 16, v5
            v_and_b32 v{a0+1}, 0xffff0000, v5
            v_add_f32 v{b0}, v{b0}, v{a0}
            v_add_f32 v{b0+1}, v{b0+1}, v{a0+1}
            v_cvt_pk_bf16_f32 v{r+4+h}, v{b0}, v{b0+1}
            """)
        em.vm(f"buffer_store_dwordx2 v[{r+4}:{r+5}], v11, s[{S_OUT}:{S_OUT+3}], s{T+4} offen offset:{j*32}")
    fin(0, ids[7]); fin(1, ids[15])
    em.e(f"s_cmp_ge_u32 s{S_WV2}, 4\ns_cbranch_scc1 L_k2_done")
    for p in range(8):
        r = R0 + 64 + 4 * p
        last = em.lds(f"ds_read_b128 v[{r}:{r+3}], v{[8,14,15][p//3]} offset:{(p%3)*20480 + 2*4096}")
    fin(2, last)
    stamp2(em, 9)
    em.label("L_k2_done")
    em.e("s_endpgm")
    return em.finish(), em
```

```python
from asmlib import *
import k1v2 as K
from k1v2 import *

S_W8 = 98
S_RS = 100
R_SRD = [40, 44 - 44 + 56, 60 - 60 + 80, 84]
R_OFF = [88, 89, 90, 91]
R_INC = [60, 61, 62, 63]
V_RD = 8
V_XF = 176

WPART = 22528
NWS = 5
XB3 = NWS * WPART
XSL3 = 16384; NXS3 = 3
DUMMY = XB3 + NXS3 * XSL3
S_RM = 62
S_RI = 63

def stamp3(em, k):
    if not OPT["stamps"]: return
    em.e(f"s_memrealtime s[30:31]" if (OPT.get("rt") and k in (0, 10)) else f"s_memtime s[30:31]")
    em.e("s_waitcnt lgkmcnt(0)"); em.lds_done = em.lds_n
    em.e(f"""
    s_lshl_b32 s28, s2, 9
    s_lshl_b32 s29, s{S_W8}, 6
    s_add_u32 s28, s28, s29
    s_add_u32 s28, s28, {STAMP_OFF + 4*k}
    v_mov_b32 v248, s30
    v_mov_b32 v249, 0
    """)
    em.vm(f"buffer_store_dword v248, v249, s[{S_WS}:{S_WS+3}], s28 offen")

def setup3(em, rounds):
    a, b, c, d, e = VT, VT + 1, VT + 2, VT + 3, VT + 4
    em.e(f"""
    v_and_b32 v1, 63, v0
    v_lshrrev_b32 v{a}, 3, v1
    v_and_b32 v{b}, 7, v1
    v_lshrrev_b32 v{c}, 4, v1
    v_xor_b32 v{c}, v{b}, v{c}
    v_lshlrev_b32 v{c}, 4, v{c}
    s_lshl_b32 s{S_T0}, s{S_M}, 7
    s_lshl_b32 s{S_T0+1}, s{S_W8}, 4
    s_add_u32 s{S_T0}, s{S_T0}, s{S_T0+1}
    v_add_u32 v{d}, s{S_T0}, v{a}
    v_mul_u32_u24 v{d}, 1280, v{d}
    v_add_u32 v{V_XD}, v{d}, v{c}
    v_xor_b32 v{c}, 64, v{c}
    v_add_u32 v{V_XD+1}, v{d}, v{c}
    v_add_u32 v{V_XD+1}, {8*1280}, v{V_XD+1}
    s_lshl_b32 s{S_MX}, s{S_W8}, 11
    s_add_u32 s{S_MX}, s{S_MX}, {XB3}
    s_lshl_b32 s{S_MW}, s{S_W8}, 10
    """)
    for r, rd in enumerate(rounds):
        sr = R_SRD[r]
        if rd[0] == "QKV":
            kind, second = rd[1], rd[2]
            em.e(f"""
            s_lshl_b32 s{S_T0}, s{S_W8}, 6
            s_add_u32 s{S_T0}, s{S_T0}, {512 if second else 0}
            v_add_u32 v{a}, s{S_T0}, v1
            v_mul_u32_u24 v{b}, 3277, v{a}
            v_lshrrev_b32 v{b}, 16, v{b}
            v_mul_u32_u24 v{c}, 20, v{b}
            v_sub_u32 v{c}, v{a}, v{c}
            v_mul_u32_u24 v{b}, 3840, v{b}
            v_lshl_add_u32 v{V_RD+r}, v{c}, 4, v{b}
            """)
            if kind == "KV":
                em.e(f"""
                v_cmp_le_u32 vcc, 10, v{c}
                v_add_u32 v{b}, 1120, v{V_RD+r}
                s_nop 0
                v_cndmask_b32 v{V_RD+r}, v{V_RD+r}, v{b}, vcc
                s_mul_i32 s{R_OFF[r]}, s{S_C}, 160
                s_add_u32 s{R_OFF[r]}, s{R_OFF[r]}, 1280
                """)
            else:
                em.e(f"s_mul_i32 s{R_OFF[r]}, s{S_C}, 320")
            if second:
                em.e(f"""
                v_cmp_gt_u32 vcc, 640, v{a}
                v_mov_b32 v{b}, 0x80000000
                s_nop 0
                v_cndmask_b32 v{V_RD+r}, v{b}, v{V_RD+r}, vcc
                """)
            em.e(f"""
            s_mov_b32 s{sr}, s{S_QKV}
            s_mov_b32 s{sr+1}, s{S_QKV+1}
            s_mov_b32 s{sr+2}, {640*3840}
            s_mov_b32 s{sr+3}, 0x00020000
            """)
        elif rd[0] == "MIX":
            kind, f2off, qoff = rd[1], rd[2], rd[3]
            em.e(f"""
            v_lshrrev_b32 v{a}, 2, v1
            v_and_b32 v{b}, 3, v1
            s_and_b32 s{S_T0}, s{S_W8}, 2
            v_xor_b32 v{b}, s{S_T0}, v{b}
            s_and_b32 s{S_T0}, s{S_W8}, 1
            s_lshl_b32 s{S_T0}, s{S_T0}, 4
            v_add_u32 v{a}, s{S_T0}, v{a}
            v_mul_u32_u24 v{a}, 3456, v{a}
            v_lshl_add_u32 v{V_RD+r}, v{b}, 4, v{a}
            s_lshl_b32 s{R_OFF[r]}, s{S_FG2}, 7
            s_lshl_b32 s{S_T0}, s{S_TOFF}, 5
            s_add_u32 s{R_OFF[r]}, s{R_OFF[r]}, s{S_T0}
            s_mov_b32 s{S_RI}, {32*3456}
            s_add_u32 s{S_RM}, s{S_MW}, {f2off}
            s_cmp_lt_u32 s{S_W8}, 2
            s_cselect_b32 s{sr}, s{S_G}, s{S_U}
            s_cselect_b32 s{sr+1}, s{S_G+1}, s{S_U+1}
            s_mov_b32 s{sr+2}, {640*3456}
            s_mov_b32 s{sr+3}, 0x00020000
            """)
            if kind:
                em.e(f"""
                s_lshl_b32 s{S_T0}, s{S_W8}, 6
                s_add_u32 s{S_T0}, s{S_T0}, 256
                v_add_u32 v{a}, s{S_T0}, v1
                v_mul_u32_u24 v{b}, 3277, v{a}
                v_lshrrev_b32 v{b}, 16, v{b}
                v_mul_u32_u24 v{c}, 20, v{b}
                v_sub_u32 v{c}, v{a}, v{c}
                v_mul_u32_u24 v{b}, 3840, v{b}
                v_lshl_add_u32 v{d}, v{c}, 4, v{b}
                """)
                if kind == "KV":
                    em.e(f"""
                    v_cmp_le_u32 vcc, 10, v{c}
                    v_add_u32 v{b}, 1120, v{d}
                    s_nop 0
                    v_cndmask_b32 v{d}, v{d}, v{b}, vcc
                    """)
                em.e(f"""
                s_cmp_ge_u32 s{S_W8}, 4
                s_cselect_b64 vcc, -1, 0
                s_cselect_b32 s{sr}, s{S_QKV}, s{sr}
                s_cselect_b32 s{sr+1}, s{S_QKV+1}, s{sr+1}
                s_cselect_b32 s{sr+2}, {640*3840}, s{sr+2}
                s_cselect_b32 s{R_OFF[r]}, s{R_OFF[0]}, s{R_OFF[r]}
                s_cselect_b32 s{S_RI}, {32*3840}, s{S_RI}
                s_add_u32 s{S_T0}, s{S_MW}, {qoff - 4096}
                s_cmp_ge_u32 s{S_W8}, 4
                s_cselect_b32 s{S_RM}, s{S_T0}, s{S_RM}
                v_cndmask_b32 v{V_RD+r}, v{V_RD+r}, v{d}, vcc
                """)
            lim = 6 if kind else 4
            em.e(f"""
            s_cmp_ge_u32 s{S_W8}, {lim}
            s_cselect_b64 vcc, -1, 0
            v_mov_b32 v{b}, 0x80000000
            s_nop 0
            v_cndmask_b32 v{V_RD+r}, v{V_RD+r}, v{b}, vcc
            """)
        else:
            sg = rd[1]
            em.e(f"""
            v_lshrrev_b32 v{a}, 3, v1
            v_and_b32 v{b}, 7, v1
            v_bfe_u32 v{c}, v1, 4, 1
            v_lshlrev_b32 v{c}, 1, v{c}
            v_xor_b32 v{c}, v{c}, v{b}
            s_and_b32 s{S_T0}, s{S_W8}, 4
            v_xor_b32 v{c}, s{S_T0}, v{c}
            v_lshlrev_b32 v{c}, 4, v{c}
            s_lshl_b32 s{S_T0}, s{S_WV}, 3
            v_add_u32 v{a}, s{S_T0}, v{a}
            v_mul_u32_u24 v{a}, 3456, v{a}
            v_add_u32 v{V_RD+r}, v{a}, v{c}
            s_lshl_b32 s{R_OFF[r]}, s{sg}, 7
            s_cmp_lt_u32 s{S_W8}, 4
            s_cselect_b32 s{sr}, s{S_G}, s{S_U}
            s_cselect_b32 s{sr+1}, s{S_G+1}, s{S_U+1}
            s_mov_b32 s{sr+2}, {640*3456}
            s_mov_b32 s{sr+3}, 0x00020000
            """)

def setup3_reads(em):
    a, b, c, d, e = VT, VT + 1, VT + 2, VT + 3, VT + 4
    em.e(f"""
    v_and_b32 v{a}, 31, v1
    v_lshrrev_b32 v{b}, 5, v1
    v_bfe_u32 v{c}, v1, 1, 3
    v_xor_b32 v{c}, v{c}, v{b}
    v_lshlrev_b32 v{d}, 7, v{a}
    s_lshl_b32 s{S_T0}, s{S_WV}, 12
    s_add_u32 s{S_T0}, s{S_T0}, {XB3}
    v_add_u32 v{d}, s{S_T0}, v{d}
    """)
    for sp in range(4):
        em.e(f"v_xor_b32 v{e}, {2*sp}, v{c}\nv_lshl_add_u32 v{V_XR+sp}, v{e}, 4, v{d}")

def setup3_F(em):
    a, b, c, d, e = VT, VT + 1, VT + 2, VT + 3, VT + 4
    em.e(f"""
    v_bfe_u32 v{a}, v1, 4, 1
    v_lshrrev_b32 v{b}, 5, v1
    v_bfe_u32 v{c}, v1, 2, 2
    v_and_b32 v{d}, 3, v1
    v_lshlrev_b32 v{e}, 12, v{a}
    v_lshl_add_u32 v{e}, v{b}, 10, v{e}
    v_lshl_add_u32 v{e}, v{c}, 7, v{e}
    v_lshl_add_u32 v{e}, v{d}, 3, v{e}
    v_lshrrev_b32 v{c}, 1, v{c}
    v_lshl_or_b32 v{c}, v{a}, 1, v{c}
    """)
    for t in range(4):
        em.e(f"v_xor_b32 v{d}, {t}, v{c}\nv_lshl_add_u32 v{V_FT+t}, v{d}, 5, v{e}\nv_add_u32 v{V_FT+4+t}, 0x10000, v{V_FT+t}")
    em.e(f"""
    s_lshl_b32 s{S_T0}, s{S_WV}, 1
    v_add_u32 v{a}, s{S_T0}, v{a}
    s_mov_b32 s{S_T0+1}, {54*1024}
    v_mul_lo_u32 v{a}, v{a}, s{S_T0+1}
    v_and_b32 v{c}, 15, v1
    v_lshl_add_u32 v{c}, v{b}, 4, v{c}
    v_lshl_add_u32 v{V_FS}, v{c}, 4, v{a}
    s_mul_i32 s{S_HB}, s{S_M}, {8*54*1024}
    s_add_u32 s{S_HB}, s{S_HB}, {HF_OFF}
    s_lshl_b32 s{S_T0}, s{S_FG2}, 11
    s_add_u32 s{S_HB2}, s{S_HB}, s{S_T0}
    s_lshl_b32 s{S_T0}, s{S_TOFF}, 9
    s_add_u32 s{S_HB2}, s{S_HB2}, s{S_T0}
    s_lshl_b32 s{S_T0}, s{S_FG}, 11
    s_add_u32 s{S_HB}, s{S_HB}, s{S_T0}
    v_mov_b32 v{V_GC0}, {f32bits(GC0)}
    v_mov_b32 v{V_PKC}, {f32bits(GC1)}
    v_mov_b32 v{V_PKC+1}, {f32bits(GC1)}
    v_mov_b32 v{V_PKC+2}, {f32bits(GC0)}
    v_mov_b32 v{V_PKC+3}, {f32bits(GC0)}
    v_bfe_u32 v{a}, v1, 4, 1
    v_bfe_u32 v{c}, v1, 2, 2
    v_and_b32 v{d}, 3, v1
    v_lshlrev_b32 v{e}, 11, v{a}
    v_lshl_add_u32 v{e}, v{b}, 9, v{e}
    v_lshl_add_u32 v{e}, v{c}, 6, v{e}
    v_lshl_add_u32 v{e}, v{d}, 3, v{e}
    v_lshl_add_u32 v{V_F2T}, v{a}, 5, v{e}
    v_xor_b32 v{V_F2T+1}, 32, v{V_F2T}
    v_add_u32 v{V_F2T+2}, 0x10000, v{V_F2T}
    v_add_u32 v{V_F2T+3}, 0x10000, v{V_F2T+1}
    """)

def gpf3_setup(em):
    a, b = VT, VT + 1
    P = S_TA
    em.e(f"""
    s_cmp_eq_u32 s{S_WV}, 0
    s_cselect_b32 s{P}, s{S_G}, s{S_U}
    s_cselect_b32 s{P+1}, s{S_G+1}, s{S_U+1}
    s_mov_b32 s{P+2}, {640*3456}
    s_mov_b32 s61, {64*3456}
    s_mul_i32 s60, s2, 864
    s_cmp_eq_u32 s{S_WV}, 2
    s_cselect_b32 s{P}, s{S_QKV}, s{P}
    s_cselect_b32 s{P+1}, s{S_QKV+1}, s{P+1}
    s_cselect_b32 s{P+2}, {640*3840}, s{P+2}
    s_cselect_b32 s61, {64*3840}, s61
    s_mul_i32 s{S_T0}, s2, 960
    s_cselect_b32 s60, s{S_T0}, s60
    s_cmp_eq_u32 s{S_WV}, 3
    s_cselect_b32 s{P}, s{S_X}, s{P}
    s_cselect_b32 s{P+1}, s{S_X+1}, s{P+1}
    s_cselect_b32 s{P+2}, {2048*1280}, s{P+2}
    s_cselect_b32 s61, 128, s61
    s_mul_i32 s{S_T0}, s2, {8*1280}
    s_cselect_b32 s60, s{S_T0}, s60
    s_mov_b32 s{P+3}, 0x00020000
    s_movk_i32 s{S_T0}, 128
    s_cselect_b32 s{S_T0}, 1280, s{S_T0}
    v_mul_lo_u32 v{a}, v1, s{S_T0}
    v_mov_b32 v{b}, 0x80000000
    v_cmp_gt_u32 vcc, 8, v1
    s_nop 1
    v_cndmask_b32 v251, v{b}, v{a}, vcc
    """)
def gpf3_step(em, n=1):
    for _ in range(n):
        em.vm(f"buffer_load_dword v250, v251, s[{S_TA}:{S_TA+3}], s60 offen")
        em.e("s_add_u32 s60, s60, s61")

def engine3(em, rounds, dests, tiles, pro=None, gp=False, bgf=None):
    D = OPT.get('D3', 3)
    NST = 20; PW = NWS - 2; PX = NXS3 - 1
    incs = [32 * 3840 if rd[0] == "QKV" else 32 * 3456 for rd in rounds]
    w_last = {}; x_last = {}
    def issue_w(s):
        if s >= NST: return []
        if OPT.get("nodma") and s > 2:
            w_last[s] = 0; return []
        cl = []
        for r, rd in enumerate(rounds):
            def c(r=r, rd=rd):
                if rd[0] == "MIX":
                    em.e(f"s_add_u32 s{S_TMP}, s{S_RM}, {(s % NWS) * WPART}")
                    em.e(f"s_cmp_lt_u32 s{S_W8}, {6 if rd[1] else 4}")
                    em.e(f"s_cselect_b32 m0, s{S_TMP}, s{S_DUM}")
                    w_last[s] = em.vm(f"buffer_load_dwordx4 v{V_RD+r}, s[{R_SRD[r]}:{R_SRD[r]+3}], s{R_OFF[r]} offen lds")
                    em.e(f"s_add_u32 s{R_OFF[r]}, s{R_OFF[r]}, s{S_RI}")
                    return
                base = (s % NWS) * WPART + dests[r]
                em.e(f"s_add_u32 m0, s{S_MW}, {base}")
                em.e(f"s_add_u32 s{S_TMP}, s{R_OFF[r]}, {s*incs[r]}")
                w_last[s] = em.vm(f"buffer_load_dwordx4 v{V_RD+r}, s[{R_SRD[r]}:{R_SRD[r]+3}], s{S_TMP} offen lds")
            cl.append(c)
        return cl
    def issue_x(i):
        if i >= 10: return []
        if OPT.get("nodma") and i > 1:
            x_last[i] = 0; return []
        cl = []
        for n in range(2):
            def c(n=n):
                em.e(f"s_add_u32 m0, s{S_MX}, {(i % NXS3)*XSL3 + n*1024}")
                em.e(f"s_movk_i32 s{S_TMP}, {i*128}")
                x_last[i] = em.vm(f"buffer_load_dwordx4 v{V_XD+n}, s[{S_X}:{S_X+3}], s{S_TMP} offen lds")
            cl.append(c)
        return cl
    em.e(f"s_and_b32 s{S_DUM}, s{S_MW}, 1024\ns_add_u32 s{S_DUM}, s{S_DUM}, {DUMMY}")
    for c in issue_x(0) + issue_w(0) + issue_w(1) + issue_x(1) + issue_w(2): c()
    if pro: pro(em)
    LA = OPT.get("LA3", 0)
    gp = gp and LA > 0
    if gp:
        gpf3_setup(em)
        em.e("s_add_u32 s60, s60, s61")
        gpf3_step(em, LA - 1)
    if gp and OPT.get("prio1"): em.e(f"s_setprio {OPT['prio1']}")
    T = len(tiles)
    mf = [(s, sp, t) for s in range(NST) for sp in range(2) for t in range(T)]
    N = len(mf)
    NB = len(WFR)
    rd_ = {}; xrd = {}
    pend = []
    bg = BG()
    if bgf: bg.add(bgf(em))
    def need_of(k):
        s, sp, t = mf[k]
        return max(rd_[k], xrd[2 * s + sp])
    for idx in range(-D, N):
        if idx >= 0:
            s, sp, t = mf[idx]
            em.wait(lds=need_of(idx))
            b = WFR[idx % NB]
            a = tiles[t][0]
            k16 = 2 * s + sp
            xr = V_XF + 4 * (k16 % 4)
            c = "0" if k16 == 0 else f"v[{a}:{a+15}]"
            em.e(f"v_mfma_f32_32x32x16_bf16 v[{a}:{a+15}], v[{b}:{b+3}], v[{xr}:{xr+3}], {c}")
        j = idx + D
        if j < N:
            s, sp, t = mf[j]
            if sp == 0 and t == 0:
                while pend: pend.pop(0)()
                need = w_last[s]
                if s % 2 == 0: need = max(need, x_last[s // 2])
                em.wait(vm=need)
                if not (OPT.get("nobar") and s > 0): em.e("s_barrier")
                if s in (0, 1, 5, 10, 15): stamp3(em, {0: 1, 1: 8, 5: 2, 10: 3, 15: 4}[s])
                pend += issue_w(s + PW)
                if gp and s % 2 == 0 and s // 2 + LA < 10: gpf3_step(em)
                if s % 2 == 1: pend += issue_x((s - 1) // 2 + PX)
                for q in range(2):
                    k16 = 2 * s + q
                    xr = V_XF + 4 * (k16 % 4)
                    xrd[k16] = em.lds(f"ds_read_b128 v[{xr}:{xr+3}], v{V_XR + (k16 % 4)} offset:{((s // 2) % NXS3)*XSL3}")
            b = WFR[j % NB]
            for hf in range(2):
                vr, off = tiles[t][1]((s % NWS) * WPART, sp, hf)
                rd_[j] = em.lds(f"ds_read_b64_tr_b16 v[{b+2*hf}:{b+2*hf+1}], v{vr} offset:{off}")
        if pend: pend.pop(0)()
        elif idx >= 0: bg.step(em, 3)
    bg.drain(em)
    if gp and OPT.get("prio1"): em.e("s_setprio 0")

def f_tile(acc, part_off, t, f2=False):
    def fn(sb, sp, hf):
        off = sb + part_off + (sp * 1024 + hf * 256 if f2 else sp * 2048 + hf * 512)
        base = V_F2T if f2 else V_FT
        hi = 2 if f2 else 4
        if off >= 65536: return (base + hi + t, off - 65536)
        return (base + t, off)
    return (acc, fn)

def q_tile(acc, t):
    def fn(sb, sp, hf):
        off = sb + (16 * sp + 4 * hf) * 320 + t * 64
        if off >= 65536: return (V_TR + 1, off - 65536)
        return (V_TR, off)
    return (acc, fn)


class Rec:
    def __init__(self): self.ops = []; self.n = 0
    def e(self, text):
        for t in text.split("\n"):
            t = t.strip()
            if t: self.ops.append(("e", t, None))
    def vm(self, text):
        self.n += 1; self.ops.append(("vm", text, self.n)); return ("rec", self.n)
    def lds(self, text):
        self.n += 1; self.ops.append(("lds", text, self.n)); return ("rec", self.n)

def replay(em, rec, st):
    m = {}
    hold = False
    for kind, t, n in rec.ops:
        if kind == "e": em.e(t)
        elif kind == "vm": m[n] = em.vm(t)
        else: m[n] = em.lds(t)
        op = t.split()[0]
        if op.startswith("s_cmp"): hold = True
        elif hold and not (op.startswith("s_cselect") or op.startswith("s_mov") or op.startswith("s_mul") or op.startswith("s_movk")): hold = False
        if not hold: yield (3 if kind != "e" else 1)
    for k, v in list(st.items()):
        if isinstance(v, tuple) and v and v[0] == "rec": st[k] = m[v[1]]

def run(gen, em):
    for c in gen:
        if c == "BAR": em.e("s_barrier")


_k2pf_n = [0]
def k2_code_touch(em):
    if not OPT.get("k2pf"): return
    _k2pf_n[0] += 1
    n = _k2pf_n[0]
    em.e(f"s_getpc_b64 s[28:29]")
    em.label(f"L_k2pf_{n}")
    em.e(f"""
    s_add_u32 s28, s28, k2_kernel - L_k2pf_{n}
    s_addc_u32 s29, s29, 0
    s_lshl_b32 s30, s{S_WV}, 12
    v_lshlrev_b32 v{VT}, 6, v1
    v_add_u32 v{VT}, s30, v{VT}
    v_min_u32 v{VT}, L_text_end - k2_kernel - 4, v{VT}
    """)
    em.vm(f"global_load_dword v250, v{VT}, s[28:29]")

def f_tail(em, specs, bar_after=None):
    for n, (acc, sb, off) in enumerate(specs):
        run(f_epilogue_tile(em, acc, off, 160 + 16 * (n & 1), sb), em)
        if bar_after == n: em.e("s_barrier")

WBD3 = 0; PB3 = 20480; VB3 = PB3 + 4 * 32 * PITCH; KS3 = VB3 + 4 * 32 * 200; FSC3 = KS3 + 4 * 3360 + 64

def gen_special(em, kind):
    rounds = [("QKV", kind, 0), ("F", S_FG), ("MIX", kind, 18432, 8192)]
    dests = [0, 10240, 0]
    setup3(em, rounds)
    lab = "Q" if kind == "Q" else "KV"
    em.e(f"s_cmp_ge_u32 s{S_W8}, 4\ns_cbranch_scc1 L3_{lab}_h1")
    save = (em.vm_n, em.vm_done, em.lds_n, em.lds_done)
    st = {}
    nblk = 18 if kind == "Q" else 9
    def pro0(em):
        setup3_reads(em)
        setup_QKV_reads(em, kind)
    def bg0(em):
        r = Rec()
        r.e(f"s_lshl_b32 s{S_H0}, s{S_C}, {3 if kind == 'Q' else 2}")
        st["wl"], st["n_it"] = wbd_loads(r, nblk, 200, V_CH)
        yield from replay(em, r, st)
    engine3(em, rounds, dests, [q_tile(ACC0 + 16 * t, t) for t in range(5)], pro0, bgf=bg0)
    stamp3(em, 9)
    em.wait_lgkm0()
    em.e("s_barrier")
    run(wbd_writes(em, st["n_it"], st["wl"], WBD3, V_CH, V_SM), em)
    if kind == "Q":
        run(conv_qf(em, 10), em)
        em.e("s_barrier")
        run(chain(em, 5, 10, 4), em)
        em.e(f"""
        s_lshl_b32 s{S_T0}, s{S_M}, 1
        s_lshr_b32 s{S_T0+1}, s{S_WV}, 1
        s_add_u32 s{S_T0}, s{S_T0}, s{S_T0+1}
        s_mul_i32 s{S_OB}, s{S_T0}, {64*1280}
        s_and_b32 s{S_T0+1}, s{S_WV}, 1
        s_mul_i32 s{S_T0+1}, s{S_T0+1}, 1280
        s_add_u32 s{S_OB}, s{S_OB}, s{S_T0+1}
        s_mul_i32 s{S_T0}, s{S_C}, {8*2560}
        s_add_u32 s{S_OB}, s{S_OB}, s{S_T0}
        s_add_u32 s{S_OB}, s{S_OB}, {PQF_OFF}
        s_mul_i32 s{S_T0}, s{S_WV}, {32*PITCH}
        s_add_u32 s{S_T0}, s{S_T0}, {PB3}
        """)
        a_, b_, c_ = VT, VT + 1, VT + 2
        for j in range(3):
            em.e(f"""
            v_add_u32 v{a_}, {64*j}, v1
            v_min_u32 v{b_}, 159, v{a_}
            v_mul_u32_u24 v{c_}, 13108, v{b_}
            v_lshrrev_b32 v{c_}, 16, v{c_}
            v_mul_u32_u24 v{V_SM+50+j}, 5, v{c_}
            v_sub_u32 v{b_}, v{b_}, v{V_SM+50+j}
            v_mul_u32_u24 v{c_}, {PITCH}, v{c_}
            v_lshl_add_u32 v{c_}, v{b_}, 3, v{c_}
            v_add_u32 v{V_SM+50+j}, s{S_T0}, v{c_}
            v_lshlrev_b32 v{V_SM+53+j}, 3, v{a_}
            """)
        em.e(f"""
        v_mov_b32 v{b_}, 0x80000000
        v_cmp_gt_u32 vcc, 160, v{a_}
        s_nop 1
        v_cndmask_b32 v{V_SM+55}, v{b_}, v{V_SM+55}, vcc
        """)
        em.wait(lds=em.last_p)
        ids = {}
        for h in range(8):
            for j in range(3):
                r = V_SM + 2 * (3 * h + j)
                ids[(h, j)] = em.lds(f"ds_read_b64 v[{r}:{r+1}], v{V_SM+50+j} offset:{h*40}")
        for h in range(8):
            em.e(f"s_add_u32 s{S_TMP2}, s{S_OB}, {h*2560}")
            for j in range(3):
                r = V_SM + 2 * (3 * h + j)
                em.wait(lds=ids[(h, j)])
                em.vm(f"buffer_store_dwordx2 v[{r}:{r+1}], v{V_SM+53+j}, s[{S_WS}:{S_WS+3}], s{S_TMP2} offen")
    else:
        run(kv_epi(em), em)
    stamp3(em, 10)
    em.e("s_endpgm")
    em.label(f"L3_{lab}_h1")
    em.vm_n, em.vm_done, em.lds_n, em.lds_done = save
    GR = 192
    def pro1(em):
        setup3_reads(em)
        setup3_F(em)
    def bg1(em):
        r = Rec()
        if kind == "KV": kv_zero(r, st)
        st["g"] = gate_issue3(r, GR)
        yield from replay(em, r, st)
        yield from gate_bg(em, st["g"], GR, delay=40)
        if kind == "KV":
            kv_signal(em, st); yield 8
    tiles = [f_tile(64 + 16 * t, 10240, t) for t in range(4)] + [f_tile(128 + 16 * t, 18432, t, f2=True) for t in range(2)]
    engine3(em, rounds, dests, tiles, pro1, gp=True, bgf=bg1)
    stamp3(em, 9)
    em.wait_lgkm0()
    em.e("s_barrier")
    k2_code_touch(em)
    st["f"] = frag_issue(em, FSC3, VT + 2)
    em.e("s_barrier")
    f_tail(em, [(64 + 16 * t, S_HB, t * 512) for t in range(4)] + [(128 + 16 * t, S_HB2, t * 512) for t in range(2)],
           bar_after=(OPT.get("b3", 3) if kind == "KV" else None))
    frag_finish(em, st["f"], FSC3, 160)
    stamp3(em, 10)
    em.e("s_endpgm")


def gate_issue3(em, R):
    import k1v2
    old = k1v2.S_TA
    k1v2.S_TA = 84
    try:
        return k1v2.gate_issue(em, R)
    finally:
        k1v2.S_TA = old

def setup_QKV_reads(em, kind):
    a, b, c, d, e = VT, VT + 1, VT + 2, VT + 3, VT + 4
    p_base, v_base, wbd_base = PB3, VB3, WBD3
    em.e(f"""
    v_and_b32 v{a}, 31, v1
    v_lshrrev_b32 v{b}, 5, v1
    s_mul_i32 s{S_T0}, s{S_WV}, {32*PITCH}
    s_add_u32 s{S_T0}, s{S_T0}, {p_base}
    v_mul_u32_u24 v{d}, {PITCH}, v{a}
    v_add_u32 v{d}, s{S_T0}, v{d}
    v_lshl_add_u32 v{V_PW}, v{b}, 3, v{d}
    """)
    if kind == "KV":
        em.e(f"""
        s_mul_i32 s{S_T0+1}, s{S_WV}, {32*200}
        s_add_u32 s{S_T0+1}, s{S_T0+1}, {v_base}
        v_mul_u32_u24 v{d}, 200, v{a}
        v_add_u32 v{d}, s{S_T0+1}, v{d}
        v_lshl_add_u32 v{V_VWA}, v{b}, 3, v{d}
        v_lshl_add_u32 v{V_VWB}, v{b}, 4, v{d}
        """)
    em.e(f"""
    v_and_b32 v{a}, 15, v1
    v_lshrrev_b32 v{b}, 4, v1
    v_mul_u32_u24 v{c}, {PITCH}, v{a}
    v_add_u32 v{c}, s{S_T0}, v{c}
    v_mul_u32_u24 v{d}, 40, v{b}
    v_add_u32 v{V_PR}, v{c}, v{d}
    """)
    if kind == "Q":
        em.e(f"v_mul_u32_u24 v{d}, 1280, v{b}\nv_lshl_add_u32 v{V_OUT}, v{a}, 4, v{d}")
    else:
        em.e(f"v_mul_u32_u24 v{d}, 80, v{b}\nv_add_u32 v{V_OUT}, v{c}, v{d}")
    em.e(f"""
    v_bfe_u32 v{a}, v1, 4, 1
    v_lshrrev_b32 v{b}, 5, v1
    v_bfe_u32 v{c}, v1, 2, 2
    v_and_b32 v{d}, 3, v1
    v_lshlrev_b32 v{a}, 5, v{a}
    v_lshl_add_u32 v{a}, v{d}, 3, v{a}
    v_lshl_add_u32 v{e}, v{b}, 3, v{c}
    v_mul_u32_u24 v{e}, 320, v{e}
    v_add_u32 v{V_TR}, v{e}, v{a}
    v_add_u32 v{V_TR+1}, 0x10000, v{V_TR}
    v_lshl_add_u32 v{e}, v{b}, 2, v{c}
    v_lshl_add_u32 v{e}, v{e}, 6, v{a}
    v_add_u32 v{V_WBD}, {wbd_base}, v{e}
    """)
    if kind == "KV":
        em.e(f"""
        v_lshrrev_b32 v{a}, 4, v1
        v_lshl_add_u32 v{a}, v{a}, 3, v{c}
        v_mul_u32_u24 v{b}, {PITCH}, v{a}
        v_lshl_add_u32 v{b}, v{d}, 3, v{b}
        s_mul_i32 s{S_T0}, s{S_WV}, 80
        s_add_u32 s{S_T0}, s{S_T0}, {p_base}
        v_add_u32 v{V_PHT}, s{S_T0}, v{b}
        v_mul_u32_u24 v{b}, 200, v{a}
        v_lshl_add_u32 v{b}, v{d}, 3, v{b}
        s_mul_i32 s{S_T0+1}, s{S_WV}, 48
        s_add_u32 s{S_T0+1}, s{S_T0+1}, {v_base}
        v_add_u32 v{V_VT}, s{S_T0+1}, v{b}
        """)
    em.e(f"s_mov_b32 s{S_L2E}, {f32bits(LOG2E)}")

def kv_zero(em, st):
    em.e(f"""
    s_mul_i32 s{S_T0}, s{S_C}, 15360
    s_mul_i32 s{S_T0+1}, s{S_M}, 960
    s_add_u32 s{S_T0}, s{S_T0}, s{S_T0+1}
    s_add_u32 s{S_T0}, s{S_T0}, {KVP_OFF}
    v_lshlrev_b32 v{VT}, 4, v0
    v_mov_b32 v{VT+1}, 0x80000000
    v_cmp_gt_u32 vcc, 60, v0
    v_mov_b32 v228, 0
    v_mov_b32 v229, 0
    v_mov_b32 v230, 0
    v_mov_b32 v231, 0
    v_cndmask_b32 v{VT}, v{VT+1}, v{VT}, vcc
    """)
    st["z"] = em.vm(f"buffer_store_dwordx4 v[228:231], v{VT}, s[{S_WS}:{S_WS+3}], s{S_T0} offen sc1")
    em.e("s_nop 1")

def kv_signal(em, st):
    em.wait(vm=st["z"])
    em.e(f"""
    s_lshl_b32 s{S_TMP2}, s{S_C}, 2
    v_mov_b32 v228, 0x80000000
    v_mov_b32 v229, 1
    v_mov_b32 v230, 0
    v_cmp_eq_u32 vcc, 0, v0
    s_nop 1
    v_cndmask_b32 v228, v228, v230, vcc
    """)
    em.vm(f"buffer_atomic_add v229, v228, s[{S_DBG}:{S_DBG+3}], s{S_TMP2} offen sc1")

def kv_epi(em):
    KW, KR, KL, KL2 = V_RD, V_RD + 1, V_RD + 2, V_RD + 3
    em.e(f"""
    v_lshrrev_b32 v{V_SM}, 5, v1
    v_mul_u32_u24 v{V_SM}, 88, v{V_SM}
    v_add_u32 v{V_SM}, v{V_SM}, v{V_VWA}
    v_mov_b32 v{V_SM+2}, 0x3f803f80
    v_mov_b32 v{V_SM+3}, 0x3f803f80
    """)
    em.lds(f"ds_write_b64 v{V_SM}, v[{V_SM+2}:{V_SM+3}] offset:40")
    em.lds(f"ds_write_b64 v{V_SM}, v[{V_SM+2}:{V_SM+3}] offset:88")
    for (t, a) in [(2, 2), (2, 3)] + [(t, a) for t in (3, 4) for a in range(4)]:
        c0 = 32 * t + 8 * a - 80
        p0 = c0 + 4 * (c0 // 20); p1 = (c0 + 4) + 4 * ((c0 + 4) // 20)
        va = V_VWA if p1 - p0 == 4 else V_VWB
        r = ACC0 + 16 * t + 4 * a
        em.e(f"v_cvt_pk_bf16_f32 v{r}, v{r}, v{r+1}")
        em.e(f"v_cvt_pk_bf16_f32 v{r+1}, v{r+2}, v{r+3}")
        em.lds(f"ds_write_b64 v{va}, v[{r}:{r+1}] offset:{p0*2}")
    yield from conv_qf(em, 5)
    yield "BAR"
    stamp3(em, 5)
    yield from chain(em, 3, 5, 2)
    stamp3(em, 6)
    def out_fn(em, ri, O):
        for c in range(5):
            em.last_p = em.lds(f"ds_write_b128 v{V_OUT}, v[{O+4*c}:{O+4*c+3}] offset:{ri*16*PITCH + 16*c}"); yield 3
    yield from softmax_rounds(em, [ri * 16 * PITCH for ri in range(2)], out_fn)
    em.wait(lds=em.last_p)
    stamp3(em, 7)
    x0, x1, x2 = V_CH, V_CH + 1, V_CH + 2
    em.e(f"""
    s_add_u32 s{S_TMP2}, s{S_H0}, s{S_WV}
    s_mul_i32 s{S_OB}, s{S_TMP2}, 3840
    s_add_u32 s{S_OB}, s{S_OB}, {KVP_OFF}
    s_mul_i32 s{S_TMP2}, s{S_WV}, 3360
    s_add_u32 s{S_TMP2}, s{S_TMP2}, {KS3}
    v_and_b32 v{x0}, 15, v1
    v_lshrrev_b32 v{x1}, 4, v1
    v_mul_u32_u24 v{x2}, 160, v{x0}
    v_lshl_add_u32 v{x2}, v{x1}, 4, v{x2}
    v_add_u32 v{KW}, s{S_TMP2}, v{x2}
    v_lshlrev_b32 v{KL}, 2, v1
    v_add_u32 v{KR}, s{S_TMP2}, v{KL}
    v_mov_b32 v{x2}, 0x80000000
    v_cmp_gt_u32 s[60:61], 8, v1
    v_cmp_gt_u32 s[62:63], 2, v{x1}
    v_cmp_gt_u32 s[90:91], 5, v{x0}
    v_cndmask_b32 v{KL2}, v{x2}, v{KL}, s[60:61]
    s_and_b64 s[88:89], s[62:63], s[90:91]
    s_lshl_b32 s{S_TMP2}, s{S_C}, 2
    v_mov_b32 v{V_CH}, 0
    """)
    pv = em.vm(f"buffer_load_dword v{V_CH+1}, v{V_CH}, s[{S_DBG}:{S_DBG+3}], s{S_TMP2} offen sc1")
    em.wait(lds=em.last_p)
    yield "BAR"
    stamp3(em, 11)
    KA = ACC0
    def issue(ks):
        b = V_SM + 20 * (ks % 2)
        for a in range(3):
            for hf in range(2):
                em.lds(f"ds_read_b64_tr_b16 v[{b+4*a+2*hf}:{b+4*a+2*hf+1}], v{V_PHT} offset:{(32*ks+4*hf)*PITCH + 32*a}")
        for bb in range(2):
            for hf in range(2):
                last = em.lds(f"ds_read_b64_tr_b16 v[{b+12+4*bb+2*hf}:{b+12+4*bb+2*hf+1}], v{V_VT} offset:{(32*ks+4*hf)*200 + 32*bb}")
        return last
    l0 = issue(0)
    for ks in range(4):
        if ks < 3: l1 = issue(ks + 1)
        em.wait(lds=l0)
        b = V_SM + 20 * (ks % 2)
        for a in range(3):
            for bb in range(2):
                r = KA + 8 * a + 4 * bb
                c = "0" if ks == 0 else f"v[{r}:{r+3}]"
                em.e(f"v_mfma_f32_16x16x32_bf16 v[{r}:{r+3}], v[{b+4*a}:{b+4*a+3}], v[{b+12+4*bb}:{b+12+4*bb+3}], {c}")
        l0 = l1
    for a in range(3):
        for bb in range(2):
            r = KA + 8 * a + 4 * bb
            msk = [[None, "s[90:91]"], [None, "s[90:91]"], ["s[62:63]", "s[88:89]"]][a][bb]
            if msk: em.e(f"s_mov_b64 exec, {msk}")
            lw = em.lds(f"ds_write_b128 v{KW}, v[{r}:{r+3}] offset:{bb*16*160 + a*64}")
            if msk: em.e("s_mov_b64 exec, -1")
    em.wait(lds=lw)
    stamp3(em, 12)
    rr = [em.lds(f"ds_read_b32 v{V_SM+i}, v{KR} offset:{i*256}") for i in range(14)]
    em.wait(vm=pv)
    em.e(f"""
    v_readfirstlane_b32 s{S_DUM}, v{V_CH+1}
    s_cmp_ge_u32 s{S_DUM}, 16
    s_cbranch_scc1 L3_kv_go
    """)
    em.label("L3_kv_poll")
    em.e(f"""
    s_sleep 8
    buffer_load_dword v{V_CH+1}, v{V_CH}, s[{S_DBG}:{S_DBG+3}], s{S_TMP2} offen sc1
    s_waitcnt vmcnt(0)
    v_readfirstlane_b32 s{S_DUM}, v{V_CH+1}
    s_cmp_lt_u32 s{S_DUM}, 16
    s_cbranch_scc1 L3_kv_poll
    """)
    em.label("L3_kv_go")
    for i in range(14):
        em.wait(lds=rr[i])
        em.vm(f"buffer_atomic_add_f32 v{V_SM+i}, v{KL if i < 13 else KL2}, s[{S_WS}:{S_WS+3}], s{S_OB} offen offset:{i*256}")
    yield 1

def gen_pureF(em, with_f2):
    S_FGB = 99
    rounds = [("F", S_FG), ("F", S_FGB)] + ([("MIX", None, 16384, 0)] if with_f2 else [])
    dests = [0, 8192, 0]
    setup3(em, rounds)
    lab = "C" if with_f2 else "D"
    st = {}; GR = 192
    em.e(f"s_cmp_ge_u32 s{S_W8}, 4\ns_cbranch_scc1 L3_{lab}_h1")
    save = (em.vm_n, em.vm_done, em.lds_n, em.lds_done)
    def pro0(em):
        setup3_reads(em); setup3_F(em)
    def bg0(em):
        r = Rec()
        st["g"] = gate_issue3(r, GR)
        yield from replay(em, r, st)
        yield from gate_bg(em, st["g"], GR, delay=30)
    engine3(em, rounds, dests, [f_tile(64 + 16 * t, 0, t) for t in range(4)], pro0, bgf=bg0)
    stamp3(em, 9)
    em.wait_lgkm0()
    em.e("s_barrier")
    st["f"] = frag_issue(em, FSC3, VT + 2)
    f_tail(em, [(64 + 16 * t, S_HB, t * 512) for t in range(4)])
    frag_finish(em, st["f"], FSC3, 160)
    stamp3(em, 10)
    em.e("s_endpgm")
    em.label(f"L3_{lab}_h1")
    em.vm_n, em.vm_done, em.lds_n, em.lds_done = save
    def pro1(em):
        setup3_reads(em); setup3_F(em)
    tiles = [f_tile(64 + 16 * t, 8192, t) for t in range(4)] + ([f_tile(128 + 16 * t, 16384, t, f2=True) for t in range(2)] if with_f2 else [])
    engine3(em, rounds, dests, tiles, pro1, gp=True)
    stamp3(em, 9)
    em.wait_lgkm0()
    em.e("s_barrier")
    f_tail(em, [(64 + 16 * t, S_HB, 2048 + t * 512) for t in range(4)] + ([(128 + 16 * t, S_HB2, t * 512) for t in range(2)] if with_f2 else []))
    stamp3(em, 10)
    em.e("s_endpgm")

def gen_k1():
    em = Em()
    em.raw(".text\n.globl k1_kernel\n.p2align 8\n.type k1_kernel,@function\nk1_kernel:")
    em.e("s_cmp_ge_u32 s2, 256\ns_cbranch_scc1 L_k1_done")
    T0 = S_T0
    em.e(f"""
    s_load_dwordx4 s[40:43], s[0:1], 0
    s_load_dwordx4 s[44:47], s[0:1], 16
    s_load_dwordx4 s[48:51], s[0:1], 40
    s_load_dwordx4 s[52:55], s[0:1], 56
    s_load_dwordx4 s[56:59], s[0:1], 80
    v_lshrrev_b32 v1, 6, v0
    v_and_b32 v0, 255, v0
    v_readfirstlane_b32 s{S_W8}, v1
    s_and_b32 s{T0}, s2, 1
    s_bfe_u32 s{T0+1}, s2, 0x20001
    s_lshr_b32 s{T0+2}, s2, 3
    s_lshl_b32 s{S_M}, s{T0}, 3
    s_and_b32 s{S_WV}, s{S_W8}, 3
    s_and_b32 s{T0+3}, s{T0+2}, 7
    s_add_u32 s{S_M}, s{S_M}, s{T0+3}
    s_lshr_b32 s{T0+2}, s{T0+2}, 3
    """)
    if OPT.get("codepf"):
        em.e(f"""
        s_getpc_b64 s[28:29]
        s_lshr_b32 s30, s2, 3
        s_mul_i32 s30, s30, ((L_text_end - k1_kernel) / 4096) * 128
        s_and_b32 s28, s28, 0xffffff00
        s_add_u32 s28, s28, s30
        s_addc_u32 s29, s29, 0
        v_and_b32 v2, 63, v0
        v_min_u32 v2, ((L_text_end - k1_kernel) / 4096) - 1, v2
        v_lshlrev_b32 v2, 7, v2
        s_cmp_lg_u32 s{S_W8}, 7
        s_cbranch_scc1 L_k1_nocp
        global_load_dword v250, v2, s[28:29]
        """)
        em.label("L_k1_nocp")
    em.wait_lgkm0()
    srd(em, S_X, 40, 2048 * 1280)
    srd(em, S_WS, 58, WS_BYTES)
    srd(em, S_DBG, 56, 256)
    srd(em, S_G, 48, 640 * 3456)
    srd(em, S_U, 50, 640 * 3456)
    srd(em, S_QKV, 42, 640 * 3840)
    srd(em, S_PHI, 44, 32 * 800)
    stamp3(em, 0)
    em.e(f"""
    s_cmp_eq_u32 s{T0+2}, 3
    s_cbranch_scc1 L_k1_F
    s_lshl_b32 s{T0+4}, s{T0+1}, 1
    s_add_u32 s{T0+4}, s{T0+4}, s{T0+2}
    s_sub_u32 s{S_C}, s{T0+4}, 1
    s_add_u32 s{T0+4}, s{T0+4}, 3
    s_cmp_eq_u32 s{T0+2}, 0
    s_cselect_b32 s{S_C}, s{T0+1}, s{S_C}
    s_cselect_b32 s{S_FG}, s{T0+1}, s{T0+4}
    s_lshr_b32 s{S_FG2}, s{S_FG}, 1
    s_add_u32 s{S_FG2}, s{S_FG2}, 20
    s_and_b32 s{S_TOFF}, s{S_FG}, 1
    s_lshl_b32 s{S_TOFF}, s{S_TOFF}, 1
    s_cmp_lg_u32 s{T0+2}, 0
    s_cbranch_scc1 L_k1_KV
    """)
    save = (em.vm_n, em.vm_done, em.lds_n, em.lds_done)
    def restore(): em.vm_n, em.vm_done, em.lds_n, em.lds_done = save
    gen_special(em, "Q")
    em.label("L_k1_KV"); restore()
    gen_special(em, "KV")
    em.label("L_k1_F"); restore()
    em.e(f"""
    s_lshl_b32 s{S_FG}, s{T0+1}, 1
    s_add_u32 s{S_FG}, s{S_FG}, 12
    s_add_u32 s99, s{S_FG}, 1
    s_mov_b32 s{S_FG2}, 26
    s_and_b32 s{S_TOFF}, s{T0+1}, 1
    s_lshl_b32 s{S_TOFF}, s{S_TOFF}, 1
    s_cmp_ge_u32 s{T0+1}, 2
    s_cbranch_scc1 L_k1_F2
    """)
    gen_pureF(em, True)
    em.label("L_k1_F2"); restore()
    gen_pureF(em, False)
    em.label("L_k1_done")
    em.e("s_endpgm")
    return em.finish(), em
```

```python
from asmlib import *
import k1v2 as K
from k1v2 import *

S_W8 = 98
S_RS = 100
R_SRD = [40, 44 - 44 + 56, 60 - 60 + 80, 84]
R_OFF = [88, 89, 90, 91]
R_INC = [60, 61, 62, 63]
V_RD = 8
V_XF = 176

WPART = 22528
NWS = 5
XB3 = NWS * WPART
XSL3 = 16384; NXS3 = 3
DUMMY = XB3 + NXS3 * XSL3
S_RM = 62
S_RI = 63

def stamp3(em, k):
    if not OPT["stamps"]: return
    em.e(f"s_memrealtime s[30:31]" if (OPT.get("rt") and k in (0, 10)) else f"s_memtime s[30:31]")
    em.e("s_waitcnt lgkmcnt(0)"); em.lds_done = em.lds_n
    em.e(f"""
    s_lshl_b32 s28, s2, 9
    s_lshl_b32 s29, s{S_W8}, 6
    s_add_u32 s28, s28, s29
    s_add_u32 s28, s28, {STAMP_OFF + 4*k}
    v_mov_b32 v248, s30
    v_mov_b32 v249, 0
    """)
    em.vm(f"buffer_store_dword v248, v249, s[{S_WS}:{S_WS+3}], s28 offen")

def setup3(em, rounds):
    a, b, c, d, e = VT, VT + 1, VT + 2, VT + 3, VT + 4
    em.e(f"""
    v_and_b32 v1, 63, v0
    v_lshrrev_b32 v{a}, 3, v1
    v_and_b32 v{b}, 7, v1
    v_lshrrev_b32 v{c}, 4, v1
    v_xor_b32 v{c}, v{b}, v{c}
    v_lshlrev_b32 v{c}, 4, v{c}
    s_lshl_b32 s{S_T0}, s{S_M}, 7
    s_lshl_b32 s{S_T0+1}, s{S_W8}, 4
    s_add_u32 s{S_T0}, s{S_T0}, s{S_T0+1}
    v_add_u32 v{d}, s{S_T0}, v{a}
    v_mul_u32_u24 v{d}, 1280, v{d}
    v_add_u32 v{V_XD}, v{d}, v{c}
    v_xor_b32 v{c}, 64, v{c}
    v_add_u32 v{V_XD+1}, v{d}, v{c}
    v_add_u32 v{V_XD+1}, {8*1280}, v{V_XD+1}
    s_lshl_b32 s{S_MX}, s{S_W8}, 11
    s_add_u32 s{S_MX}, s{S_MX}, {XB3}
    s_lshl_b32 s{S_MW}, s{S_W8}, 10
    """)
    for r, rd in enumerate(rounds):
        sr = R_SRD[r]
        if rd[0] == "QKV":
            kind, second = rd[1], rd[2]
            em.e(f"""
            s_lshl_b32 s{S_T0}, s{S_W8}, 6
            s_add_u32 s{S_T0}, s{S_T0}, {512 if second else 0}
            v_add_u32 v{a}, s{S_T0}, v1
            v_mul_u32_u24 v{b}, 3277, v{a}
            v_lshrrev_b32 v{b}, 16, v{b}
            v_mul_u32_u24 v{c}, 20, v{b}
            v_sub_u32 v{c}, v{a}, v{c}
            v_mul_u32_u24 v{b}, 3840, v{b}
            v_lshl_add_u32 v{V_RD+r}, v{c}, 4, v{b}
            """)
            if kind == "KV":
                em.e(f"""
                v_cmp_le_u32 vcc, 10, v{c}
                v_add_u32 v{b}, 1120, v{V_RD+r}
                s_nop 0
                v_cndmask_b32 v{V_RD+r}, v{V_RD+r}, v{b}, vcc
                s_mul_i32 s{R_OFF[r]}, s{S_C}, 160
                s_add_u32 s{R_OFF[r]}, s{R_OFF[r]}, 1280
                """)
            else:
                em.e(f"s_mul_i32 s{R_OFF[r]}, s{S_C}, 320")
            if second:
                em.e(f"""
                v_cmp_gt_u32 vcc, 640, v{a}
                v_mov_b32 v{b}, 0x80000000
                s_nop 0
                v_cndmask_b32 v{V_RD+r}, v{b}, v{V_RD+r}, vcc
                """)
            em.e(f"""
            s_mov_b32 s{sr}, s{S_QKV}
            s_mov_b32 s{sr+1}, s{S_QKV+1}
            s_mov_b32 s{sr+2}, {640*3840}
            s_mov_b32 s{sr+3}, 0x00020000
            """)
        elif rd[0] == "MIX":
            kind, f2off, qoff = rd[1], rd[2], rd[3]
            em.e(f"""
            v_lshrrev_b32 v{a}, 2, v1
            v_and_b32 v{b}, 3, v1
            s_and_b32 s{S_T0}, s{S_W8}, 2
            v_xor_b32 v{b}, s{S_T0}, v{b}
            s_and_b32 s{S_T0}, s{S_W8}, 1
            s_lshl_b32 s{S_T0}, s{S_T0}, 4
            v_add_u32 v{a}, s{S_T0}, v{a}
            v_mul_u32_u24 v{a}, 3456, v{a}
            v_lshl_add_u32 v{V_RD+r}, v{b}, 4, v{a}
            s_lshl_b32 s{R_OFF[r]}, s{S_FG2}, 7
            s_lshl_b32 s{S_T0}, s{S_TOFF}, 5
            s_add_u32 s{R_OFF[r]}, s{R_OFF[r]}, s{S_T0}
            s_mov_b32 s{S_RI}, {32*3456}
            s_add_u32 s{S_RM}, s{S_MW}, {f2off}
            s_cmp_lt_u32 s{S_W8}, 2
            s_cselect_b32 s{sr}, s{S_G}, s{S_U}
            s_cselect_b32 s{sr+1}, s{S_G+1}, s{S_U+1}
            s_mov_b32 s{sr+2}, {640*3456}
            s_mov_b32 s{sr+3}, 0x00020000
            """)
            if kind:
                em.e(f"""
                s_lshl_b32 s{S_T0}, s{S_W8}, 6
                s_add_u32 s{S_T0}, s{S_T0}, 256
                v_add_u32 v{a}, s{S_T0}, v1
                v_mul_u32_u24 v{b}, 3277, v{a}
                v_lshrrev_b32 v{b}, 16, v{b}
                v_mul_u32_u24 v{c}, 20, v{b}
                v_sub_u32 v{c}, v{a}, v{c}
                v_mul_u32_u24 v{b}, 3840, v{b}
                v_lshl_add_u32 v{d}, v{c}, 4, v{b}
                """)
                if kind == "KV":
                    em.e(f"""
                    v_cmp_le_u32 vcc, 10, v{c}
                    v_add_u32 v{b}, 1120, v{d}
                    s_nop 0
                    v_cndmask_b32 v{d}, v{d}, v{b}, vcc
                    """)
                em.e(f"""
                s_cmp_ge_u32 s{S_W8}, 4
                s_cselect_b64 vcc, -1, 0
                s_cselect_b32 s{sr}, s{S_QKV}, s{sr}
                s_cselect_b32 s{sr+1}, s{S_QKV+1}, s{sr+1}
                s_cselect_b32 s{sr+2}, {640*3840}, s{sr+2}
                s_cselect_b32 s{R_OFF[r]}, s{R_OFF[0]}, s{R_OFF[r]}
                s_cselect_b32 s{S_RI}, {32*3840}, s{S_RI}
                s_add_u32 s{S_T0}, s{S_MW}, {qoff - 4096}
                s_cmp_ge_u32 s{S_W8}, 4
                s_cselect_b32 s{S_RM}, s{S_T0}, s{S_RM}
                v_cndmask_b32 v{V_RD+r}, v{V_RD+r}, v{d}, vcc
                """)
            lim = 6 if kind else 4
            em.e(f"""
            s_cmp_ge_u32 s{S_W8}, {lim}
            s_cselect_b64 vcc, -1, 0
            v_mov_b32 v{b}, 0x80000000
            s_nop 0
            v_cndmask_b32 v{V_RD+r}, v{V_RD+r}, v{b}, vcc
            """)
        else:
            sg = rd[1]
            em.e(f"""
            v_lshrrev_b32 v{a}, 3, v1
            v_and_b32 v{b}, 7, v1
            v_bfe_u32 v{c}, v1, 4, 1
            v_lshlrev_b32 v{c}, 1, v{c}
            v_xor_b32 v{c}, v{c}, v{b}
            s_and_b32 s{S_T0}, s{S_W8}, 4
            v_xor_b32 v{c}, s{S_T0}, v{c}
            v_lshlrev_b32 v{c}, 4, v{c}
            s_lshl_b32 s{S_T0}, s{S_WV}, 3
            v_add_u32 v{a}, s{S_T0}, v{a}
            v_mul_u32_u24 v{a}, 3456, v{a}
            v_add_u32 v{V_RD+r}, v{a}, v{c}
            s_lshl_b32 s{R_OFF[r]}, s{sg}, 7
            s_cmp_lt_u32 s{S_W8}, 4
            s_cselect_b32 s{sr}, s{S_G}, s{S_U}
            s_cselect_b32 s{sr+1}, s{S_G+1}, s{S_U+1}
            s_mov_b32 s{sr+2}, {640*3456}
            s_mov_b32 s{sr+3}, 0x00020000
            """)

def setup3_reads(em):
    a, b, c, d, e = VT, VT + 1, VT + 2, VT + 3, VT + 4
    em.e(f"""
    v_and_b32 v{a}, 31, v1
    v_lshrrev_b32 v{b}, 5, v1
    v_bfe_u32 v{c}, v1, 1, 3
    v_xor_b32 v{c}, v{c}, v{b}
    v_lshlrev_b32 v{d}, 7, v{a}
    s_lshl_b32 s{S_T0}, s{S_WV}, 12
    s_add_u32 s{S_T0}, s{S_T0}, {XB3}
    v_add_u32 v{d}, s{S_T0}, v{d}
    """)
    for sp in range(4):
        em.e(f"v_xor_b32 v{e}, {2*sp}, v{c}\nv_lshl_add_u32 v{V_XR+sp}, v{e}, 4, v{d}")

def setup3_F(em):
    a, b, c, d, e = VT, VT + 1, VT + 2, VT + 3, VT + 4
    em.e(f"""
    v_bfe_u32 v{a}, v1, 4, 1
    v_lshrrev_b32 v{b}, 5, v1
    v_bfe_u32 v{c}, v1, 2, 2
    v_and_b32 v{d}, 3, v1
    v_lshlrev_b32 v{e}, 12, v{a}
    v_lshl_add_u32 v{e}, v{b}, 10, v{e}
    v_lshl_add_u32 v{e}, v{c}, 7, v{e}
    v_lshl_add_u32 v{e}, v{d}, 3, v{e}
    v_lshrrev_b32 v{c}, 1, v{c}
    v_lshl_or_b32 v{c}, v{a}, 1, v{c}
    """)
    for t in range(4):
        em.e(f"v_xor_b32 v{d}, {t}, v{c}\nv_lshl_add_u32 v{V_FT+t}, v{d}, 5, v{e}\nv_add_u32 v{V_FT+4+t}, 0x10000, v{V_FT+t}")
    em.e(f"""
    s_lshl_b32 s{S_T0}, s{S_WV}, 1
    v_add_u32 v{a}, s{S_T0}, v{a}
    s_mov_b32 s{S_T0+1}, {54*1024}
    v_mul_lo_u32 v{a}, v{a}, s{S_T0+1}
    v_and_b32 v{c}, 15, v1
    v_lshl_add_u32 v{c}, v{b}, 4, v{c}
    v_lshl_add_u32 v{V_FS}, v{c}, 4, v{a}
    s_mul_i32 s{S_HB}, s{S_M}, {8*54*1024}
    s_add_u32 s{S_HB}, s{S_HB}, {HF_OFF}
    s_lshl_b32 s{S_T0}, s{S_FG2}, 11
    s_add_u32 s{S_HB2}, s{S_HB}, s{S_T0}
    s_lshl_b32 s{S_T0}, s{S_TOFF}, 9
    s_add_u32 s{S_HB2}, s{S_HB2}, s{S_T0}
    s_lshl_b32 s{S_T0}, s{S_FG}, 11
    s_add_u32 s{S_HB}, s{S_HB}, s{S_T0}
    v_mov_b32 v{V_GC0}, {f32bits(GC0)}
    v_mov_b32 v{V_PKC}, {f32bits(GC1)}
    v_mov_b32 v{V_PKC+1}, {f32bits(GC1)}
    v_mov_b32 v{V_PKC+2}, {f32bits(GC0)}
    v_mov_b32 v{V_PKC+3}, {f32bits(GC0)}
    v_bfe_u32 v{a}, v1, 4, 1
    v_bfe_u32 v{c}, v1, 2, 2
    v_and_b32 v{d}, 3, v1
    v_lshlrev_b32 v{e}, 11, v{a}
    v_lshl_add_u32 v{e}, v{b}, 9, v{e}
    v_lshl_add_u32 v{e}, v{c}, 6, v{e}
    v_lshl_add_u32 v{e}, v{d}, 3, v{e}
    v_lshl_add_u32 v{V_F2T}, v{a}, 5, v{e}
    v_xor_b32 v{V_F2T+1}, 32, v{V_F2T}
    v_add_u32 v{V_F2T+2}, 0x10000, v{V_F2T}
    v_add_u32 v{V_F2T+3}, 0x10000, v{V_F2T+1}
    """)

def gpf3_setup(em):
    a, b = VT, VT + 1
    P = S_TA
    em.e(f"""
    s_cmp_eq_u32 s{S_WV}, 0
    s_cselect_b32 s{P}, s{S_G}, s{S_U}
    s_cselect_b32 s{P+1}, s{S_G+1}, s{S_U+1}
    s_mov_b32 s{P+2}, {640*3456}
    s_mov_b32 s61, {64*3456}
    s_mul_i32 s60, s2, 864
    s_cmp_eq_u32 s{S_WV}, 2
    s_cselect_b32 s{P}, s{S_QKV}, s{P}
    s_cselect_b32 s{P+1}, s{S_QKV+1}, s{P+1}
    s_cselect_b32 s{P+2}, {640*3840}, s{P+2}
    s_cselect_b32 s61, {64*3840}, s61
    s_mul_i32 s{S_T0}, s2, 960
    s_cselect_b32 s60, s{S_T0}, s60
    s_cmp_eq_u32 s{S_WV}, 3
    s_cselect_b32 s{P}, s{S_X}, s{P}
    s_cselect_b32 s{P+1}, s{S_X+1}, s{P+1}
    s_cselect_b32 s{P+2}, {2048*1280}, s{P+2}
    s_cselect_b32 s61, 128, s61
    s_mul_i32 s{S_T0}, s2, {8*1280}
    s_cselect_b32 s60, s{S_T0}, s60
    s_mov_b32 s{P+3}, 0x00020000
    s_movk_i32 s{S_T0}, 128
    s_cselect_b32 s{S_T0}, 1280, s{S_T0}
    v_mul_lo_u32 v{a}, v1, s{S_T0}
    v_mov_b32 v{b}, 0x80000000
    v_cmp_gt_u32 vcc, 8, v1
    s_nop 1
    v_cndmask_b32 v251, v{b}, v{a}, vcc
    """)
def gpf3_step(em, n=1):
    for _ in range(n):
        em.vm(f"buffer_load_dword v250, v251, s[{S_TA}:{S_TA+3}], s60 offen")
        em.e("s_add_u32 s60, s60, s61")

def engine3(em, rounds, dests, tiles, pro=None, gp=False, bgf=None):
    D = OPT.get('D3', 3)
    NST = 20; PW = NWS - 2; PX = NXS3 - 1
    incs = [32 * 3840 if rd[0] == "QKV" else 32 * 3456 for rd in rounds]
    w_last = {}; x_last = {}
    def issue_w(s):
        if s >= NST: return []
        if OPT.get("nodma") and s > 2:
            w_last[s] = 0; return []
        cl = []
        for r, rd in enumerate(rounds):
            def c(r=r, rd=rd):
                if rd[0] == "MIX":
                    em.e(f"s_add_u32 s{S_TMP}, s{S_RM}, {(s % NWS) * WPART}")
                    em.e(f"s_cmp_lt_u32 s{S_W8}, {6 if rd[1] else 4}")
                    em.e(f"s_cselect_b32 m0, s{S_TMP}, s{S_DUM}")
                    w_last[s] = em.vm(f"buffer_load_dwordx4 v{V_RD+r}, s[{R_SRD[r]}:{R_SRD[r]+3}], s{R_OFF[r]} offen lds")
                    em.e(f"s_add_u32 s{R_OFF[r]}, s{R_OFF[r]}, s{S_RI}")
                    return
                base = (s % NWS) * WPART + dests[r]
                em.e(f"s_add_u32 m0, s{S_MW}, {base}")
                em.e(f"s_add_u32 s{S_TMP}, s{R_OFF[r]}, {s*incs[r]}")
                w_last[s] = em.vm(f"buffer_load_dwordx4 v{V_RD+r}, s[{R_SRD[r]}:{R_SRD[r]+3}], s{S_TMP} offen lds")
            cl.append(c)
        return cl
    def issue_x(i):
        if i >= 10: return []
        if OPT.get("nodma") and i > 1:
            x_last[i] = 0; return []
        cl = []
        for n in range(2):
            def c(n=n):
                em.e(f"s_add_u32 m0, s{S_MX}, {(i % NXS3)*XSL3 + n*1024}")
                em.e(f"s_movk_i32 s{S_TMP}, {i*128}")
                x_last[i] = em.vm(f"buffer_load_dwordx4 v{V_XD+n}, s[{S_X}:{S_X+3}], s{S_TMP} offen lds")
            cl.append(c)
        return cl
    em.e(f"s_and_b32 s{S_DUM}, s{S_MW}, 1024\ns_add_u32 s{S_DUM}, s{S_DUM}, {DUMMY}")
    for c in issue_x(0) + issue_w(0) + issue_w(1) + issue_x(1) + issue_w(2): c()
    if pro: pro(em)
    LA = OPT.get("LA3", 0)
    gp = gp and LA > 0
    if gp:
        gpf3_setup(em)
        em.e("s_add_u32 s60, s60, s61")
        gpf3_step(em, LA - 1)
    if gp and OPT.get("prio1"): em.e(f"s_setprio {OPT['prio1']}")
    T = len(tiles)
    mf = [(s, sp, t) for s in range(NST) for sp in range(2) for t in range(T)]
    N = len(mf)
    NB = len(WFR)
    rd_ = {}; xrd = {}
    pend = []
    bg = BG()
    if bgf: bg.add(bgf(em))
    def need_of(k):
        s, sp, t = mf[k]
        return max(rd_[k], xrd[2 * s + sp])
    for idx in range(-D, N):
        if idx >= 0:
            s, sp, t = mf[idx]
            em.wait(lds=need_of(idx))
            b = WFR[idx % NB]
            a = tiles[t][0]
            k16 = 2 * s + sp
            xr = V_XF + 4 * (k16 % 4)
            c = "0" if k16 == 0 else f"v[{a}:{a+15}]"
            em.e(f"v_mfma_f32_32x32x16_bf16 v[{a}:{a+15}], v[{b}:{b+3}], v[{xr}:{xr+3}], {c}")
        j = idx + D
        if j < N:
            s, sp, t = mf[j]
            if sp == 0 and t == 0:
                while pend: pend.pop(0)()
                need = w_last[s]
                if s % 2 == 0: need = max(need, x_last[s // 2])
                em.wait(vm=need)
                if not (OPT.get("nobar") and s > 0): em.e("s_barrier")
                if s in (0, 1, 5, 10, 15): stamp3(em, {0: 1, 1: 8, 5: 2, 10: 3, 15: 4}[s])
                pend += issue_w(s + PW)
                if s in (0, 6, 12, 17): code_ahead(em, 2048)
                if gp and s % 2 == 0 and s // 2 + LA < 10: gpf3_step(em)
                if s % 2 == 1: pend += issue_x((s - 1) // 2 + PX)
                for q in range(2):
                    k16 = 2 * s + q
                    xr = V_XF + 4 * (k16 % 4)
                    xrd[k16] = em.lds(f"ds_read_b128 v[{xr}:{xr+3}], v{V_XR + (k16 % 4)} offset:{((s // 2) % NXS3)*XSL3}")
            b = WFR[j % NB]
            for hf in range(2):
                vr, off = tiles[t][1]((s % NWS) * WPART, sp, hf)
                rd_[j] = em.lds(f"ds_read_b64_tr_b16 v[{b+2*hf}:{b+2*hf+1}], v{vr} offset:{off}")
        if pend: pend.pop(0)()
        elif idx >= 0: bg.step(em, 3)
    bg.drain(em)
    if gp and OPT.get("prio1"): em.e("s_setprio 0")

def f_tile(acc, part_off, t, f2=False):
    def fn(sb, sp, hf):
        off = sb + part_off + (sp * 1024 + hf * 256 if f2 else sp * 2048 + hf * 512)
        base = V_F2T if f2 else V_FT
        hi = 2 if f2 else 4
        if off >= 65536: return (base + hi + t, off - 65536)
        return (base + t, off)
    return (acc, fn)

def q_tile(acc, t):
    def fn(sb, sp, hf):
        off = sb + (16 * sp + 4 * hf) * 320 + t * 64
        if off >= 65536: return (V_TR + 1, off - 65536)
        return (V_TR, off)
    return (acc, fn)


class Rec:
    def __init__(self): self.ops = []; self.n = 0
    def e(self, text):
        for t in text.split("\n"):
            t = t.strip()
            if t: self.ops.append(("e", t, None))
    def vm(self, text):
        self.n += 1; self.ops.append(("vm", text, self.n)); return ("rec", self.n)
    def lds(self, text):
        self.n += 1; self.ops.append(("lds", text, self.n)); return ("rec", self.n)

def replay(em, rec, st):
    m = {}
    hold = False
    for kind, t, n in rec.ops:
        if kind == "e": em.e(t)
        elif kind == "vm": m[n] = em.vm(t)
        else: m[n] = em.lds(t)
        op = t.split()[0]
        if op.startswith("s_cmp"): hold = True
        elif hold and not (op.startswith("s_cselect") or op.startswith("s_mov") or op.startswith("s_mul") or op.startswith("s_movk")): hold = False
        if not hold: yield (3 if kind != "e" else 1)
    for k, v in list(st.items()):
        if isinstance(v, tuple) and v and v[0] == "rec": st[k] = m[v[1]]

def run(gen, em):
    for c in gen:
        if c == "BAR": em.e("s_barrier")


_k2pf_n = [0]
def k2_code_touch(em):
    if not OPT.get("k2pf"): return
    _k2pf_n[0] += 1
    n = _k2pf_n[0]
    em.e(f"s_getpc_b64 s[28:29]")
    em.label(f"L_k2pf_{n}")
    em.e(f"""
    s_add_u32 s28, s28, k2_kernel - L_k2pf_{n}
    s_addc_u32 s29, s29, 0
    s_lshl_b32 s30, s{S_WV}, 12
    v_lshlrev_b32 v{VT}, 6, v1
    v_add_u32 v{VT}, s30, v{VT}
    v_min_u32 v{VT}, L_text_end - k2_kernel - 4, v{VT}
    """)
    em.vm(f"global_load_dword v250, v{VT}, s[28:29]")


def code_ahead(em, skip=1024):
    if not OPT.get("cahead"): return
    _k2pf_n[0] += 1
    n = _k2pf_n[0]
    em.e(f"s_getpc_b64 s[28:29]")
    em.label(f"L_ca_{n}")
    em.e(f"""
    s_lshl_b32 s30, s{S_WV}, 11
    s_add_u32 s30, s30, {skip}
    v_and_b32 v249, 15, v1
    v_lshlrev_b32 v249, 7, v249
    v_add_u32 v249, s30, v249
    v_min_u32 v249, L_text_end - L_ca_{n} - 4, v249
    """)
    em.vm(f"global_load_dword v250, v249, s[28:29]")

def f_tail(em, specs, bar_after=None):
    for n, (acc, sb, off) in enumerate(specs):
        run(f_epilogue_tile(em, acc, off, 160 + 16 * (n & 1), sb), em)
        if bar_after == n: em.e("s_barrier")

WBD3 = 0; PB3 = 20480; VB3 = PB3 + 4 * 32 * PITCH; KS3 = VB3 + 4 * 32 * 200; FSC3 = KS3 + 4 * 3360 + 64

def gen_special(em, kind):
    rounds = [("QKV", kind, 0), ("F", S_FG), ("MIX", kind, 18432, 8192)]
    dests = [0, 10240, 0]
    setup3(em, rounds)
    lab = "Q" if kind == "Q" else "KV"
    em.e(f"s_cmp_ge_u32 s{S_W8}, 4\ns_cbranch_scc1 L3_{lab}_h1")
    save = (em.vm_n, em.vm_done, em.lds_n, em.lds_done)
    st = {}
    nblk = 18 if kind == "Q" else 9
    def pro0(em):
        setup3_reads(em)
        setup_QKV_reads(em, kind)
    def bg0(em):
        r = Rec()
        r.e(f"s_lshl_b32 s{S_H0}, s{S_C}, {3 if kind == 'Q' else 2}")
        st["wl"], st["n_it"] = wbd_loads(r, nblk, 200, V_CH)
        yield from replay(em, r, st)
    engine3(em, rounds, dests, [q_tile(ACC0 + 16 * t, t) for t in range(5)], pro0, bgf=bg0)
    stamp3(em, 9)
    em.wait_lgkm0()
    em.e("s_barrier")
    run(wbd_writes(em, st["n_it"], st["wl"], WBD3, V_CH, V_SM), em)
    if kind == "Q":
        run(conv_qf(em, 10), em)
        em.e("s_barrier")
        run(chain(em, 5, 10, 4), em)
        em.e(f"""
        s_lshl_b32 s{S_T0}, s{S_M}, 1
        s_lshr_b32 s{S_T0+1}, s{S_WV}, 1
        s_add_u32 s{S_T0}, s{S_T0}, s{S_T0+1}
        s_mul_i32 s{S_OB}, s{S_T0}, {64*1280}
        s_and_b32 s{S_T0+1}, s{S_WV}, 1
        s_mul_i32 s{S_T0+1}, s{S_T0+1}, 1280
        s_add_u32 s{S_OB}, s{S_OB}, s{S_T0+1}
        s_mul_i32 s{S_T0}, s{S_C}, {8*2560}
        s_add_u32 s{S_OB}, s{S_OB}, s{S_T0}
        s_add_u32 s{S_OB}, s{S_OB}, {PQF_OFF}
        s_mul_i32 s{S_T0}, s{S_WV}, {32*PITCH}
        s_add_u32 s{S_T0}, s{S_T0}, {PB3}
        """)
        a_, b_, c_ = VT, VT + 1, VT + 2
        for j in range(3):
            em.e(f"""
            v_add_u32 v{a_}, {64*j}, v1
            v_min_u32 v{b_}, 159, v{a_}
            v_mul_u32_u24 v{c_}, 13108, v{b_}
            v_lshrrev_b32 v{c_}, 16, v{c_}
            v_mul_u32_u24 v{V_SM+50+j}, 5, v{c_}
            v_sub_u32 v{b_}, v{b_}, v{V_SM+50+j}
            v_mul_u32_u24 v{c_}, {PITCH}, v{c_}
            v_lshl_add_u32 v{c_}, v{b_}, 3, v{c_}
            v_add_u32 v{V_SM+50+j}, s{S_T0}, v{c_}
            v_lshlrev_b32 v{V_SM+53+j}, 3, v{a_}
            """)
        em.e(f"""
        v_mov_b32 v{b_}, 0x80000000
        v_cmp_gt_u32 vcc, 160, v{a_}
        s_nop 1
        v_cndmask_b32 v{V_SM+55}, v{b_}, v{V_SM+55}, vcc
        """)
        em.wait(lds=em.last_p)
        ids = {}
        for h in range(8):
            for j in range(3):
                r = V_SM + 2 * (3 * h + j)
                ids[(h, j)] = em.lds(f"ds_read_b64 v[{r}:{r+1}], v{V_SM+50+j} offset:{h*40}")
        for h in range(8):
            em.e(f"s_add_u32 s{S_TMP2}, s{S_OB}, {h*2560}")
            for j in range(3):
                r = V_SM + 2 * (3 * h + j)
                em.wait(lds=ids[(h, j)])
                em.vm(f"buffer_store_dwordx2 v[{r}:{r+1}], v{V_SM+53+j}, s[{S_WS}:{S_WS+3}], s{S_TMP2} offen")
    else:
        run(kv_epi(em), em)
    stamp3(em, 10)
    em.e("s_endpgm")
    em.label(f"L3_{lab}_h1")
    em.vm_n, em.vm_done, em.lds_n, em.lds_done = save
    GR = 192
    def pro1(em):
        setup3_reads(em)
        setup3_F(em)
    def bg1(em):
        r = Rec()
        if kind == "KV": kv_zero(r, st)
        st["g"] = gate_issue3(r, GR)
        yield from replay(em, r, st)
        yield from gate_bg(em, st["g"], GR, delay=40)
        if kind == "KV":
            kv_signal(em, st); yield 8
    tiles = [f_tile(64 + 16 * t, 10240, t) for t in range(4)] + [f_tile(128 + 16 * t, 18432, t, f2=True) for t in range(2)]
    engine3(em, rounds, dests, tiles, pro1, gp=True, bgf=bg1)
    stamp3(em, 9)
    em.wait_lgkm0()
    em.e("s_barrier")
    k2_code_touch(em)
    st["f"] = frag_issue(em, FSC3, VT + 2)
    em.e("s_barrier")
    f_tail(em, [(64 + 16 * t, S_HB, t * 512) for t in range(4)] + [(128 + 16 * t, S_HB2, t * 512) for t in range(2)],
           bar_after=(OPT.get("b3", 3) if kind == "KV" else None))
    frag_finish(em, st["f"], FSC3, 160)
    stamp3(em, 10)
    em.e("s_endpgm")


def gate_issue3(em, R):
    import k1v2
    old = k1v2.S_TA
    k1v2.S_TA = 84
    try:
        return k1v2.gate_issue(em, R)
    finally:
        k1v2.S_TA = old

def setup_QKV_reads(em, kind):
    a, b, c, d, e = VT, VT + 1, VT + 2, VT + 3, VT + 4
    p_base, v_base, wbd_base = PB3, VB3, WBD3
    em.e(f"""
    v_and_b32 v{a}, 31, v1
    v_lshrrev_b32 v{b}, 5, v1
    s_mul_i32 s{S_T0}, s{S_WV}, {32*PITCH}
    s_add_u32 s{S_T0}, s{S_T0}, {p_base}
    v_mul_u32_u24 v{d}, {PITCH}, v{a}
    v_add_u32 v{d}, s{S_T0}, v{d}
    v_lshl_add_u32 v{V_PW}, v{b}, 3, v{d}
    """)
    if kind == "KV":
        em.e(f"""
        s_mul_i32 s{S_T0+1}, s{S_WV}, {32*200}
        s_add_u32 s{S_T0+1}, s{S_T0+1}, {v_base}
        v_mul_u32_u24 v{d}, 200, v{a}
        v_add_u32 v{d}, s{S_T0+1}, v{d}
        v_lshl_add_u32 v{V_VWA}, v{b}, 3, v{d}
        v_lshl_add_u32 v{V_VWB}, v{b}, 4, v{d}
        """)
    em.e(f"""
    v_and_b32 v{a}, 15, v1
    v_lshrrev_b32 v{b}, 4, v1
    v_mul_u32_u24 v{c}, {PITCH}, v{a}
    v_add_u32 v{c}, s{S_T0}, v{c}
    v_mul_u32_u24 v{d}, 40, v{b}
    v_add_u32 v{V_PR}, v{c}, v{d}
    """)
    if kind == "Q":
        em.e(f"v_mul_u32_u24 v{d}, 1280, v{b}\nv_lshl_add_u32 v{V_OUT}, v{a}, 4, v{d}")
    else:
        em.e(f"v_mul_u32_u24 v{d}, 80, v{b}\nv_add_u32 v{V_OUT}, v{c}, v{d}")
    em.e(f"""
    v_bfe_u32 v{a}, v1, 4, 1
    v_lshrrev_b32 v{b}, 5, v1
    v_bfe_u32 v{c}, v1, 2, 2
    v_and_b32 v{d}, 3, v1
    v_lshlrev_b32 v{a}, 5, v{a}
    v_lshl_add_u32 v{a}, v{d}, 3, v{a}
    v_lshl_add_u32 v{e}, v{b}, 3, v{c}
    v_mul_u32_u24 v{e}, 320, v{e}
    v_add_u32 v{V_TR}, v{e}, v{a}
    v_add_u32 v{V_TR+1}, 0x10000, v{V_TR}
    v_lshl_add_u32 v{e}, v{b}, 2, v{c}
    v_lshl_add_u32 v{e}, v{e}, 6, v{a}
    v_add_u32 v{V_WBD}, {wbd_base}, v{e}
    """)
    if kind == "KV":
        em.e(f"""
        v_lshrrev_b32 v{a}, 4, v1
        v_lshl_add_u32 v{a}, v{a}, 3, v{c}
        v_mul_u32_u24 v{b}, {PITCH}, v{a}
        v_lshl_add_u32 v{b}, v{d}, 3, v{b}
        s_mul_i32 s{S_T0}, s{S_WV}, 80
        s_add_u32 s{S_T0}, s{S_T0}, {p_base}
        v_add_u32 v{V_PHT}, s{S_T0}, v{b}
        v_mul_u32_u24 v{b}, 200, v{a}
        v_lshl_add_u32 v{b}, v{d}, 3, v{b}
        s_mul_i32 s{S_T0+1}, s{S_WV}, 48
        s_add_u32 s{S_T0+1}, s{S_T0+1}, {v_base}
        v_add_u32 v{V_VT}, s{S_T0+1}, v{b}
        """)
    em.e(f"s_mov_b32 s{S_L2E}, {f32bits(LOG2E)}")

def kv_zero(em, st):
    em.e(f"""
    s_mul_i32 s{S_T0}, s{S_C}, 15360
    s_mul_i32 s{S_T0+1}, s{S_M}, 960
    s_add_u32 s{S_T0}, s{S_T0}, s{S_T0+1}
    s_add_u32 s{S_T0}, s{S_T0}, {KVP_OFF}
    v_lshlrev_b32 v{VT}, 4, v0
    v_mov_b32 v{VT+1}, 0x80000000
    v_cmp_gt_u32 vcc, 60, v0
    v_mov_b32 v228, 0
    v_mov_b32 v229, 0
    v_mov_b32 v230, 0
    v_mov_b32 v231, 0
    v_cndmask_b32 v{VT}, v{VT+1}, v{VT}, vcc
    """)
    st["z"] = em.vm(f"buffer_store_dwordx4 v[228:231], v{VT}, s[{S_WS}:{S_WS+3}], s{S_T0} offen sc1")
    em.e("s_nop 1")

def kv_signal(em, st):
    em.wait(vm=st["z"])
    em.e(f"""
    s_lshl_b32 s{S_TMP2}, s{S_C}, 2
    v_mov_b32 v228, 0x80000000
    v_mov_b32 v229, 1
    v_mov_b32 v230, 0
    v_cmp_eq_u32 vcc, 0, v0
    s_nop 1
    v_cndmask_b32 v228, v228, v230, vcc
    """)
    em.vm(f"buffer_atomic_add v229, v228, s[{S_DBG}:{S_DBG+3}], s{S_TMP2} offen sc1")

def kv_epi(em):
    KW, KR, KL, KL2 = V_RD, V_RD + 1, V_RD + 2, V_RD + 3
    em.e(f"""
    v_lshrrev_b32 v{V_SM}, 5, v1
    v_mul_u32_u24 v{V_SM}, 88, v{V_SM}
    v_add_u32 v{V_SM}, v{V_SM}, v{V_VWA}
    v_mov_b32 v{V_SM+2}, 0x3f803f80
    v_mov_b32 v{V_SM+3}, 0x3f803f80
    """)
    em.lds(f"ds_write_b64 v{V_SM}, v[{V_SM+2}:{V_SM+3}] offset:40")
    em.lds(f"ds_write_b64 v{V_SM}, v[{V_SM+2}:{V_SM+3}] offset:88")
    for (t, a) in [(2, 2), (2, 3)] + [(t, a) for t in (3, 4) for a in range(4)]:
        c0 = 32 * t + 8 * a - 80
        p0 = c0 + 4 * (c0 // 20); p1 = (c0 + 4) + 4 * ((c0 + 4) // 20)
        va = V_VWA if p1 - p0 == 4 else V_VWB
        r = ACC0 + 16 * t + 4 * a
        em.e(f"v_cvt_pk_bf16_f32 v{r}, v{r}, v{r+1}")
        em.e(f"v_cvt_pk_bf16_f32 v{r+1}, v{r+2}, v{r+3}")
        em.lds(f"ds_write_b64 v{va}, v[{r}:{r+1}] offset:{p0*2}")
    yield from conv_qf(em, 5)
    yield "BAR"
    stamp3(em, 5)
    yield from chain(em, 3, 5, 2)
    stamp3(em, 6)
    def out_fn(em, ri, O):
        for c in range(5):
            em.last_p = em.lds(f"ds_write_b128 v{V_OUT}, v[{O+4*c}:{O+4*c+3}] offset:{ri*16*PITCH + 16*c}"); yield 3
    yield from softmax_rounds(em, [ri * 16 * PITCH for ri in range(2)], out_fn)
    em.wait(lds=em.last_p)
    stamp3(em, 7)
    x0, x1, x2 = V_CH, V_CH + 1, V_CH + 2
    em.e(f"""
    s_add_u32 s{S_TMP2}, s{S_H0}, s{S_WV}
    s_mul_i32 s{S_OB}, s{S_TMP2}, 3840
    s_add_u32 s{S_OB}, s{S_OB}, {KVP_OFF}
    s_mul_i32 s{S_TMP2}, s{S_WV}, 3360
    s_add_u32 s{S_TMP2}, s{S_TMP2}, {KS3}
    v_and_b32 v{x0}, 15, v1
    v_lshrrev_b32 v{x1}, 4, v1
    v_mul_u32_u24 v{x2}, 160, v{x0}
    v_lshl_add_u32 v{x2}, v{x1}, 4, v{x2}
    v_add_u32 v{KW}, s{S_TMP2}, v{x2}
    v_lshlrev_b32 v{KL}, 2, v1
    v_add_u32 v{KR}, s{S_TMP2}, v{KL}
    v_mov_b32 v{x2}, 0x80000000
    v_cmp_gt_u32 s[60:61], 8, v1
    v_cmp_gt_u32 s[62:63], 2, v{x1}
    v_cmp_gt_u32 s[90:91], 5, v{x0}
    v_cndmask_b32 v{KL2}, v{x2}, v{KL}, s[60:61]
    s_and_b64 s[88:89], s[62:63], s[90:91]
    s_lshl_b32 s{S_TMP2}, s{S_C}, 2
    v_mov_b32 v{V_CH}, 0
    """)
    pv = em.vm(f"buffer_load_dword v{V_CH+1}, v{V_CH}, s[{S_DBG}:{S_DBG+3}], s{S_TMP2} offen sc1")
    em.wait(lds=em.last_p)
    yield "BAR"
    stamp3(em, 11)
    KA = ACC0
    def issue(ks):
        b = V_SM + 20 * (ks % 2)
        for a in range(3):
            for hf in range(2):
                em.lds(f"ds_read_b64_tr_b16 v[{b+4*a+2*hf}:{b+4*a+2*hf+1}], v{V_PHT} offset:{(32*ks+4*hf)*PITCH + 32*a}")
        for bb in range(2):
            for hf in range(2):
                last = em.lds(f"ds_read_b64_tr_b16 v[{b+12+4*bb+2*hf}:{b+12+4*bb+2*hf+1}], v{V_VT} offset:{(32*ks+4*hf)*200 + 32*bb}")
        return last
    l0 = issue(0)
    for ks in range(4):
        if ks < 3: l1 = issue(ks + 1)
        em.wait(lds=l0)
        b = V_SM + 20 * (ks % 2)
        for a in range(3):
            for bb in range(2):
                r = KA + 8 * a + 4 * bb
                c = "0" if ks == 0 else f"v[{r}:{r+3}]"
                em.e(f"v_mfma_f32_16x16x32_bf16 v[{r}:{r+3}], v[{b+4*a}:{b+4*a+3}], v[{b+12+4*bb}:{b+12+4*bb+3}], {c}")
        l0 = l1
    for a in range(3):
        for bb in range(2):
            r = KA + 8 * a + 4 * bb
            msk = [[None, "s[90:91]"], [None, "s[90:91]"], ["s[62:63]", "s[88:89]"]][a][bb]
            if msk: em.e(f"s_mov_b64 exec, {msk}")
            lw = em.lds(f"ds_write_b128 v{KW}, v[{r}:{r+3}] offset:{bb*16*160 + a*64}")
            if msk: em.e("s_mov_b64 exec, -1")
    em.wait(lds=lw)
    stamp3(em, 12)
    rr = [em.lds(f"ds_read_b32 v{V_SM+i}, v{KR} offset:{i*256}") for i in range(14)]
    em.wait(vm=pv)
    em.e(f"""
    v_readfirstlane_b32 s{S_DUM}, v{V_CH+1}
    s_cmp_ge_u32 s{S_DUM}, 16
    s_cbranch_scc1 L3_kv_go
    """)
    em.label("L3_kv_poll")
    em.e(f"""
    s_sleep 8
    buffer_load_dword v{V_CH+1}, v{V_CH}, s[{S_DBG}:{S_DBG+3}], s{S_TMP2} offen sc1
    s_waitcnt vmcnt(0)
    v_readfirstlane_b32 s{S_DUM}, v{V_CH+1}
    s_cmp_lt_u32 s{S_DUM}, 16
    s_cbranch_scc1 L3_kv_poll
    """)
    em.label("L3_kv_go")
    for i in range(14):
        em.wait(lds=rr[i])
        em.vm(f"buffer_atomic_add_f32 v{V_SM+i}, v{KL if i < 13 else KL2}, s[{S_WS}:{S_WS+3}], s{S_OB} offen offset:{i*256}")
    yield 1

def gen_pureF(em, with_f2):
    S_FGB = 99
    rounds = [("F", S_FG), ("F", S_FGB)] + ([("MIX", None, 16384, 0)] if with_f2 else [])
    dests = [0, 8192, 0]
    setup3(em, rounds)
    lab = "C" if with_f2 else "D"
    st = {}; GR = 192
    em.e(f"s_cmp_ge_u32 s{S_W8}, 4\ns_cbranch_scc1 L3_{lab}_h1")
    save = (em.vm_n, em.vm_done, em.lds_n, em.lds_done)
    def pro0(em):
        setup3_reads(em); setup3_F(em)
    def bg0(em):
        r = Rec()
        st["g"] = gate_issue3(r, GR)
        yield from replay(em, r, st)
        yield from gate_bg(em, st["g"], GR, delay=30)
    engine3(em, rounds, dests, [f_tile(64 + 16 * t, 0, t) for t in range(4)], pro0, bgf=bg0)
    stamp3(em, 9)
    em.wait_lgkm0()
    em.e("s_barrier")
    st["f"] = frag_issue(em, FSC3, VT + 2)
    f_tail(em, [(64 + 16 * t, S_HB, t * 512) for t in range(4)])
    frag_finish(em, st["f"], FSC3, 160)
    stamp3(em, 10)
    em.e("s_endpgm")
    em.label(f"L3_{lab}_h1")
    em.vm_n, em.vm_done, em.lds_n, em.lds_done = save
    def pro1(em):
        setup3_reads(em); setup3_F(em)
    tiles = [f_tile(64 + 16 * t, 8192, t) for t in range(4)] + ([f_tile(128 + 16 * t, 16384, t, f2=True) for t in range(2)] if with_f2 else [])
    engine3(em, rounds, dests, tiles, pro1, gp=True)
    stamp3(em, 9)
    em.wait_lgkm0()
    em.e("s_barrier")
    f_tail(em, [(64 + 16 * t, S_HB, 2048 + t * 512) for t in range(4)] + ([(128 + 16 * t, S_HB2, t * 512) for t in range(2)] if with_f2 else []))
    stamp3(em, 10)
    em.e("s_endpgm")

def gen_k1():
    em = Em()
    em.raw(".text\n.globl k1_kernel\n.p2align 8\n.type k1_kernel,@function\nk1_kernel:")
    em.e("s_cmp_ge_u32 s2, 256\ns_cbranch_scc1 L_k1_done")
    T0 = S_T0
    em.e(f"""
    s_load_dwordx4 s[40:43], s[0:1], 0
    s_load_dwordx4 s[44:47], s[0:1], 16
    s_load_dwordx4 s[48:51], s[0:1], 40
    s_load_dwordx4 s[52:55], s[0:1], 56
    s_load_dwordx4 s[56:59], s[0:1], 80
    v_lshrrev_b32 v1, 6, v0
    v_and_b32 v0, 255, v0
    v_readfirstlane_b32 s{S_W8}, v1
    s_and_b32 s{T0}, s2, 1
    s_bfe_u32 s{T0+1}, s2, 0x20001
    s_lshr_b32 s{T0+2}, s2, 3
    s_lshl_b32 s{S_M}, s{T0}, 3
    s_and_b32 s{S_WV}, s{S_W8}, 3
    s_and_b32 s{T0+3}, s{T0+2}, 7
    s_add_u32 s{S_M}, s{S_M}, s{T0+3}
    s_lshr_b32 s{T0+2}, s{T0+2}, 3
    """)
    if OPT.get("codepf"):
        em.e(f"""
        s_getpc_b64 s[28:29]
        s_lshr_b32 s30, s2, 3
        s_mul_i32 s30, s30, ((L_text_end - k1_kernel) / 4096) * 128
        s_and_b32 s28, s28, 0xffffff00
        s_add_u32 s28, s28, s30
        s_addc_u32 s29, s29, 0
        v_and_b32 v2, 63, v0
        v_min_u32 v2, ((L_text_end - k1_kernel) / 4096) - 1, v2
        v_lshlrev_b32 v2, 7, v2
        s_cmp_lg_u32 s{S_W8}, 7
        s_cbranch_scc1 L_k1_nocp
        global_load_dword v250, v2, s[28:29]
        """)
        em.label("L_k1_nocp")
    em.wait_lgkm0()
    srd(em, S_X, 40, 2048 * 1280)
    srd(em, S_WS, 58, WS_BYTES)
    srd(em, S_DBG, 56, 256)
    srd(em, S_G, 48, 640 * 3456)
    srd(em, S_U, 50, 640 * 3456)
    srd(em, S_QKV, 42, 640 * 3840)
    srd(em, S_PHI, 44, 32 * 800)
    stamp3(em, 0)
    em.e(f"""
    s_cmp_eq_u32 s{T0+2}, 3
    s_cbranch_scc1 L_k1_F
    s_lshl_b32 s{T0+4}, s{T0+1}, 1
    s_add_u32 s{T0+4}, s{T0+4}, s{T0+2}
    s_sub_u32 s{S_C}, s{T0+4}, 1
    s_add_u32 s{T0+4}, s{T0+4}, 3
    s_cmp_eq_u32 s{T0+2}, 0
    s_cselect_b32 s{S_C}, s{T0+1}, s{S_C}
    s_cselect_b32 s{S_FG}, s{T0+1}, s{T0+4}
    s_lshr_b32 s{S_FG2}, s{S_FG}, 1
    s_add_u32 s{S_FG2}, s{S_FG2}, 20
    s_and_b32 s{S_TOFF}, s{S_FG}, 1
    s_lshl_b32 s{S_TOFF}, s{S_TOFF}, 1
    s_cmp_lg_u32 s{T0+2}, 0
    s_cbranch_scc1 L_k1_KV
    """)
    save = (em.vm_n, em.vm_done, em.lds_n, em.lds_done)
    def restore(): em.vm_n, em.vm_done, em.lds_n, em.lds_done = save
    gen_special(em, "Q")
    em.label("L_k1_KV"); restore()
    gen_special(em, "KV")
    em.label("L_k1_F"); restore()
    em.e(f"""
    s_lshl_b32 s{S_FG}, s{T0+1}, 1
    s_add_u32 s{S_FG}, s{S_FG}, 12
    s_add_u32 s99, s{S_FG}, 1
    s_mov_b32 s{S_FG2}, 26
    s_and_b32 s{S_TOFF}, s{T0+1}, 1
    s_lshl_b32 s{S_TOFF}, s{S_TOFF}, 1
    s_cmp_ge_u32 s{T0+1}, 2
    s_cbranch_scc1 L_k1_F2
    """)
    gen_pureF(em, True)
    em.label("L_k1_F2"); restore()
    gen_pureF(em, False)
    em.label("L_k1_done")
    em.e("s_endpgm")
    return em.finish(), em
```

```python
from asmlib import *
import k1v2 as k1
from k1v2 import HF_OFF, PQF_OFF, WDF_OFF, OF_OFF, KVP_OFF, G_OFF, FLAG_OFF, WS_BYTES, f32bits, srd

S_WS2 = 4; S_OUT = 8
S_WV2 = 16; S_MT = 17; S_NT = 18; S_A0 = 19; S_B0 = 20; S_U = 21
T = 24
ACC = 16
BUF = 96
NBUF = 4

def stamp2(em, k):
    if not k1.OPT['stamps']: return
    em.e(f"s_memrealtime s[60:61]" if (k1.OPT.get("rt") and k in (0, 9)) else f"s_memtime s[60:61]")
    em.e("s_waitcnt lgkmcnt(0)"); em.lds_done = em.lds_n
    em.e(f"""
    s_lshl_b32 s62, s2, 9
    s_lshl_b32 s63, s{S_WV2}, 6
    s_add_u32 s62, s62, s63
    s_add_u32 s62, s62, {0x14A0000 + 4*k}
    v_mov_b32 v6, s60
    v_mov_b32 v7, 0
    """)
    em.vm(f"buffer_store_dword v6, v7, s[{S_WS2}:{S_WS2+3}], s62 offen")

def stream(em, nsteps, b_tt_stride, b_sc1, gate=None, last_optional=None, NBUF=4):
    ids = {}
    def issue_a(s):
        b = BUF + 36 * (s % NBUF)
        em.e(f"s_add_u32 s{T}, s{S_A0}, {s*5120}")
        for j in range(4):
            em.vm(f"buffer_load_dwordx4 v[{b+4*j}:{b+4*j+3}], v2, s[{S_WS2}:{S_WS2+3}], s{T} offen offset:{j*1024}")
        em.e(f"s_add_u32 s{T}, s{T}, 4096")
        return em.vm(f"buffer_load_dwordx4 v[{b+16}:{b+19}], v2, s[{S_WS2}:{S_WS2+3}], s{T} offen")
    def issue_b(s):
        b = BUF + 36 * (s % NBUF) + 20
        for tt in range(4):
            em.e(f"s_add_u32 s{T}, s{S_B0}, {s*1024 + tt*b_tt_stride}")
            last = em.vm(f"buffer_load_dwordx4 v[{b+4*tt}:{b+4*tt+3}], v2, s[{S_WS2}:{S_WS2+3}], s{T} offen{' sc1' if b_sc1 else ''}")
        return last
    npre = min(NBUF, nsteps)
    if gate is None:
        for s in range(npre):
            if s == k1.OPT.get("k2pre", 0): em.e("s_barrier")
            issue_a(s); ids[s] = issue_b(s)
    else:
        gate(em)
        for s in range(npre):
            issue_a(s); ids[s] = issue_b(s)
    for s in range(nsteps):
        if last_optional and s == nsteps - 1:
            em.e(f"s_cmp_eq_u32 s{T+6}, 0\ns_cbranch_scc1 {last_optional}")
        em.wait(vm=ids[s])
        if s == 0: stamp2(em, 5)
        if s == 4: stamp2(em, 6)
        if s == 1: stamp2(em, 10)
        if s == 2: stamp2(em, 11)
        if s == 8: stamp2(em, 12)
        b = BUF + 36 * (s % NBUF)
        for j in range(5):
            for tt in range(4):
                a = ACC + 4 * (4 * j + tt)
                c = "0" if s == 0 else f"v[{a}:{a+3}]"
                em.e(f"v_mfma_f32_16x16x32_bf16 v[{a}:{a+3}], v[{b+4*j}:{b+4*j+3}], v[{b+20+4*tt}:{b+20+4*tt+3}], {c}")
        if s + NBUF < nsteps:
            issue_a(s + NBUF); ids[s + NBUF] = issue_b(s + NBUF)


def softmax_regs(em, R):
    PK = R; P = R + 10; E = R + 30; Tm = R + 50; O = R + 56
    L = T + 8
    em.e(f"s_mov_b32 s{L}, {f32bits(1.4426950408889634)}")
    for i in range(10):
        em.e(f"v_lshlrev_b32 v{P+2*i}, 16, v{PK+i}\nv_and_b32 v{P+2*i+1}, 0xffff0000, v{PK+i}")
    mx, mn, mx2, mn2 = Tm, Tm + 1, Tm + 2, Tm + 3
    em.e(f"""v_max3_f32 v{mx}, v{P}, v{P+1}, v{P+2}
    v_min3_f32 v{mn}, v{P}, v{P+1}, v{P+2}
    v_max3_f32 v{mx2}, v{P+3}, v{P+4}, v{P+5}
    v_min3_f32 v{mn2}, v{P+3}, v{P+4}, v{P+5}""")
    for i in range(6, 18, 4):
        em.e(f"""v_max3_f32 v{mx}, v{mx}, v{P+i}, v{P+i+1}
        v_min3_f32 v{mn}, v{mn}, v{P+i}, v{P+i+1}
        v_max3_f32 v{mx2}, v{mx2}, v{P+i+2}, v{P+i+3}
        v_min3_f32 v{mn2}, v{mn2}, v{P+i+2}, v{P+i+3}""")
    em.e(f"""v_max3_f32 v{mx}, v{mx}, v{P+18}, v{P+19}
    v_min3_f32 v{mn}, v{mn}, v{P+18}, v{P+19}
    v_max_f32 v{mx}, v{mx}, v{mx2}
    v_min_f32 v{mn}, v{mn}, v{mn2}
    v_mul_f32 v{mx}, s{L}, v{mx}
    v_mul_f32 v{mn}, s{L}, v{mn}""")
    for i in range(0, 20, 2):
        em.e(f"""v_fma_f32 v{E+i}, -v{P+i}, s{L}, v{mn}
        v_fma_f32 v{P+i}, v{P+i}, s{L}, -v{mx}
        v_fma_f32 v{E+i+1}, -v{P+i+1}, s{L}, v{mn}
        v_fma_f32 v{P+i+1}, v{P+i+1}, s{L}, -v{mx}
        v_exp_f32 v{E+i}, v{E+i}
        v_exp_f32 v{P+i}, v{P+i}
        v_exp_f32 v{E+i+1}, v{E+i+1}
        v_exp_f32 v{P+i+1}, v{P+i+1}""")
    sp, sn_, sp2, sn2 = Tm, Tm + 1, Tm + 2, Tm + 3
    em.e(f"""v_add_f32 v{sp}, v{P}, v{P+1}
    v_add_f32 v{sn_}, v{E}, v{E+1}
    v_add_f32 v{sp2}, v{P+2}, v{P+3}
    v_add_f32 v{sn2}, v{E+2}, v{E+3}""")
    for i in range(4, 20, 2):
        em.e(f"""v_add_f32 v{sp}, v{sp}, v{P+i}
        v_add_f32 v{sn_}, v{sn_}, v{E+i}
        v_add_f32 v{sp2}, v{sp2}, v{P+i+1}
        v_add_f32 v{sn2}, v{sn2}, v{E+i+1}""")
    em.e(f"""v_add_f32 v{sp}, v{sp}, v{sp2}
    v_add_f32 v{sn_}, v{sn_}, v{sn2}
    v_rcp_f32 v{sp}, v{sp}
    v_rcp_f32 v{sn_}, v{sn_}""")
    for i in range(10):
        em.e(f"""v_mul_f32 v{P+2*i}, v{P+2*i}, v{sp}
        v_mul_f32 v{P+2*i+1}, v{P+2*i+1}, v{sp}
        v_mul_f32 v{E+2*i}, v{E+2*i}, v{sn_}
        v_mul_f32 v{E+2*i+1}, v{E+2*i+1}, v{sn_}
        v_cvt_pk_bf16_f32 v{O+i}, v{P+2*i}, v{P+2*i+1}
        v_cvt_pk_bf16_f32 v{O+10+i}, v{E+2*i}, v{E+2*i+1}""")

def gen_k2():
    em = Em()
    em.raw(".text\n.globl k2_kernel\n.p2align 8\n.type k2_kernel,@function\nk2_kernel:")
    em.e("s_cmp_ge_u32 s2, 256\ns_cbranch_scc1 L_k2_done")
    em.e(f"""
    s_load_dwordx2 s[40:41], s[0:1], 72
    s_load_dwordx2 s[44:45], s[0:1], 88
    v_lshrrev_b32 v1, 6, v0
    v_and_b32 v3, 63, v0
    v_readfirstlane_b32 s{S_WV2}, v1
    v_lshlrev_b32 v2, 4, v3
    s_lshr_b32 s{T+1}, s2, 3
    s_and_b32 s{S_NT}, s{T+1}, 3
    s_and_b32 s{T}, s2, 1
    s_lshl_b32 s{T}, s{T}, 2
    s_add_u32 s{S_NT}, s{S_NT}, s{T}
    s_lshr_b32 s{T+1}, s{T+1}, 2
    s_bfe_u32 s{T}, s2, 0x20001
    s_lshl_b32 s{S_MT}, s{T}, 3
    s_add_u32 s{S_MT}, s{S_MT}, s{T+1}
    s_mul_i32 s{S_A0}, s{S_NT}, {74*5120}
    s_add_u32 s{S_A0}, s{S_A0}, {WDF_OFF}
    """)
    em.wait_lgkm0()
    srd(em, S_OUT, 40, 2048 * 1280)
    srd(em, S_WS2, 44, WS_BYTES)
    CNT = 4 * 20480 + 8192
    stamp2(em, 0)
    em.e(f"s_cmp_ge_u32 s{S_WV2}, 4\ns_cbranch_scc1 L_k2_owave")
    save = (em.vm_n, em.vm_done, em.lds_n, em.lds_done)
    em.e(f"""
    s_mul_i32 s{T}, s{S_WV2}, 14
    s_cmp_eq_u32 s{S_WV2}, 3
    s_cselect_b32 s{T+1}, 1, 0
    s_sub_u32 s{T}, s{T}, s{T+1}
    s_cmp_lt_u32 s{S_WV2}, 2
    s_cselect_b32 s{T+6}, 1, 0
    s_mul_i32 s{T+1}, s{T}, 5120
    s_add_u32 s{S_A0}, s{S_A0}, s{T+1}
    s_mul_i32 s{S_B0}, s{S_MT}, {4*54*1024}
    s_lshl_b32 s{T+1}, s{T}, 10
    s_add_u32 s{S_B0}, s{S_B0}, s{T+1}
    s_add_u32 s{S_B0}, s{S_B0}, {HF_OFF}
    """)
    stream(em, 14, 54 * 1024, False, last_optional="L_k2_final", NBUF=k1.OPT.get("k2nb", 4))
    em.e("s_branch L_k2_final")
    em.label("L_k2_owave")
    em.vm_n, em.vm_done, em.lds_n, em.lds_done = save
    MP = 144
    if k1.OPT.get("k2noo"): em.e("s_barrier\ns_branch L_k2_final")
    if k1.OPT.get("k2prio", 0): em.e("s_setprio 3")
    em.e(f"""
    s_sub_u32 s{S_U}, s{S_WV2}, 4
    s_mul_i32 s{T+2}, s{S_WV2}, 20480
    s_lshl_b32 s{T}, s{S_NT}, 2
    s_add_u32 s{T}, s{T}, s{S_U}
    s_mul_i32 s{T}, s{T}, 3840
    s_add_u32 s{T}, s{T}, {KVP_OFF}
    """)
    KV = 16
    for i in range(4):
        kvl = em.vm(f"buffer_load_dwordx4 v[{KV+4*i}:{KV+4*i+3}], v2, s[{S_WS2}:{S_WS2+3}], s{T} offen offset:{i*1024}")
    em.e(f"""
    s_mul_i32 s{T}, s{S_MT}, {64*1280}
    s_lshl_b32 s{T+1}, s{S_NT}, 2
    s_add_u32 s{T+1}, s{T+1}, s{S_U}
    s_mul_i32 s{T+1}, s{T+1}, 2560
    s_add_u32 s{T}, s{T}, s{T+1}
    s_add_u32 s{T}, s{T}, {PQF_OFF}
    v_mul_u32_u24 v8, 40, v3
    """)
    PF = 176; SMR = 96
    for i in range(5):
        pf_last = em.vm(f"buffer_load_dwordx2 v[{SMR+2*i}:{SMR+2*i+1}], v8, s[{S_WS2}:{S_WS2+3}], s{T} offen offset:{8*i}")
    em.e(f"""
    v_mov_b32 v4, 0
    v_mov_b32 v5, 0
    v_mov_b32 v6, 0
    v_mov_b32 v7, 0
    v_add_u32 v9, s{T+2}, v2
    """)
    for i in range(16):
        em.lds(f"ds_write_b128 v9, v[4:7] offset:{i*1024}")
    if k1.OPT.get("k2bar", 1) == 0: em.e("s_barrier")
    em.e(f"s_mov_b32 s{T+4}, s{T+2}")
    for i in range(4):
        em.e(f"""
        v_add_u32 v9, {64*i}, v3
        v_mul_u32_u24 v10, 6554, v9
        v_lshrrev_b32 v10, 16, v10
        v_mul_u32_u24 v11, 10, v10
        v_sub_u32 v11, v9, v11
        v_mul_u32_u24 v12, {MP}, v10
        v_lshl_add_u32 v12, v11, 3, v12
        v_add_u32 v{40+i}, s{T+4}, v12
        """)
        if i == 3:
            em.e(f"""
            v_lshlrev_b32 v12, 3, v11
            v_add_u32 v44, s{T+4}, v12
            v_cmp_eq_u32 s[46:47], 20, v10
            v_cmp_gt_u32 s[48:49], 20, v10
            """)
    em.e(f"""
    v_and_b32 v9, 15, v3
    v_lshrrev_b32 v10, 4, v3
    v_mul_u32_u24 v11, {MP}, v9
    v_lshl_add_u32 v11, v10, 4, v11
    v_add_u32 v11, s{T+2}, v11
    s_mul_i32 s{T}, s{S_NT}, 20
    s_mul_i32 s{T+1}, s{S_U}, 5
    s_add_u32 s{T}, s{T}, s{T+1}
    v_add_u32 v12, s{T}, v10
    v_add_u32 v13, 4, v12
    v_lshrrev_b32 v14, 1, v12
    v_lshlrev_b32 v14, 8, v14
    v_and_b32 v12, 1, v12
    v_lshl_add_u32 v12, v12, 3, v14
    v_lshl_add_u32 v12, v9, 4, v12
    v_lshrrev_b32 v14, 1, v13
    v_lshlrev_b32 v14, 8, v14
    v_and_b32 v13, 1, v13
    v_lshl_add_u32 v13, v13, 3, v14
    v_lshl_add_u32 v13, v9, 4, v13
    v_mov_b32 v14, 0x80000000
    v_cmp_eq_u32 vcc, 0, v10
    s_mul_i32 s{T}, s{S_MT}, {4*20480}
    s_add_u32 s{T}, s{T}, {OF_OFF}
    v_cndmask_b32 v13, v14, v13, vcc
    """)
    em.wait(vm=kvl)
    if k1.OPT.get("k2bar", 1) == 1:
        em.wait(vm=pf_last); em.e("s_barrier")
    stamp2(em, 1)
    for i in range(4):
        r = KV + 4 * i
        em.e(f"v_cvt_pk_bf16_f32 v{r}, v{r}, v{r+1}\nv_cvt_pk_bf16_f32 v{r+1}, v{r+2}, v{r+3}")
    for i in range(3):
        r = KV + 4 * i
        em.lds(f"ds_write_b64 v{40+i}, v[{r}:{r+1}]")
    r = KV + 12
    em.e("s_mov_b64 s[50:51], exec\ns_mov_b64 exec, s[48:49]")
    em.lds(f"ds_write_b64 v43, v[{r}:{r+1}]")
    em.e("s_mov_b64 exec, s[46:47]")
    for d in range(16):
        em.lds(f"ds_write_b64 v44, v[{r}:{r+1}] offset:{(32 + d)*MP}")
    em.e("s_mov_b64 exec, s[50:51]")
    em.wait_lgkm0()
    AF = 48
    for t in range(3):
        for s in range(2):
            r = AF + 4 * (2 * t + s)
            em.lds(f"ds_read_b128 v[{r}:{r+3}], v11 offset:{16*t*MP + 64*s}")
    em.wait(vm=pf_last)
    softmax_regs(em, SMR)
    O = SMR + 56
    PHB = 48 * MP
    em.e(f"v_mul_u32_u24 v8, {MP}, v3\nv_add_u32 v8, s{T+2}, v8")
    for c in range(5):
        em.lds(f"ds_write_b128 v8, v[{O+4*c}:{O+4*c+3}] offset:{PHB + 16*c}")
    em.wait_lgkm0()
    for tt in range(4):
        for s_ in range(2):
            r = PF + 4 * (2 * tt + s_)
            em.lds(f"ds_read_b128 v[{r}:{r+3}], v11 offset:{PHB + 16*tt*MP + 64*s_}")
    em.wait_lgkm0()
    stamp2(em, 2)
    OA = 72
    for tt in range(4):
        for t in range(3):
            for s in range(2):
                a = OA + 12 * tt + 4 * t
                c = "0" if s == 0 else f"v[{a}:{a+3}]"
                r = AF + 4 * (2 * t + s); p = PF + 4 * (2 * tt + s)
                em.e(f"v_mfma_f32_16x16x32_bf16 v[{a}:{a+3}], v[{r}:{r+3}], v[{p}:{p+3}], {c}")
    for tt in range(4):
        de = OA + 12 * tt + 8
        em.e(f"""
        v_cvt_pk_bf16_f32 v6, v{de}, v{de}
        v_lshlrev_b32 v6, 16, v6
        v_add_f32 v6, {f32bits(1e-6)}, v6
        v_cvt_pk_bf16_f32 v6, v6, v6
        v_lshlrev_b32 v6, 16, v6
        v_rcp_f32 v6, v6
        """)
        for t in range(2):
            nu = OA + 12 * tt + 4 * t
            em.e(f"""
            v_cvt_pk_bf16_f32 v4, v{nu}, v{nu+1}
            v_cvt_pk_bf16_f32 v5, v{nu+2}, v{nu+3}
            v_lshlrev_b32 v{nu}, 16, v4
            v_and_b32 v{nu+1}, 0xffff0000, v4
            v_lshlrev_b32 v{nu+2}, 16, v5
            v_and_b32 v{nu+3}, 0xffff0000, v5
            v_mul_f32 v{nu}, v{nu}, v6
            v_mul_f32 v{nu+1}, v{nu+1}, v6
            v_mul_f32 v{nu+2}, v{nu+2}, v6
            v_mul_f32 v{nu+3}, v{nu+3}, v6
            v_cvt_pk_bf16_f32 v{nu}, v{nu}, v{nu+1}
            v_cvt_pk_bf16_f32 v{nu+1}, v{nu+2}, v{nu+3}
            """)
            em.vm(f"buffer_store_dwordx2 v[{nu}:{nu+1}], v{12 + t}, s[{S_WS2}:{S_WS2+3}], s{T} offen sc1")
        em.e(f"s_add_u32 s{T}, s{T}, 20480")
    em.e(f"""
    s_mul_i32 s{T}, s{S_U}, {5*5120}
    s_add_u32 s{S_A0}, s{S_A0}, s{T}
    s_add_u32 s{S_A0}, s{S_A0}, {54*5120}
    s_mul_i32 s{S_B0}, s{S_MT}, {4*20480}
    s_mul_i32 s{T}, s{S_U}, {5*1024}
    s_add_u32 s{S_B0}, s{S_B0}, s{T}
    s_add_u32 s{S_B0}, s{S_B0}, {OF_OFF}
    """)
    if k1.OPT.get("k2bar", 1) == 2: em.e("s_barrier")
    stamp2(em, 3)
    BB = 96; AA = 176
    def issue_a(s):
        b = AA + 20 * (s % 4)
        em.e(f"s_add_u32 s{T}, s{S_A0}, {s*5120}")
        for j in range(4):
            em.vm(f"buffer_load_dwordx4 v[{b+4*j}:{b+4*j+3}], v2, s[{S_WS2}:{S_WS2+3}], s{T} offen offset:{j*1024}")
        em.e(f"s_add_u32 s{T}, s{T}, 4096")
        return em.vm(f"buffer_load_dwordx4 v[{b+16}:{b+19}], v2, s[{S_WS2}:{S_WS2+3}], s{T} offen")
    em.e("s_nop 1")
    if k1.OPT.get("k2prio", 0) == 2: em.e("s_setprio 0")
    issue_a(0); issue_a(1); issue_a(2); issue_a(3)
    em.label("L_k2_prepoll")
    em.e(f"s_add_u32 s{T}, s{S_B0}, {3*20480}")
    for s in range(4):
        r = BB + 16 * s + 12
        em.e(f"buffer_load_dwordx4 v[{r}:{r+3}], v2, s[{S_WS2}:{S_WS2+3}], s{T} offen offset:{s*1024} sc1")
    em.e(f"s_add_u32 s{T}, s{T}, 4096")
    em.e(f"buffer_load_dwordx4 v[{BB+76}:{BB+79}], v2, s[{S_WS2}:{S_WS2+3}], s{T} offen sc1")
    em.e("s_waitcnt vmcnt(0)")
    em.e(f"v_max_u32 v4, v{BB+12}, v{BB+14}")
    for s in range(1, 5):
        em.e(f"v_max3_u32 v4, v4, v{BB+16*s+12}, v{BB+16*s+14}")
    em.e(f"""
    v_cmp_eq_u32 vcc, -1, v4
    s_nop 1
    s_cmp_eq_u64 vcc, 0
    s_cbranch_scc1 L_k2_poll
    s_sleep {k1.OPT.get("k2sleep", 8)}
    s_branch L_k2_prepoll
    """)
    def bulk(flag, tts):
        for tt in tts:
            em.e(f"s_add_u32 s{T}, s{S_B0}, {tt*20480}")
            for s in range(4):
                r = BB + 16 * s + 4 * tt
                em.e(f"buffer_load_dwordx4 v[{r}:{r+3}], v2, s[{S_WS2}:{S_WS2+3}], s{T} offen offset:{s*1024}{flag}")
            r = BB + 64 + 4 * tt
            em.e(f"s_add_u32 s{T}, s{T}, 4096")
            em.e(f"buffer_load_dwordx4 v[{r}:{r+3}], v2, s[{S_WS2}:{S_WS2+3}], s{T} offen{flag}")
        em.e("s_waitcnt vmcnt(0)")
        em.vm_done = em.vm_n
        em.e(f"v_max_u32 v4, v{BB}, v{BB+2}\nv_max_u32 v5, v{BB+4}, v{BB+6}")
        for k in range(2, 20, 2):
            em.e(f"v_max3_u32 v4, v4, v{BB+4*k}, v{BB+4*k+2}\nv_max3_u32 v5, v5, v{BB+4*k+4}, v{BB+4*k+6}")
        em.e("""
        v_max_u32 v4, v4, v5
        v_cmp_eq_u32 vcc, -1, v4
        s_nop 1
        s_cmp_eq_u64 vcc, 0
        s_cbranch_scc1 L_k2_go
        """)
    em.label("L_k2_poll")
    bulk("", [0, 1, 2])
    em.label("L_k2_poll2")
    bulk(" sc1", [0, 1, 2])
    em.e("s_sleep 2\ns_branch L_k2_poll2")
    em.label("L_k2_go")
    stamp2(em, 4)
    aid = {}
    for s in range(5):
        if s in aid: em.wait(vm=aid[s])
        b = AA + 20 * (s % 4)
        for j in range(5):
            for tt in range(4):
                a = ACC + 4 * (4 * j + tt)
                c = "0" if s == 0 else f"v[{a}:{a+3}]"
                r = BB + 16 * s + 4 * tt
                em.e(f"v_mfma_f32_16x16x32_bf16 v[{a}:{a+3}], v[{b+4*j}:{b+4*j+3}], v[{r}:{r+3}], {c}")
        if s == 0: aid[4] = issue_a(4)
    em.label("L_k2_final")
    em.e("s_nop 7\ns_nop 7")
    em.e("s_waitcnt vmcnt(0)")
    em.lds_done = em.lds_n; em.vm_done = em.vm_n
    stamp2(em, 7)
    em.e(f"s_mul_i32 s{T}, s{S_WV2}, 20480\nv_add_u32 v8, s{T}, v2")
    for k in range(20):
        em.lds(f"ds_write_b128 v8, v[{ACC+4*k}:{ACC+4*k+3}] offset:{k*1024}")
    em.e(f"""
    v_and_b32 v9, 15, v3
    v_lshrrev_b32 v10, 4, v3
    s_and_b32 s{T+7}, s{S_WV2}, 3
    s_lshl_b32 s{T}, s{S_MT}, 6
    s_lshl_b32 s{T+1}, s{T+7}, 4
    s_add_u32 s{T}, s{T}, s{T+1}
    v_add_u32 v11, s{T}, v9
    v_lshlrev_b32 v12, 2, v11
    s_mov_b32 s{T+2}, {G_OFF}
    """)
    gl = em.vm(f"buffer_load_dword v13, v12, s[{S_WS2}:{S_WS2+3}], s{T+2} offen")
    em.wait_lgkm0()
    em.e("s_barrier")
    stamp2(em, 8)
    em.e(f"""
    s_lshl_b32 s{T+1}, s{T+7}, 10
    s_cmp_ge_u32 s{S_WV2}, 4
    s_cselect_b32 s{T+3}, {3*4096}, 0
    s_cselect_b32 s{T+5}, 96, 0
    s_add_u32 s{T+1}, s{T+1}, s{T+3}
    v_add_u32 v8, s{T+1}, v2
    v_add_u32 v14, 61440, v8
    v_add_u32 v15, 122880, v8
    s_movk_i32 s{T+3}, 1280
    v_mul_lo_u32 v11, v11, s{T+3}
    v_lshl_add_u32 v11, v10, 3, v11
    s_mul_i32 s{T+4}, s{S_NT}, 160
    s_add_u32 s{T+4}, s{T+4}, s{T+5}
    """)
    R0 = 16
    ids = []
    for j in range(3):
        for p in range(8):
            r = R0 + 32 * j + 4 * p
            ids.append(em.lds(f"ds_read_b128 v[{r}:{r+3}], v{[8,14,15][p//3]} offset:{(p%3)*20480 + (j*4096 if j < 2 else 0)}") if j < 2 else None)
        if j == 0:
            em.wait(vm=gl)
            em.e(f"""
            v_sub_f32 v12, 1.0, v13
            v_cvt_pk_bf16_f32 v12, v12, v12
            v_lshlrev_b32 v12, 16, v12
            """)
    def fin(j, lastid):
        em.wait(lds=lastid)
        r = R0 + 32 * j
        for i in range(4):
            em.e(f"""
            v_add_f32 v{r+i}, v{r+i}, v{r+4+i}
            v_add_f32 v{r+8+i}, v{r+8+i}, v{r+12+i}
            v_add_f32 v{r+16+i}, v{r+16+i}, v{r+20+i}
            v_add_f32 v{r+24+i}, v{r+24+i}, v{r+28+i}
            """)
        for i in range(4):
            em.e(f"v_add_f32 v{r+i}, v{r+i}, v{r+8+i}\nv_add_f32 v{r+24+i}, v{r+24+i}, v{r+16+i}")
        for h in range(2):
            b0, a0 = r + 2 * h, r + 24 + 2 * h
            em.e(f"""
            v_cvt_pk_bf16_f32 v4, v{b0}, v{b0+1}
            v_cvt_pk_bf16_f32 v5, v{a0}, v{a0+1}
            v_lshlrev_b32 v{b0}, 16, v4
            v_and_b32 v{b0+1}, 0xffff0000, v4
            v_lshlrev_b32 v{a0}, 16, v5
            v_and_b32 v{a0+1}, 0xffff0000, v5
            v_mul_f32 v{b0}, v{b0}, v12
            v_mul_f32 v{b0+1}, v{b0+1}, v12
            v_mul_f32 v{a0}, v{a0}, v13
            v_mul_f32 v{a0+1}, v{a0+1}, v13
            v_cvt_pk_bf16_f32 v4, v{b0}, v{b0+1}
            v_cvt_pk_bf16_f32 v5, v{a0}, v{a0+1}
            v_lshlrev_b32 v{b0}, 16, v4
            v_and_b32 v{b0+1}, 0xffff0000, v4
            v_lshlrev_b32 v{a0}, 16, v5
            v_and_b32 v{a0+1}, 0xffff0000, v5
            v_add_f32 v{b0}, v{b0}, v{a0}
            v_add_f32 v{b0+1}, v{b0+1}, v{a0+1}
            v_cvt_pk_bf16_f32 v{r+4+h}, v{b0}, v{b0+1}
            """)
        em.vm(f"buffer_store_dwordx2 v[{r+4}:{r+5}], v11, s[{S_OUT}:{S_OUT+3}], s{T+4} offen offset:{j*32}")
    fin(0, ids[7]); fin(1, ids[15])
    em.e(f"s_cmp_ge_u32 s{S_WV2}, 4\ns_cbranch_scc1 L_k2_done")
    for p in range(8):
        r = R0 + 64 + 4 * p
        last = em.lds(f"ds_read_b128 v[{r}:{r+3}], v{[8,14,15][p//3]} offset:{(p%3)*20480 + 2*4096}")
    fin(2, last)
    stamp2(em, 9)
    if k1.OPT.get("dbgout"):
        em.e(f"""
        s_cmp_lg_u32 s2, 0
        s_cbranch_scc1 L_k2_done
        s_cmp_lg_u32 s{S_WV2}, 0
        s_cbranch_scc1 L_k2_done
        s_load_dwordx2 s[46:47], s[0:1], 80
        s_waitcnt vmcnt(0) lgkmcnt(0)
        s_mov_b32 s48, s46
        s_mov_b32 s49, s47
        s_mov_b32 s50, 256
        s_mov_b32 s51, 0x00020000
        v_and_b32 v4, 3, v3
        v_mul_u32_u24 v4, {72*512}, v4
        v_bfe_u32 v5, v3, 2, 1
        v_mul_u32_u24 v5, 40, v5
        v_add_u32 v4, v4, v5
        v_add_u32 v4, {0x1480000}, v4
        v_bfe_u32 v5, v3, 3, 1
        v_cmp_eq_u32 vcc, 1, v5
        v_bfe_u32 v6, v3, 2, 1
        v_mul_u32_u24 v6, 36, v6
        v_add_u32 v6, {0x14A0000}, v6
        v_cndmask_b32 v4, v4, v6, vcc
        buffer_load_dword v7, v4, s[{S_WS2}:{S_WS2+3}], 0 offen sc1
        v_lshlrev_b32 v5, 2, v3
        s_waitcnt vmcnt(0)
        buffer_store_dword v7, v5, s[48:51], 0 offen
        """)
    em.label("L_k2_done")
    em.e("s_endpgm")
    return em.finish(), em
```

```python
from asmlib import *
import k1v2 as k1
from k1v2 import HF_OFF, PQF_OFF, WDF_OFF, OF_OFF, KVP_OFF, G_OFF, FLAG_OFF, WS_BYTES, f32bits, srd

S_WS2 = 4; S_OUT = 8
S_WV2 = 16; S_MT = 17; S_NT = 18; S_A0 = 19; S_B0 = 20; S_U = 21
T = 24
ACC = 16
BUF = 96
NBUF = 4

def stamp2(em, k):
    if not k1.OPT['stamps']: return
    em.e(f"s_memrealtime s[60:61]" if (k1.OPT.get("rt") and k in (0, 9)) else f"s_memtime s[60:61]")
    em.e("s_waitcnt lgkmcnt(0)"); em.lds_done = em.lds_n
    em.e(f"""
    s_lshl_b32 s62, s2, 9
    s_lshl_b32 s63, s{S_WV2}, 6
    s_add_u32 s62, s62, s63
    s_add_u32 s62, s62, {0x14A0000 + 4*k}
    v_mov_b32 v6, s60
    v_mov_b32 v7, 0
    """)
    em.vm(f"buffer_store_dword v6, v7, s[{S_WS2}:{S_WS2+3}], s62 offen")

def stream(em, nsteps, b_tt_stride, b_sc1, gate=None, last_optional=None, NBUF=4):
    ids = {}
    def issue_a(s):
        b = BUF + 36 * (s % NBUF)
        em.e(f"s_add_u32 s{T}, s{S_A0}, {s*5120}")
        for j in range(4):
            em.vm(f"buffer_load_dwordx4 v[{b+4*j}:{b+4*j+3}], v2, s[{S_WS2}:{S_WS2+3}], s{T} offen offset:{j*1024}")
        em.e(f"s_add_u32 s{T}, s{T}, 4096")
        return em.vm(f"buffer_load_dwordx4 v[{b+16}:{b+19}], v2, s[{S_WS2}:{S_WS2+3}], s{T} offen")
    def issue_b(s):
        b = BUF + 36 * (s % NBUF) + 20
        for tt in range(4):
            em.e(f"s_add_u32 s{T}, s{S_B0}, {s*1024 + tt*b_tt_stride}")
            last = em.vm(f"buffer_load_dwordx4 v[{b+4*tt}:{b+4*tt+3}], v2, s[{S_WS2}:{S_WS2+3}], s{T} offen{' sc1' if b_sc1 else ''}")
        return last
    npre = min(NBUF, nsteps)
    if gate is None:
        for s in range(npre):
            if s == k1.OPT.get("k2pre", 0): em.e("s_barrier")
            issue_a(s); ids[s] = issue_b(s)
    else:
        gate(em)
        for s in range(npre):
            issue_a(s); ids[s] = issue_b(s)
    for s in range(nsteps):
        if last_optional and s == nsteps - 1:
            em.e(f"s_cmp_eq_u32 s{T+6}, 0\ns_cbranch_scc1 {last_optional}")
        em.wait(vm=ids[s])
        if s == 0: stamp2(em, 5)
        if s == 4: stamp2(em, 6)
        if s == 1: stamp2(em, 10)
        if s == 2: stamp2(em, 11)
        if s == 8: stamp2(em, 12)
        b = BUF + 36 * (s % NBUF)
        for j in range(5):
            for tt in range(4):
                a = ACC + 4 * (4 * j + tt)
                c = "0" if s == 0 else f"v[{a}:{a+3}]"
                em.e(f"v_mfma_f32_16x16x32_bf16 v[{a}:{a+3}], v[{b+4*j}:{b+4*j+3}], v[{b+20+4*tt}:{b+20+4*tt+3}], {c}")
        if s + NBUF < nsteps:
            issue_a(s + NBUF); ids[s + NBUF] = issue_b(s + NBUF)


def softmax_regs(em, R):
    PK = R; P = R + 10; E = R + 30; Tm = R + 50; O = R + 56
    L = T + 8
    em.e(f"s_mov_b32 s{L}, {f32bits(1.4426950408889634)}")
    for i in range(10):
        em.e(f"v_lshlrev_b32 v{P+2*i}, 16, v{PK+i}\nv_and_b32 v{P+2*i+1}, 0xffff0000, v{PK+i}")
    mx, mn, mx2, mn2 = Tm, Tm + 1, Tm + 2, Tm + 3
    em.e(f"""v_max3_f32 v{mx}, v{P}, v{P+1}, v{P+2}
    v_min3_f32 v{mn}, v{P}, v{P+1}, v{P+2}
    v_max3_f32 v{mx2}, v{P+3}, v{P+4}, v{P+5}
    v_min3_f32 v{mn2}, v{P+3}, v{P+4}, v{P+5}""")
    for i in range(6, 18, 4):
        em.e(f"""v_max3_f32 v{mx}, v{mx}, v{P+i}, v{P+i+1}
        v_min3_f32 v{mn}, v{mn}, v{P+i}, v{P+i+1}
        v_max3_f32 v{mx2}, v{mx2}, v{P+i+2}, v{P+i+3}
        v_min3_f32 v{mn2}, v{mn2}, v{P+i+2}, v{P+i+3}""")
    em.e(f"""v_max3_f32 v{mx}, v{mx}, v{P+18}, v{P+19}
    v_min3_f32 v{mn}, v{mn}, v{P+18}, v{P+19}
    v_max_f32 v{mx}, v{mx}, v{mx2}
    v_min_f32 v{mn}, v{mn}, v{mn2}
    v_mul_f32 v{mx}, s{L}, v{mx}
    v_mul_f32 v{mn}, s{L}, v{mn}""")
    for i in range(0, 20, 2):
        em.e(f"""v_fma_f32 v{E+i}, -v{P+i}, s{L}, v{mn}
        v_fma_f32 v{P+i}, v{P+i}, s{L}, -v{mx}
        v_fma_f32 v{E+i+1}, -v{P+i+1}, s{L}, v{mn}
        v_fma_f32 v{P+i+1}, v{P+i+1}, s{L}, -v{mx}
        v_exp_f32 v{E+i}, v{E+i}
        v_exp_f32 v{P+i}, v{P+i}
        v_exp_f32 v{E+i+1}, v{E+i+1}
        v_exp_f32 v{P+i+1}, v{P+i+1}""")
    sp, sn_, sp2, sn2 = Tm, Tm + 1, Tm + 2, Tm + 3
    em.e(f"""v_add_f32 v{sp}, v{P}, v{P+1}
    v_add_f32 v{sn_}, v{E}, v{E+1}
    v_add_f32 v{sp2}, v{P+2}, v{P+3}
    v_add_f32 v{sn2}, v{E+2}, v{E+3}""")
    for i in range(4, 20, 2):
        em.e(f"""v_add_f32 v{sp}, v{sp}, v{P+i}
        v_add_f32 v{sn_}, v{sn_}, v{E+i}
        v_add_f32 v{sp2}, v{sp2}, v{P+i+1}
        v_add_f32 v{sn2}, v{sn2}, v{E+i+1}""")
    em.e(f"""v_add_f32 v{sp}, v{sp}, v{sp2}
    v_add_f32 v{sn_}, v{sn_}, v{sn2}
    v_rcp_f32 v{sp}, v{sp}
    v_rcp_f32 v{sn_}, v{sn_}""")
    for i in range(10):
        em.e(f"""v_mul_f32 v{P+2*i}, v{P+2*i}, v{sp}
        v_mul_f32 v{P+2*i+1}, v{P+2*i+1}, v{sp}
        v_mul_f32 v{E+2*i}, v{E+2*i}, v{sn_}
        v_mul_f32 v{E+2*i+1}, v{E+2*i+1}, v{sn_}
        v_cvt_pk_bf16_f32 v{O+i}, v{P+2*i}, v{P+2*i+1}
        v_cvt_pk_bf16_f32 v{O+10+i}, v{E+2*i}, v{E+2*i+1}""")

def gen_k2():
    em = Em()
    em.raw(".text\n.globl k2_kernel\n.p2align 8\n.type k2_kernel,@function\nk2_kernel:")
    em.e("s_cmp_ge_u32 s2, 256\ns_cbranch_scc1 L_k2_done")
    em.e(f"""
    s_load_dwordx2 s[40:41], s[0:1], 72
    s_load_dwordx2 s[44:45], s[0:1], 88
    v_lshrrev_b32 v1, 6, v0
    v_and_b32 v3, 63, v0
    v_readfirstlane_b32 s{S_WV2}, v1
    v_lshlrev_b32 v2, 4, v3
    s_lshr_b32 s{T+1}, s2, 3
    s_and_b32 s{S_NT}, s{T+1}, 3
    s_and_b32 s{T}, s2, 1
    s_lshl_b32 s{T}, s{T}, 2
    s_add_u32 s{S_NT}, s{S_NT}, s{T}
    s_lshr_b32 s{T+1}, s{T+1}, 2
    s_bfe_u32 s{T}, s2, 0x20001
    s_lshl_b32 s{S_MT}, s{T}, 3
    s_add_u32 s{S_MT}, s{S_MT}, s{T+1}
    s_mul_i32 s{S_A0}, s{S_NT}, {74*5120}
    s_add_u32 s{S_A0}, s{S_A0}, {WDF_OFF}
    """)
    em.wait_lgkm0()
    srd(em, S_OUT, 40, 2048 * 1280)
    srd(em, S_WS2, 44, WS_BYTES)
    CNT = 4 * 20480 + 8192
    stamp2(em, 0)
    em.e(f"s_cmp_ge_u32 s{S_WV2}, 4\ns_cbranch_scc1 L_k2_owave")
    save = (em.vm_n, em.vm_done, em.lds_n, em.lds_done)
    em.e(f"""
    s_mul_i32 s{T}, s{S_WV2}, 14
    s_cmp_eq_u32 s{S_WV2}, 3
    s_cselect_b32 s{T+1}, 1, 0
    s_sub_u32 s{T}, s{T}, s{T+1}
    s_cmp_lt_u32 s{S_WV2}, 2
    s_cselect_b32 s{T+6}, 1, 0
    s_mul_i32 s{T+1}, s{T}, 5120
    s_add_u32 s{S_A0}, s{S_A0}, s{T+1}
    s_mul_i32 s{S_B0}, s{S_MT}, {4*54*1024}
    s_lshl_b32 s{T+1}, s{T}, 10
    s_add_u32 s{S_B0}, s{S_B0}, s{T+1}
    s_add_u32 s{S_B0}, s{S_B0}, {HF_OFF}
    """)
    stream(em, 14, 54 * 1024, False, last_optional="L_k2_final", NBUF=k1.OPT.get("k2nb", 4))
    em.e("s_branch L_k2_final")
    em.label("L_k2_owave")
    em.vm_n, em.vm_done, em.lds_n, em.lds_done = save
    MP = 144
    if k1.OPT.get("k2noo"): em.e("s_barrier\ns_branch L_k2_final")
    if k1.OPT.get("k2prio", 0): em.e("s_setprio 3")
    em.e(f"""
    s_sub_u32 s{S_U}, s{S_WV2}, 4
    s_mul_i32 s{T+2}, s{S_WV2}, 20480
    s_lshl_b32 s{T}, s{S_NT}, 2
    s_add_u32 s{T}, s{T}, s{S_U}
    s_mul_i32 s{T}, s{T}, 3840
    s_add_u32 s{T}, s{T}, {KVP_OFF}
    """)
    KV = 16
    for i in range(4):
        kvl = em.vm(f"buffer_load_dwordx4 v[{KV+4*i}:{KV+4*i+3}], v2, s[{S_WS2}:{S_WS2+3}], s{T} offen offset:{i*1024}")
    em.e(f"""
    s_mul_i32 s{T}, s{S_MT}, {64*1280}
    s_lshl_b32 s{T+1}, s{S_NT}, 2
    s_add_u32 s{T+1}, s{T+1}, s{S_U}
    s_mul_i32 s{T+1}, s{T+1}, 2560
    s_add_u32 s{T}, s{T}, s{T+1}
    s_add_u32 s{T}, s{T}, {PQF_OFF}
    v_mul_u32_u24 v8, 40, v3
    """)
    PF = 176; SMR = 96
    for i in range(5):
        pf_last = em.vm(f"buffer_load_dwordx2 v[{SMR+2*i}:{SMR+2*i+1}], v8, s[{S_WS2}:{S_WS2+3}], s{T} offen offset:{8*i}")
    em.e(f"""
    v_mov_b32 v4, 0
    v_mov_b32 v5, 0
    v_mov_b32 v6, 0
    v_mov_b32 v7, 0
    v_add_u32 v9, s{T+2}, v2
    """)
    for i in range(16):
        em.lds(f"ds_write_b128 v9, v[4:7] offset:{i*1024}")
    if k1.OPT.get("k2bar", 1) == 0: em.e("s_barrier")
    em.e(f"s_mov_b32 s{T+4}, s{T+2}")
    for i in range(4):
        em.e(f"""
        v_add_u32 v9, {64*i}, v3
        v_mul_u32_u24 v10, 6554, v9
        v_lshrrev_b32 v10, 16, v10
        v_mul_u32_u24 v11, 10, v10
        v_sub_u32 v11, v9, v11
        v_mul_u32_u24 v12, {MP}, v10
        v_lshl_add_u32 v12, v11, 3, v12
        v_add_u32 v{40+i}, s{T+4}, v12
        """)
        if i == 3:
            em.e(f"""
            v_lshlrev_b32 v12, 3, v11
            v_add_u32 v44, s{T+4}, v12
            v_cmp_eq_u32 s[46:47], 20, v10
            v_cmp_gt_u32 s[48:49], 20, v10
            """)
    em.e(f"""
    v_and_b32 v9, 15, v3
    v_lshrrev_b32 v10, 4, v3
    v_mul_u32_u24 v11, {MP}, v9
    v_lshl_add_u32 v11, v10, 4, v11
    v_add_u32 v11, s{T+2}, v11
    s_mul_i32 s{T}, s{S_NT}, 20
    s_mul_i32 s{T+1}, s{S_U}, 5
    s_add_u32 s{T}, s{T}, s{T+1}
    v_add_u32 v12, s{T}, v10
    v_add_u32 v13, 4, v12
    v_lshrrev_b32 v14, 1, v12
    v_lshlrev_b32 v14, 8, v14
    v_and_b32 v12, 1, v12
    v_lshl_add_u32 v12, v12, 3, v14
    v_lshl_add_u32 v12, v9, 4, v12
    v_lshrrev_b32 v14, 1, v13
    v_lshlrev_b32 v14, 8, v14
    v_and_b32 v13, 1, v13
    v_lshl_add_u32 v13, v13, 3, v14
    v_lshl_add_u32 v13, v9, 4, v13
    v_mov_b32 v14, 0x80000000
    v_cmp_eq_u32 vcc, 0, v10
    s_mul_i32 s{T}, s{S_MT}, {4*20480}
    s_add_u32 s{T}, s{T}, {OF_OFF}
    v_cndmask_b32 v13, v14, v13, vcc
    """)
    em.wait(vm=kvl)
    if k1.OPT.get("k2bar", 1) == 1:
        em.wait(vm=pf_last); em.e("s_barrier")
    stamp2(em, 1)
    for i in range(4):
        r = KV + 4 * i
        em.e(f"v_cvt_pk_bf16_f32 v{r}, v{r}, v{r+1}\nv_cvt_pk_bf16_f32 v{r+1}, v{r+2}, v{r+3}")
    for i in range(3):
        r = KV + 4 * i
        em.lds(f"ds_write_b64 v{40+i}, v[{r}:{r+1}]")
    r = KV + 12
    em.e("s_mov_b64 s[50:51], exec\ns_mov_b64 exec, s[48:49]")
    em.lds(f"ds_write_b64 v43, v[{r}:{r+1}]")
    em.e("s_mov_b64 exec, s[46:47]")
    for d in range(16):
        em.lds(f"ds_write_b64 v44, v[{r}:{r+1}] offset:{(32 + d)*MP}")
    em.e("s_mov_b64 exec, s[50:51]")
    em.wait_lgkm0()
    AF = 48
    for t in range(3):
        for s in range(2):
            r = AF + 4 * (2 * t + s)
            em.lds(f"ds_read_b128 v[{r}:{r+3}], v11 offset:{16*t*MP + 64*s}")
    em.wait(vm=pf_last)
    softmax_regs(em, SMR)
    O = SMR + 56
    PHB = 48 * MP
    em.e(f"v_mul_u32_u24 v8, {MP}, v3\nv_add_u32 v8, s{T+2}, v8")
    for c in range(5):
        em.lds(f"ds_write_b128 v8, v[{O+4*c}:{O+4*c+3}] offset:{PHB + 16*c}")
    em.wait_lgkm0()
    for tt in range(4):
        for s_ in range(2):
            r = PF + 4 * (2 * tt + s_)
            em.lds(f"ds_read_b128 v[{r}:{r+3}], v11 offset:{PHB + 16*tt*MP + 64*s_}")
    em.wait_lgkm0()
    stamp2(em, 2)
    OA = 72
    for tt in range(4):
        for t in range(3):
            for s in range(2):
                a = OA + 12 * tt + 4 * t
                c = "0" if s == 0 else f"v[{a}:{a+3}]"
                r = AF + 4 * (2 * t + s); p = PF + 4 * (2 * tt + s)
                em.e(f"v_mfma_f32_16x16x32_bf16 v[{a}:{a+3}], v[{r}:{r+3}], v[{p}:{p+3}], {c}")
    for tt in range(4):
        de = OA + 12 * tt + 8
        em.e(f"""
        v_cvt_pk_bf16_f32 v6, v{de}, v{de}
        v_lshlrev_b32 v6, 16, v6
        v_add_f32 v6, {f32bits(1e-6)}, v6
        v_cvt_pk_bf16_f32 v6, v6, v6
        v_lshlrev_b32 v6, 16, v6
        v_rcp_f32 v6, v6
        """)
        for t in range(2):
            nu = OA + 12 * tt + 4 * t
            em.e(f"""
            v_cvt_pk_bf16_f32 v4, v{nu}, v{nu+1}
            v_cvt_pk_bf16_f32 v5, v{nu+2}, v{nu+3}
            v_lshlrev_b32 v{nu}, 16, v4
            v_and_b32 v{nu+1}, 0xffff0000, v4
            v_lshlrev_b32 v{nu+2}, 16, v5
            v_and_b32 v{nu+3}, 0xffff0000, v5
            v_mul_f32 v{nu}, v{nu}, v6
            v_mul_f32 v{nu+1}, v{nu+1}, v6
            v_mul_f32 v{nu+2}, v{nu+2}, v6
            v_mul_f32 v{nu+3}, v{nu+3}, v6
            v_cvt_pk_bf16_f32 v{nu}, v{nu}, v{nu+1}
            v_cvt_pk_bf16_f32 v{nu+1}, v{nu+2}, v{nu+3}
            """)
            em.vm(f"buffer_store_dwordx2 v[{nu}:{nu+1}], v{12 + t}, s[{S_WS2}:{S_WS2+3}], s{T} offen sc1")
        em.e(f"s_add_u32 s{T}, s{T}, 20480")
    em.e(f"""
    s_mul_i32 s{T}, s{S_U}, {5*5120}
    s_add_u32 s{S_A0}, s{S_A0}, s{T}
    s_add_u32 s{S_A0}, s{S_A0}, {54*5120}
    s_mul_i32 s{S_B0}, s{S_MT}, {4*20480}
    s_mul_i32 s{T}, s{S_U}, {5*1024}
    s_add_u32 s{S_B0}, s{S_B0}, s{T}
    s_add_u32 s{S_B0}, s{S_B0}, {OF_OFF}
    """)
    if k1.OPT.get("k2bar", 1) == 2: em.e("s_barrier")
    stamp2(em, 3)
    BB = 96; AA = 176
    def issue_a(s):
        b = AA + 20 * (s % 4)
        em.e(f"s_add_u32 s{T}, s{S_A0}, {s*5120}")
        for j in range(4):
            em.vm(f"buffer_load_dwordx4 v[{b+4*j}:{b+4*j+3}], v2, s[{S_WS2}:{S_WS2+3}], s{T} offen offset:{j*1024}")
        em.e(f"s_add_u32 s{T}, s{T}, 4096")
        return em.vm(f"buffer_load_dwordx4 v[{b+16}:{b+19}], v2, s[{S_WS2}:{S_WS2+3}], s{T} offen")
    em.e("s_nop 1")
    if k1.OPT.get("k2prio", 0) == 2: em.e("s_setprio 0")
    issue_a(0); issue_a(1); issue_a(2); issue_a(3)
    em.e(f"s_mov_b32 s{T+9}, 0x80000")
    em.label("L_k2_prepoll")
    em.e(f"s_add_u32 s{T}, s{S_B0}, {3*20480}")
    for s in range(4):
        r = BB + 16 * s + 12
        em.e(f"buffer_load_dwordx4 v[{r}:{r+3}], v2, s[{S_WS2}:{S_WS2+3}], s{T} offen offset:{s*1024} sc1")
    em.e(f"s_add_u32 s{T}, s{T}, 4096")
    em.e(f"buffer_load_dwordx4 v[{BB+76}:{BB+79}], v2, s[{S_WS2}:{S_WS2+3}], s{T} offen sc1")
    em.e("s_waitcnt vmcnt(0)")
    em.e(f"v_max_u32 v4, v{BB+12}, v{BB+14}")
    for s in range(1, 5):
        em.e(f"v_max3_u32 v4, v4, v{BB+16*s+12}, v{BB+16*s+14}")
    em.e(f"""
    v_cmp_eq_u32 vcc, -1, v4
    s_nop 1
    s_cmp_eq_u64 vcc, 0
    s_cbranch_scc1 L_k2_poll
    s_sleep {k1.OPT.get("k2sleep", 8)}
    s_sub_u32 s{T+9}, s{T+9}, 1
    s_cmp_lg_u32 s{T+9}, 0
    s_cbranch_scc1 L_k2_prepoll
    s_mov_b32 s{T+9}, 1
    """)
    def bulk(flag, tts):
        for tt in tts:
            em.e(f"s_add_u32 s{T}, s{S_B0}, {tt*20480}")
            for s in range(4):
                r = BB + 16 * s + 4 * tt
                em.e(f"buffer_load_dwordx4 v[{r}:{r+3}], v2, s[{S_WS2}:{S_WS2+3}], s{T} offen offset:{s*1024}{flag}")
            r = BB + 64 + 4 * tt
            em.e(f"s_add_u32 s{T}, s{T}, 4096")
            em.e(f"buffer_load_dwordx4 v[{r}:{r+3}], v2, s[{S_WS2}:{S_WS2+3}], s{T} offen{flag}")
        em.e("s_waitcnt vmcnt(0)")
        em.vm_done = em.vm_n
        em.e(f"v_max_u32 v4, v{BB}, v{BB+2}\nv_max_u32 v5, v{BB+4}, v{BB+6}")
        for k in range(2, 20, 2):
            em.e(f"v_max3_u32 v4, v4, v{BB+4*k}, v{BB+4*k+2}\nv_max3_u32 v5, v5, v{BB+4*k+4}, v{BB+4*k+6}")
        em.e("""
        v_max_u32 v4, v4, v5
        v_cmp_eq_u32 vcc, -1, v4
        s_nop 1
        s_cmp_eq_u64 vcc, 0
        s_cbranch_scc1 L_k2_go
        """)
    em.label("L_k2_poll")
    bulk("", [0, 1, 2])
    em.label("L_k2_poll2")
    bulk(" sc1", [0, 1, 2])
    em.e(f"s_sleep 2\ns_sub_u32 s{T+9}, s{T+9}, 1\ns_cmp_lg_u32 s{T+9}, 0\ns_cbranch_scc1 L_k2_poll2")
    em.label("L_k2_go")
    stamp2(em, 4)
    aid = {}
    for s in range(5):
        if s in aid: em.wait(vm=aid[s])
        b = AA + 20 * (s % 4)
        for j in range(5):
            for tt in range(4):
                a = ACC + 4 * (4 * j + tt)
                c = "0" if s == 0 else f"v[{a}:{a+3}]"
                r = BB + 16 * s + 4 * tt
                em.e(f"v_mfma_f32_16x16x32_bf16 v[{a}:{a+3}], v[{b+4*j}:{b+4*j+3}], v[{r}:{r+3}], {c}")
        if s == 0: aid[4] = issue_a(4)
    em.label("L_k2_final")
    em.e("s_nop 7\ns_nop 7")
    em.e("s_waitcnt vmcnt(0)")
    em.lds_done = em.lds_n; em.vm_done = em.vm_n
    stamp2(em, 7)
    em.e(f"s_mul_i32 s{T}, s{S_WV2}, 20480\nv_add_u32 v8, s{T}, v2")
    for k in range(20):
        em.lds(f"ds_write_b128 v8, v[{ACC+4*k}:{ACC+4*k+3}] offset:{k*1024}")
    em.e(f"""
    v_and_b32 v9, 15, v3
    v_lshrrev_b32 v10, 4, v3
    s_and_b32 s{T+7}, s{S_WV2}, 3
    s_lshl_b32 s{T}, s{S_MT}, 6
    s_lshl_b32 s{T+1}, s{T+7}, 4
    s_add_u32 s{T}, s{T}, s{T+1}
    v_add_u32 v11, s{T}, v9
    v_lshlrev_b32 v12, 2, v11
    s_mov_b32 s{T+2}, {G_OFF}
    """)
    gl = em.vm(f"buffer_load_dword v13, v12, s[{S_WS2}:{S_WS2+3}], s{T+2} offen")
    em.wait_lgkm0()
    em.e("s_barrier")
    stamp2(em, 8)
    em.e(f"""
    s_lshl_b32 s{T+1}, s{T+7}, 10
    s_cmp_ge_u32 s{S_WV2}, 4
    s_cselect_b32 s{T+3}, {3*4096}, 0
    s_cselect_b32 s{T+5}, 96, 0
    s_add_u32 s{T+1}, s{T+1}, s{T+3}
    v_add_u32 v8, s{T+1}, v2
    v_add_u32 v14, 61440, v8
    v_add_u32 v15, 122880, v8
    s_movk_i32 s{T+3}, 1280
    v_mul_lo_u32 v11, v11, s{T+3}
    v_lshl_add_u32 v11, v10, 3, v11
    s_mul_i32 s{T+4}, s{S_NT}, 160
    s_add_u32 s{T+4}, s{T+4}, s{T+5}
    """)
    R0 = 16
    ids = []
    for j in range(3):
        for p in range(8):
            r = R0 + 32 * j + 4 * p
            ids.append(em.lds(f"ds_read_b128 v[{r}:{r+3}], v{[8,14,15][p//3]} offset:{(p%3)*20480 + (j*4096 if j < 2 else 0)}") if j < 2 else None)
        if j == 0:
            em.wait(vm=gl)
            em.e(f"""
            v_sub_f32 v12, 1.0, v13
            v_cvt_pk_bf16_f32 v12, v12, v12
            v_lshlrev_b32 v12, 16, v12
            """)
    def fin(j, lastid):
        em.wait(lds=lastid)
        r = R0 + 32 * j
        for i in range(4):
            em.e(f"""
            v_add_f32 v{r+i}, v{r+i}, v{r+4+i}
            v_add_f32 v{r+8+i}, v{r+8+i}, v{r+12+i}
            v_add_f32 v{r+16+i}, v{r+16+i}, v{r+20+i}
            v_add_f32 v{r+24+i}, v{r+24+i}, v{r+28+i}
            """)
        for i in range(4):
            em.e(f"v_add_f32 v{r+i}, v{r+i}, v{r+8+i}\nv_add_f32 v{r+24+i}, v{r+24+i}, v{r+16+i}")
        for h in range(2):
            b0, a0 = r + 2 * h, r + 24 + 2 * h
            em.e(f"""
            v_cvt_pk_bf16_f32 v4, v{b0}, v{b0+1}
            v_cvt_pk_bf16_f32 v5, v{a0}, v{a0+1}
            v_lshlrev_b32 v{b0}, 16, v4
            v_and_b32 v{b0+1}, 0xffff0000, v4
            v_lshlrev_b32 v{a0}, 16, v5
            v_and_b32 v{a0+1}, 0xffff0000, v5
            v_mul_f32 v{b0}, v{b0}, v12
            v_mul_f32 v{b0+1}, v{b0+1}, v12
            v_mul_f32 v{a0}, v{a0}, v13
            v_mul_f32 v{a0+1}, v{a0+1}, v13
            v_cvt_pk_bf16_f32 v4, v{b0}, v{b0+1}
            v_cvt_pk_bf16_f32 v5, v{a0}, v{a0+1}
            v_lshlrev_b32 v{b0}, 16, v4
            v_and_b32 v{b0+1}, 0xffff0000, v4
            v_lshlrev_b32 v{a0}, 16, v5
            v_and_b32 v{a0+1}, 0xffff0000, v5
            v_add_f32 v{b0}, v{b0}, v{a0}
            v_add_f32 v{b0+1}, v{b0+1}, v{a0+1}
            v_cvt_pk_bf16_f32 v{r+4+h}, v{b0}, v{b0+1}
            """)
        em.vm(f"buffer_store_dwordx2 v[{r+4}:{r+5}], v11, s[{S_OUT}:{S_OUT+3}], s{T+4} offen offset:{j*32}")
    fin(0, ids[7]); fin(1, ids[15])
    em.e(f"s_cmp_ge_u32 s{S_WV2}, 4\ns_cbranch_scc1 L_k2_done")
    for p in range(8):
        r = R0 + 64 + 4 * p
        last = em.lds(f"ds_read_b128 v[{r}:{r+3}], v{[8,14,15][p//3]} offset:{(p%3)*20480 + 2*4096}")
    fin(2, last)
    stamp2(em, 9)
    if k1.OPT.get("dbgout"):
        em.e(f"""
        s_cmp_lg_u32 s2, 0
        s_cbranch_scc1 L_k2_done
        s_cmp_lg_u32 s{S_WV2}, 0
        s_cbranch_scc1 L_k2_done
        s_load_dwordx2 s[46:47], s[0:1], 80
        s_waitcnt vmcnt(0) lgkmcnt(0)
        s_mov_b32 s48, s46
        s_mov_b32 s49, s47
        s_mov_b32 s50, 256
        s_mov_b32 s51, 0x00020000
        v_and_b32 v4, 3, v3
        v_mul_u32_u24 v4, {72*512}, v4
        v_bfe_u32 v5, v3, 2, 1
        v_mul_u32_u24 v5, 40, v5
        v_add_u32 v4, v4, v5
        v_add_u32 v4, {0x1480000}, v4
        v_bfe_u32 v5, v3, 3, 1
        v_cmp_eq_u32 vcc, 1, v5
        v_bfe_u32 v6, v3, 2, 1
        v_mul_u32_u24 v6, 36, v6
        v_add_u32 v6, {0x14A0000}, v6
        v_cndmask_b32 v4, v4, v6, vcc
        buffer_load_dword v7, v4, s[{S_WS2}:{S_WS2+3}], 0 offen sc1
        v_lshlrev_b32 v5, 2, v3
        s_waitcnt vmcnt(0)
        buffer_store_dword v7, v5, s[48:51], 0 offen
        """)
    em.label("L_k2_done")
    em.e("s_endpgm")
    return em.finish(), em
```

```python
from asmlib import *
import k1v2 as K
from k1v2 import *

S_W8 = 98
S_RS = 100
R_SRD = [40, 44 - 44 + 56, 60 - 60 + 80, 84]
R_OFF = [88, 89, 90, 91]
R_INC = [60, 61, 62, 63]
V_RD = 8
V_XF = 176

WPART = 22528
NWS = 5
XB3 = NWS * WPART
XSL3 = 16384; NXS3 = 3
DUMMY = XB3 + NXS3 * XSL3
S_RM = 62
S_RI = 63

def stamp3(em, k):
    if not OPT["stamps"]: return
    em.e(f"s_memrealtime s[30:31]" if (OPT.get("rt") and k in (0, 10)) else f"s_memtime s[30:31]")
    em.e("s_waitcnt lgkmcnt(0)"); em.lds_done = em.lds_n
    em.e(f"""
    s_lshl_b32 s28, s2, 9
    s_lshl_b32 s29, s{S_W8}, 6
    s_add_u32 s28, s28, s29
    s_add_u32 s28, s28, {STAMP_OFF + 4*k}
    v_mov_b32 v248, s30
    v_mov_b32 v249, 0
    """)
    em.vm(f"buffer_store_dword v248, v249, s[{S_WS}:{S_WS+3}], s28 offen")

def setup3(em, rounds):
    a, b, c, d, e = VT, VT + 1, VT + 2, VT + 3, VT + 4
    em.e(f"""
    v_and_b32 v1, 63, v0
    v_lshrrev_b32 v{a}, 3, v1
    v_and_b32 v{b}, 7, v1
    v_lshrrev_b32 v{c}, 4, v1
    v_xor_b32 v{c}, v{b}, v{c}
    v_lshlrev_b32 v{c}, 4, v{c}
    s_lshl_b32 s{S_T0}, s{S_M}, 7
    s_lshl_b32 s{S_T0+1}, s{S_W8}, 4
    s_add_u32 s{S_T0}, s{S_T0}, s{S_T0+1}
    v_add_u32 v{d}, s{S_T0}, v{a}
    v_mul_u32_u24 v{d}, 1280, v{d}
    v_add_u32 v{V_XD}, v{d}, v{c}
    v_xor_b32 v{c}, 64, v{c}
    v_add_u32 v{V_XD+1}, v{d}, v{c}
    v_add_u32 v{V_XD+1}, {8*1280}, v{V_XD+1}
    s_lshl_b32 s{S_MX}, s{S_W8}, 11
    s_add_u32 s{S_MX}, s{S_MX}, {XB3}
    s_lshl_b32 s{S_MW}, s{S_W8}, 10
    """)
    for r, rd in enumerate(rounds):
        sr = R_SRD[r]
        if rd[0] == "QKV":
            kind, second = rd[1], rd[2]
            em.e(f"""
            s_lshl_b32 s{S_T0}, s{S_W8}, 6
            s_add_u32 s{S_T0}, s{S_T0}, {512 if second else 0}
            v_add_u32 v{a}, s{S_T0}, v1
            v_mul_u32_u24 v{b}, 3277, v{a}
            v_lshrrev_b32 v{b}, 16, v{b}
            v_mul_u32_u24 v{c}, 20, v{b}
            v_sub_u32 v{c}, v{a}, v{c}
            v_mul_u32_u24 v{b}, 3840, v{b}
            v_lshl_add_u32 v{V_RD+r}, v{c}, 4, v{b}
            """)
            if kind == "KV":
                em.e(f"""
                v_cmp_le_u32 vcc, 10, v{c}
                v_add_u32 v{b}, 1120, v{V_RD+r}
                s_nop 0
                v_cndmask_b32 v{V_RD+r}, v{V_RD+r}, v{b}, vcc
                s_mul_i32 s{R_OFF[r]}, s{S_C}, 160
                s_add_u32 s{R_OFF[r]}, s{R_OFF[r]}, 1280
                """)
            else:
                em.e(f"s_mul_i32 s{R_OFF[r]}, s{S_C}, 320")
            if second:
                em.e(f"""
                v_cmp_gt_u32 vcc, 640, v{a}
                v_mov_b32 v{b}, 0x80000000
                s_nop 0
                v_cndmask_b32 v{V_RD+r}, v{b}, v{V_RD+r}, vcc
                """)
            em.e(f"""
            s_mov_b32 s{sr}, s{S_QKV}
            s_mov_b32 s{sr+1}, s{S_QKV+1}
            s_mov_b32 s{sr+2}, {640*3840}
            s_mov_b32 s{sr+3}, 0x00020000
            """)
        elif rd[0] == "MIX":
            kind, f2off, qoff = rd[1], rd[2], rd[3]
            em.e(f"""
            v_lshrrev_b32 v{a}, 2, v1
            v_and_b32 v{b}, 3, v1
            s_and_b32 s{S_T0}, s{S_W8}, 2
            v_xor_b32 v{b}, s{S_T0}, v{b}
            s_and_b32 s{S_T0}, s{S_W8}, 1
            s_lshl_b32 s{S_T0}, s{S_T0}, 4
            v_add_u32 v{a}, s{S_T0}, v{a}
            v_mul_u32_u24 v{a}, 3456, v{a}
            v_lshl_add_u32 v{V_RD+r}, v{b}, 4, v{a}
            s_lshl_b32 s{R_OFF[r]}, s{S_FG2}, 7
            s_lshl_b32 s{S_T0}, s{S_TOFF}, 5
            s_add_u32 s{R_OFF[r]}, s{R_OFF[r]}, s{S_T0}
            s_mov_b32 s{S_RI}, {32*3456}
            s_add_u32 s{S_RM}, s{S_MW}, {f2off}
            s_cmp_lt_u32 s{S_W8}, 2
            s_cselect_b32 s{sr}, s{S_G}, s{S_U}
            s_cselect_b32 s{sr+1}, s{S_G+1}, s{S_U+1}
            s_mov_b32 s{sr+2}, {640*3456}
            s_mov_b32 s{sr+3}, 0x00020000
            """)
            if kind:
                em.e(f"""
                s_lshl_b32 s{S_T0}, s{S_W8}, 6
                s_add_u32 s{S_T0}, s{S_T0}, 256
                v_add_u32 v{a}, s{S_T0}, v1
                v_mul_u32_u24 v{b}, 3277, v{a}
                v_lshrrev_b32 v{b}, 16, v{b}
                v_mul_u32_u24 v{c}, 20, v{b}
                v_sub_u32 v{c}, v{a}, v{c}
                v_mul_u32_u24 v{b}, 3840, v{b}
                v_lshl_add_u32 v{d}, v{c}, 4, v{b}
                """)
                if kind == "KV":
                    em.e(f"""
                    v_cmp_le_u32 vcc, 10, v{c}
                    v_add_u32 v{b}, 1120, v{d}
                    s_nop 0
                    v_cndmask_b32 v{d}, v{d}, v{b}, vcc
                    """)
                em.e(f"""
                s_cmp_ge_u32 s{S_W8}, 4
                s_cselect_b64 vcc, -1, 0
                s_cselect_b32 s{sr}, s{S_QKV}, s{sr}
                s_cselect_b32 s{sr+1}, s{S_QKV+1}, s{sr+1}
                s_cselect_b32 s{sr+2}, {640*3840}, s{sr+2}
                s_cselect_b32 s{R_OFF[r]}, s{R_OFF[0]}, s{R_OFF[r]}
                s_cselect_b32 s{S_RI}, {32*3840}, s{S_RI}
                s_add_u32 s{S_T0}, s{S_MW}, {qoff - 4096}
                s_cmp_ge_u32 s{S_W8}, 4
                s_cselect_b32 s{S_RM}, s{S_T0}, s{S_RM}
                v_cndmask_b32 v{V_RD+r}, v{V_RD+r}, v{d}, vcc
                """)
            lim = 6 if kind else 4
            em.e(f"""
            s_cmp_ge_u32 s{S_W8}, {lim}
            s_cselect_b64 vcc, -1, 0
            v_mov_b32 v{b}, 0x80000000
            s_nop 0
            v_cndmask_b32 v{V_RD+r}, v{V_RD+r}, v{b}, vcc
            """)
        else:
            sg = rd[1]
            em.e(f"""
            v_lshrrev_b32 v{a}, 3, v1
            v_and_b32 v{b}, 7, v1
            v_bfe_u32 v{c}, v1, 4, 1
            v_lshlrev_b32 v{c}, 1, v{c}
            v_xor_b32 v{c}, v{c}, v{b}
            s_and_b32 s{S_T0}, s{S_W8}, 4
            v_xor_b32 v{c}, s{S_T0}, v{c}
            v_lshlrev_b32 v{c}, 4, v{c}
            s_lshl_b32 s{S_T0}, s{S_WV}, 3
            v_add_u32 v{a}, s{S_T0}, v{a}
            v_mul_u32_u24 v{a}, 3456, v{a}
            v_add_u32 v{V_RD+r}, v{a}, v{c}
            s_lshl_b32 s{R_OFF[r]}, s{sg}, 7
            s_cmp_lt_u32 s{S_W8}, 4
            s_cselect_b32 s{sr}, s{S_G}, s{S_U}
            s_cselect_b32 s{sr+1}, s{S_G+1}, s{S_U+1}
            s_mov_b32 s{sr+2}, {640*3456}
            s_mov_b32 s{sr+3}, 0x00020000
            """)

def setup3_reads(em):
    a, b, c, d, e = VT, VT + 1, VT + 2, VT + 3, VT + 4
    em.e(f"""
    v_and_b32 v{a}, 31, v1
    v_lshrrev_b32 v{b}, 5, v1
    v_bfe_u32 v{c}, v1, 1, 3
    v_xor_b32 v{c}, v{c}, v{b}
    v_lshlrev_b32 v{d}, 7, v{a}
    s_lshl_b32 s{S_T0}, s{S_WV}, 12
    s_add_u32 s{S_T0}, s{S_T0}, {XB3}
    v_add_u32 v{d}, s{S_T0}, v{d}
    """)
    for sp in range(4):
        em.e(f"v_xor_b32 v{e}, {2*sp}, v{c}\nv_lshl_add_u32 v{V_XR+sp}, v{e}, 4, v{d}")

def setup3_F(em):
    a, b, c, d, e = VT, VT + 1, VT + 2, VT + 3, VT + 4
    em.e(f"""
    v_bfe_u32 v{a}, v1, 4, 1
    v_lshrrev_b32 v{b}, 5, v1
    v_bfe_u32 v{c}, v1, 2, 2
    v_and_b32 v{d}, 3, v1
    v_lshlrev_b32 v{e}, 12, v{a}
    v_lshl_add_u32 v{e}, v{b}, 10, v{e}
    v_lshl_add_u32 v{e}, v{c}, 7, v{e}
    v_lshl_add_u32 v{e}, v{d}, 3, v{e}
    v_lshrrev_b32 v{c}, 1, v{c}
    v_lshl_or_b32 v{c}, v{a}, 1, v{c}
    """)
    for t in range(4):
        em.e(f"v_xor_b32 v{d}, {t}, v{c}\nv_lshl_add_u32 v{V_FT+t}, v{d}, 5, v{e}\nv_add_u32 v{V_FT+4+t}, 0x10000, v{V_FT+t}")
    em.e(f"""
    s_lshl_b32 s{S_T0}, s{S_WV}, 1
    v_add_u32 v{a}, s{S_T0}, v{a}
    s_mov_b32 s{S_T0+1}, {54*1024}
    v_mul_lo_u32 v{a}, v{a}, s{S_T0+1}
    v_and_b32 v{c}, 15, v1
    v_lshl_add_u32 v{c}, v{b}, 4, v{c}
    v_lshl_add_u32 v{V_FS}, v{c}, 4, v{a}
    s_mul_i32 s{S_HB}, s{S_M}, {8*54*1024}
    s_add_u32 s{S_HB}, s{S_HB}, {HF_OFF}
    s_lshl_b32 s{S_T0}, s{S_FG2}, 11
    s_add_u32 s{S_HB2}, s{S_HB}, s{S_T0}
    s_lshl_b32 s{S_T0}, s{S_TOFF}, 9
    s_add_u32 s{S_HB2}, s{S_HB2}, s{S_T0}
    s_lshl_b32 s{S_T0}, s{S_FG}, 11
    s_add_u32 s{S_HB}, s{S_HB}, s{S_T0}
    v_mov_b32 v{V_GC0}, {f32bits(GC0)}
    v_mov_b32 v{V_PKC}, {f32bits(GC1)}
    v_mov_b32 v{V_PKC+1}, {f32bits(GC1)}
    v_mov_b32 v{V_PKC+2}, {f32bits(GC0)}
    v_mov_b32 v{V_PKC+3}, {f32bits(GC0)}
    v_bfe_u32 v{a}, v1, 4, 1
    v_bfe_u32 v{c}, v1, 2, 2
    v_and_b32 v{d}, 3, v1
    v_lshlrev_b32 v{e}, 11, v{a}
    v_lshl_add_u32 v{e}, v{b}, 9, v{e}
    v_lshl_add_u32 v{e}, v{c}, 6, v{e}
    v_lshl_add_u32 v{e}, v{d}, 3, v{e}
    v_lshl_add_u32 v{V_F2T}, v{a}, 5, v{e}
    v_xor_b32 v{V_F2T+1}, 32, v{V_F2T}
    v_add_u32 v{V_F2T+2}, 0x10000, v{V_F2T}
    v_add_u32 v{V_F2T+3}, 0x10000, v{V_F2T+1}
    """)

def gpf3_setup(em):
    a, b = VT, VT + 1
    P = S_TA
    em.e(f"""
    s_cmp_eq_u32 s{S_WV}, 0
    s_cselect_b32 s{P}, s{S_G}, s{S_U}
    s_cselect_b32 s{P+1}, s{S_G+1}, s{S_U+1}
    s_mov_b32 s{P+2}, {640*3456}
    s_mov_b32 s61, {64*3456}
    s_mul_i32 s60, s2, 864
    s_cmp_eq_u32 s{S_WV}, 2
    s_cselect_b32 s{P}, s{S_QKV}, s{P}
    s_cselect_b32 s{P+1}, s{S_QKV+1}, s{P+1}
    s_cselect_b32 s{P+2}, {640*3840}, s{P+2}
    s_cselect_b32 s61, {64*3840}, s61
    s_mul_i32 s{S_T0}, s2, 960
    s_cselect_b32 s60, s{S_T0}, s60
    s_cmp_eq_u32 s{S_WV}, 3
    s_cselect_b32 s{P}, s{S_X}, s{P}
    s_cselect_b32 s{P+1}, s{S_X+1}, s{P+1}
    s_cselect_b32 s{P+2}, {2048*1280}, s{P+2}
    s_cselect_b32 s61, 128, s61
    s_mul_i32 s{S_T0}, s2, {8*1280}
    s_cselect_b32 s60, s{S_T0}, s60
    s_mov_b32 s{P+3}, 0x00020000
    s_movk_i32 s{S_T0}, 128
    s_cselect_b32 s{S_T0}, 1280, s{S_T0}
    v_mul_lo_u32 v{a}, v1, s{S_T0}
    v_mov_b32 v{b}, 0x80000000
    v_cmp_gt_u32 vcc, 8, v1
    s_nop 1
    v_cndmask_b32 v251, v{b}, v{a}, vcc
    """)
def gpf3_step(em, n=1):
    for _ in range(n):
        em.vm(f"buffer_load_dword v250, v251, s[{S_TA}:{S_TA+3}], s60 offen")
        em.e("s_add_u32 s60, s60, s61")

def engine3(em, rounds, dests, tiles, pro=None, gp=False, bgf=None):
    D = OPT.get('D3', 3)
    NST = 20; PW = NWS - 2; PX = NXS3 - 1
    incs = [32 * 3840 if rd[0] == "QKV" else 32 * 3456 for rd in rounds]
    w_last = {}; x_last = {}
    def issue_w(s):
        if s >= NST: return []
        if OPT.get("nodma") and s > 2:
            w_last[s] = 0; return []
        cl = []
        for r, rd in enumerate(rounds):
            def c(r=r, rd=rd):
                if rd[0] == "MIX":
                    em.e(f"s_add_u32 s{S_TMP}, s{S_RM}, {(s % NWS) * WPART}")
                    em.e(f"s_cmp_lt_u32 s{S_W8}, {6 if rd[1] else 4}")
                    em.e(f"s_cselect_b32 m0, s{S_TMP}, s{S_DUM}")
                    w_last[s] = em.vm(f"buffer_load_dwordx4 v{V_RD+r}, s[{R_SRD[r]}:{R_SRD[r]+3}], s{R_OFF[r]} offen lds")
                    em.e(f"s_add_u32 s{R_OFF[r]}, s{R_OFF[r]}, s{S_RI}")
                    return
                base = (s % NWS) * WPART + dests[r]
                em.e(f"s_add_u32 m0, s{S_MW}, {base}")
                em.e(f"s_add_u32 s{S_TMP}, s{R_OFF[r]}, {s*incs[r]}")
                w_last[s] = em.vm(f"buffer_load_dwordx4 v{V_RD+r}, s[{R_SRD[r]}:{R_SRD[r]+3}], s{S_TMP} offen lds")
            cl.append(c)
        return cl
    def issue_x(i):
        if i >= 10: return []
        if OPT.get("nodma") and i > 1:
            x_last[i] = 0; return []
        cl = []
        for n in range(2):
            def c(n=n):
                em.e(f"s_add_u32 m0, s{S_MX}, {(i % NXS3)*XSL3 + n*1024}")
                em.e(f"s_movk_i32 s{S_TMP}, {i*128}")
                x_last[i] = em.vm(f"buffer_load_dwordx4 v{V_XD+n}, s[{S_X}:{S_X+3}], s{S_TMP} offen lds")
            cl.append(c)
        return cl
    em.e(f"s_and_b32 s{S_DUM}, s{S_MW}, 1024\ns_add_u32 s{S_DUM}, s{S_DUM}, {DUMMY}")
    for c in issue_x(0) + issue_w(0) + issue_w(1) + issue_x(1) + issue_w(2): c()
    if pro: pro(em)
    LA = OPT.get("LA3", 0)
    half1 = gp; hold = [0]
    gp = gp and LA > 0
    if gp:
        gpf3_setup(em)
        em.e("s_add_u32 s60, s60, s61")
        gpf3_step(em, LA - 1)
    if gp and OPT.get("prio1"): em.e(f"s_setprio {OPT['prio1']}")
    T = len(tiles)
    mf = [(s, sp, t) for s in range(NST) for sp in range(2) for t in range(T)]
    N = len(mf)
    NB = len(WFR)
    rd_ = {}; xrd = {}
    pend = []
    bg = BG()
    if bgf: bg.add(bgf(em))
    def need_of(k):
        s, sp, t = mf[k]
        return max(rd_[k], xrd[2 * s + sp])
    for idx in range(-D, N):
        if idx >= 0:
            s, sp, t = mf[idx]
            em.wait(lds=need_of(idx))
            b = WFR[idx % NB]
            a = tiles[t][0]
            k16 = 2 * s + sp
            xr = V_XF + 4 * (k16 % 4)
            c = "0" if k16 == 0 else f"v[{a}:{a+15}]"
            em.e(f"v_mfma_f32_32x32x16_bf16 v[{a}:{a+15}], v[{b}:{b+3}], v[{xr}:{xr+3}], {c}")
        j = idx + D
        if j < N:
            s, sp, t = mf[j]
            if sp == 0 and t == 0:
                while pend: pend.pop(0)()
                need = w_last[s]
                if s % 2 == 0: need = max(need, x_last[s // 2])
                if not (OPT.get("novm") and s > 2): em.wait(vm=need)
                if not (OPT.get("nobar") and s > 0): em.e("s_barrier")
                if s in (0, 1, 5, 10, 15): stamp3(em, {0: 1, 1: 8, 5: 2, 10: 3, 15: 4}[s])
                hold[0] = OPT.get("dly1", 0) if half1 else OPT.get("dly0", 0)
                pend += issue_w(s + PW)
                if s in (0, 6, 12, 17): code_ahead(em, 2048)
                if gp and s % 2 == 0 and s // 2 + LA < 10: gpf3_step(em)
                if s % 2 == 1: pend += issue_x((s - 1) // 2 + PX)
                for q in range(2):
                    k16 = 2 * s + q
                    xr = V_XF + 4 * (k16 % 4)
                    xrd[k16] = em.lds(f"ds_read_b128 v[{xr}:{xr+3}], v{V_XR + (k16 % 4)} offset:{((s // 2) % NXS3)*XSL3}")
            b = WFR[j % NB]
            for hf in range(2):
                vr, off = tiles[t][1]((s % NWS) * WPART, sp, hf)
                rd_[j] = em.lds(f"ds_read_b64_tr_b16 v[{b+2*hf}:{b+2*hf+1}], v{vr} offset:{off}")
        if hold[0] > 0:
            hold[0] -= 1
            if idx >= 0: bg.step(em, 3)
        elif pend:
            pend.pop(0)()
            hold[0] = OPT.get("gapd", 0)
        elif idx >= 0: bg.step(em, 3)
    bg.drain(em)
    if gp and OPT.get("prio1"): em.e("s_setprio 0")

def f_tile(acc, part_off, t, f2=False):
    def fn(sb, sp, hf):
        off = sb + part_off + (sp * 1024 + hf * 256 if f2 else sp * 2048 + hf * 512)
        base = V_F2T if f2 else V_FT
        hi = 2 if f2 else 4
        if off >= 65536: return (base + hi + t, off - 65536)
        return (base + t, off)
    return (acc, fn)

def q_tile(acc, t):
    def fn(sb, sp, hf):
        off = sb + (16 * sp + 4 * hf) * 320 + t * 64
        if off >= 65536: return (V_TR + 1, off - 65536)
        return (V_TR, off)
    return (acc, fn)


class Rec:
    def __init__(self): self.ops = []; self.n = 0
    def e(self, text):
        for t in text.split("\n"):
            t = t.strip()
            if t: self.ops.append(("e", t, None))
    def vm(self, text):
        self.n += 1; self.ops.append(("vm", text, self.n)); return ("rec", self.n)
    def lds(self, text):
        self.n += 1; self.ops.append(("lds", text, self.n)); return ("rec", self.n)

def replay(em, rec, st):
    m = {}
    hold = False
    for kind, t, n in rec.ops:
        if kind == "e": em.e(t)
        elif kind == "vm": m[n] = em.vm(t)
        else: m[n] = em.lds(t)
        op = t.split()[0]
        if op.startswith("s_cmp"): hold = True
        elif hold and not (op.startswith("s_cselect") or op.startswith("s_mov") or op.startswith("s_mul") or op.startswith("s_movk")): hold = False
        if not hold: yield (3 if kind != "e" else 1)
    for k, v in list(st.items()):
        if isinstance(v, tuple) and v and v[0] == "rec": st[k] = m[v[1]]

def run(gen, em):
    for c in gen:
        if c == "BAR": em.e("s_barrier")


_k2pf_n = [0]
def k2_code_touch(em):
    if not OPT.get("k2pf"): return
    _k2pf_n[0] += 1
    n = _k2pf_n[0]
    em.e(f"s_getpc_b64 s[28:29]")
    em.label(f"L_k2pf_{n}")
    em.e(f"""
    s_add_u32 s28, s28, k2_kernel - L_k2pf_{n}
    s_addc_u32 s29, s29, 0
    s_lshl_b32 s30, s{S_WV}, 12
    v_lshlrev_b32 v{VT}, 6, v1
    v_add_u32 v{VT}, s30, v{VT}
    v_min_u32 v{VT}, L_text_end - k2_kernel - 4, v{VT}
    """)
    em.vm(f"global_load_dword v250, v{VT}, s[28:29]")


def code_ahead(em, skip=1024):
    if not OPT.get("cahead"): return
    _k2pf_n[0] += 1
    n = _k2pf_n[0]
    em.e(f"s_getpc_b64 s[28:29]")
    em.label(f"L_ca_{n}")
    em.e(f"""
    s_lshl_b32 s30, s{S_WV}, 11
    s_add_u32 s30, s30, {skip}
    v_and_b32 v249, 15, v1
    v_lshlrev_b32 v249, 7, v249
    v_add_u32 v249, s30, v249
    v_min_u32 v249, L_text_end - L_ca_{n} - 4, v249
    """)
    em.vm(f"global_load_dword v250, v249, s[28:29]")

def f_tail(em, specs, bar_after=None):
    for n, (acc, sb, off) in enumerate(specs):
        run(f_epilogue_tile(em, acc, off, 160 + 16 * (n & 1), sb), em)
        if bar_after == n: em.e("s_barrier")

WBD3 = 0; PB3 = 20480; VB3 = PB3 + 4 * 32 * PITCH; KS3 = VB3 + 4 * 32 * 200; FSC3 = KS3 + 4 * 3360 + 64

def gen_special(em, kind):
    rounds = [("QKV", kind, 0), ("F", S_FG), ("MIX", kind, 18432, 8192)]
    dests = [0, 10240, 0]
    setup3(em, rounds)
    lab = "Q" if kind == "Q" else "KV"
    em.e(f"s_cmp_ge_u32 s{S_W8}, 4\ns_cbranch_scc1 L3_{lab}_h1")
    save = (em.vm_n, em.vm_done, em.lds_n, em.lds_done)
    st = {}
    nblk = 18 if kind == "Q" else 9
    def pro0(em):
        setup3_reads(em)
        setup_QKV_reads(em, kind)
    def bg0(em):
        r = Rec()
        r.e(f"s_lshl_b32 s{S_H0}, s{S_C}, {3 if kind == 'Q' else 2}")
        st["wl"], st["n_it"] = wbd_loads(r, nblk, 200, V_CH)
        yield from replay(em, r, st)
    engine3(em, rounds, dests, [q_tile(ACC0 + 16 * t, t) for t in range(5)], pro0, bgf=bg0)
    stamp3(em, 9)
    em.wait_lgkm0()
    em.e("s_barrier")
    run(wbd_writes(em, st["n_it"], st["wl"], WBD3, V_CH, V_SM), em)
    if kind == "Q":
        run(conv_qf(em, 10), em)
        em.e("s_barrier")
        run(chain(em, 5, 10, 4), em)
        em.e(f"""
        s_lshl_b32 s{S_T0}, s{S_M}, 1
        s_lshr_b32 s{S_T0+1}, s{S_WV}, 1
        s_add_u32 s{S_T0}, s{S_T0}, s{S_T0+1}
        s_mul_i32 s{S_OB}, s{S_T0}, {64*1280}
        s_and_b32 s{S_T0+1}, s{S_WV}, 1
        s_mul_i32 s{S_T0+1}, s{S_T0+1}, 1280
        s_add_u32 s{S_OB}, s{S_OB}, s{S_T0+1}
        s_mul_i32 s{S_T0}, s{S_C}, {8*2560}
        s_add_u32 s{S_OB}, s{S_OB}, s{S_T0}
        s_add_u32 s{S_OB}, s{S_OB}, {PQF_OFF}
        s_mul_i32 s{S_T0}, s{S_WV}, {32*PITCH}
        s_add_u32 s{S_T0}, s{S_T0}, {PB3}
        """)
        a_, b_, c_ = VT, VT + 1, VT + 2
        for j in range(3):
            em.e(f"""
            v_add_u32 v{a_}, {64*j}, v1
            v_min_u32 v{b_}, 159, v{a_}
            v_mul_u32_u24 v{c_}, 13108, v{b_}
            v_lshrrev_b32 v{c_}, 16, v{c_}
            v_mul_u32_u24 v{V_SM+50+j}, 5, v{c_}
            v_sub_u32 v{b_}, v{b_}, v{V_SM+50+j}
            v_mul_u32_u24 v{c_}, {PITCH}, v{c_}
            v_lshl_add_u32 v{c_}, v{b_}, 3, v{c_}
            v_add_u32 v{V_SM+50+j}, s{S_T0}, v{c_}
            v_lshlrev_b32 v{V_SM+53+j}, 3, v{a_}
            """)
        em.e(f"""
        v_mov_b32 v{b_}, 0x80000000
        v_cmp_gt_u32 vcc, 160, v{a_}
        s_nop 1
        v_cndmask_b32 v{V_SM+55}, v{b_}, v{V_SM+55}, vcc
        """)
        em.wait(lds=em.last_p)
        ids = {}
        for h in range(8):
            for j in range(3):
                r = V_SM + 2 * (3 * h + j)
                ids[(h, j)] = em.lds(f"ds_read_b64 v[{r}:{r+1}], v{V_SM+50+j} offset:{h*40}")
        for h in range(8):
            em.e(f"s_add_u32 s{S_TMP2}, s{S_OB}, {h*2560}")
            for j in range(3):
                r = V_SM + 2 * (3 * h + j)
                em.wait(lds=ids[(h, j)])
                em.vm(f"buffer_store_dwordx2 v[{r}:{r+1}], v{V_SM+53+j}, s[{S_WS}:{S_WS+3}], s{S_TMP2} offen")
    else:
        run(kv_epi(em), em)
    stamp3(em, 10)
    em.e("s_endpgm")
    em.label(f"L3_{lab}_h1")
    em.vm_n, em.vm_done, em.lds_n, em.lds_done = save
    GR = 192
    def pro1(em):
        setup3_reads(em)
        setup3_F(em)
    def bg1(em):
        r = Rec()
        if kind == "KV": kv_zero(r, st)
        st["g"] = gate_issue3(r, GR)
        yield from replay(em, r, st)
        yield from gate_bg(em, st["g"], GR, delay=40)
        if kind == "KV":
            kv_signal(em, st); yield 8
    tiles = [f_tile(64 + 16 * t, 10240, t) for t in range(4)] + [f_tile(128 + 16 * t, 18432, t, f2=True) for t in range(2)]
    engine3(em, rounds, dests, tiles, pro1, gp=True, bgf=bg1)
    stamp3(em, 9)
    em.wait_lgkm0()
    em.e("s_barrier")
    k2_code_touch(em)
    st["f"] = frag_issue(em, FSC3, VT + 2)
    em.e("s_barrier")
    f_tail(em, [(64 + 16 * t, S_HB, t * 512) for t in range(4)] + [(128 + 16 * t, S_HB2, t * 512) for t in range(2)],
           bar_after=(OPT.get("b3", 3) if kind == "KV" else None))
    frag_finish(em, st["f"], FSC3, 160)
    stamp3(em, 10)
    em.e("s_endpgm")


def gate_issue3(em, R):
    import k1v2
    old = k1v2.S_TA
    k1v2.S_TA = 84
    try:
        return k1v2.gate_issue(em, R)
    finally:
        k1v2.S_TA = old

def setup_QKV_reads(em, kind):
    a, b, c, d, e = VT, VT + 1, VT + 2, VT + 3, VT + 4
    p_base, v_base, wbd_base = PB3, VB3, WBD3
    em.e(f"""
    v_and_b32 v{a}, 31, v1
    v_lshrrev_b32 v{b}, 5, v1
    s_mul_i32 s{S_T0}, s{S_WV}, {32*PITCH}
    s_add_u32 s{S_T0}, s{S_T0}, {p_base}
    v_mul_u32_u24 v{d}, {PITCH}, v{a}
    v_add_u32 v{d}, s{S_T0}, v{d}
    v_lshl_add_u32 v{V_PW}, v{b}, 3, v{d}
    """)
    if kind == "KV":
        em.e(f"""
        s_mul_i32 s{S_T0+1}, s{S_WV}, {32*200}
        s_add_u32 s{S_T0+1}, s{S_T0+1}, {v_base}
        v_mul_u32_u24 v{d}, 200, v{a}
        v_add_u32 v{d}, s{S_T0+1}, v{d}
        v_lshl_add_u32 v{V_VWA}, v{b}, 3, v{d}
        v_lshl_add_u32 v{V_VWB}, v{b}, 4, v{d}
        """)
    em.e(f"""
    v_and_b32 v{a}, 15, v1
    v_lshrrev_b32 v{b}, 4, v1
    v_mul_u32_u24 v{c}, {PITCH}, v{a}
    v_add_u32 v{c}, s{S_T0}, v{c}
    v_mul_u32_u24 v{d}, 40, v{b}
    v_add_u32 v{V_PR}, v{c}, v{d}
    """)
    if kind == "Q":
        em.e(f"v_mul_u32_u24 v{d}, 1280, v{b}\nv_lshl_add_u32 v{V_OUT}, v{a}, 4, v{d}")
    else:
        em.e(f"v_mul_u32_u24 v{d}, 80, v{b}\nv_add_u32 v{V_OUT}, v{c}, v{d}")
    em.e(f"""
    v_bfe_u32 v{a}, v1, 4, 1
    v_lshrrev_b32 v{b}, 5, v1
    v_bfe_u32 v{c}, v1, 2, 2
    v_and_b32 v{d}, 3, v1
    v_lshlrev_b32 v{a}, 5, v{a}
    v_lshl_add_u32 v{a}, v{d}, 3, v{a}
    v_lshl_add_u32 v{e}, v{b}, 3, v{c}
    v_mul_u32_u24 v{e}, 320, v{e}
    v_add_u32 v{V_TR}, v{e}, v{a}
    v_add_u32 v{V_TR+1}, 0x10000, v{V_TR}
    v_lshl_add_u32 v{e}, v{b}, 2, v{c}
    v_lshl_add_u32 v{e}, v{e}, 6, v{a}
    v_add_u32 v{V_WBD}, {wbd_base}, v{e}
    """)
    if kind == "KV":
        em.e(f"""
        v_lshrrev_b32 v{a}, 4, v1
        v_lshl_add_u32 v{a}, v{a}, 3, v{c}
        v_mul_u32_u24 v{b}, {PITCH}, v{a}
        v_lshl_add_u32 v{b}, v{d}, 3, v{b}
        s_mul_i32 s{S_T0}, s{S_WV}, 80
        s_add_u32 s{S_T0}, s{S_T0}, {p_base}
        v_add_u32 v{V_PHT}, s{S_T0}, v{b}
        v_mul_u32_u24 v{b}, 200, v{a}
        v_lshl_add_u32 v{b}, v{d}, 3, v{b}
        s_mul_i32 s{S_T0+1}, s{S_WV}, 48
        s_add_u32 s{S_T0+1}, s{S_T0+1}, {v_base}
        v_add_u32 v{V_VT}, s{S_T0+1}, v{b}
        """)
    em.e(f"s_mov_b32 s{S_L2E}, {f32bits(LOG2E)}")

def kv_zero(em, st):
    em.e(f"""
    s_mul_i32 s{S_T0}, s{S_C}, 15360
    s_mul_i32 s{S_T0+1}, s{S_M}, 960
    s_add_u32 s{S_T0}, s{S_T0}, s{S_T0+1}
    s_add_u32 s{S_T0}, s{S_T0}, {KVP_OFF}
    v_lshlrev_b32 v{VT}, 4, v0
    v_mov_b32 v{VT+1}, 0x80000000
    v_cmp_gt_u32 vcc, 60, v0
    v_mov_b32 v228, 0
    v_mov_b32 v229, 0
    v_mov_b32 v230, 0
    v_mov_b32 v231, 0
    v_cndmask_b32 v{VT}, v{VT+1}, v{VT}, vcc
    """)
    st["z"] = em.vm(f"buffer_store_dwordx4 v[228:231], v{VT}, s[{S_WS}:{S_WS+3}], s{S_T0} offen sc1")
    em.e("s_nop 1")

def kv_signal(em, st):
    em.wait(vm=st["z"])
    em.e(f"""
    s_lshl_b32 s{S_TMP2}, s{S_C}, 2
    v_mov_b32 v228, 0x80000000
    v_mov_b32 v229, 1
    v_mov_b32 v230, 0
    v_cmp_eq_u32 vcc, 0, v0
    s_nop 1
    v_cndmask_b32 v228, v228, v230, vcc
    """)
    em.vm(f"buffer_atomic_add v229, v228, s[{S_DBG}:{S_DBG+3}], s{S_TMP2} offen sc1")

def kv_epi(em):
    KW, KR, KL, KL2 = V_RD, V_RD + 1, V_RD + 2, V_RD + 3
    em.e(f"""
    v_lshrrev_b32 v{V_SM}, 5, v1
    v_mul_u32_u24 v{V_SM}, 88, v{V_SM}
    v_add_u32 v{V_SM}, v{V_SM}, v{V_VWA}
    v_mov_b32 v{V_SM+2}, 0x3f803f80
    v_mov_b32 v{V_SM+3}, 0x3f803f80
    """)
    em.lds(f"ds_write_b64 v{V_SM}, v[{V_SM+2}:{V_SM+3}] offset:40")
    em.lds(f"ds_write_b64 v{V_SM}, v[{V_SM+2}:{V_SM+3}] offset:88")
    for (t, a) in [(2, 2), (2, 3)] + [(t, a) for t in (3, 4) for a in range(4)]:
        c0 = 32 * t + 8 * a - 80
        p0 = c0 + 4 * (c0 // 20); p1 = (c0 + 4) + 4 * ((c0 + 4) // 20)
        va = V_VWA if p1 - p0 == 4 else V_VWB
        r = ACC0 + 16 * t + 4 * a
        em.e(f"v_cvt_pk_bf16_f32 v{r}, v{r}, v{r+1}")
        em.e(f"v_cvt_pk_bf16_f32 v{r+1}, v{r+2}, v{r+3}")
        em.lds(f"ds_write_b64 v{va}, v[{r}:{r+1}] offset:{p0*2}")
    yield from conv_qf(em, 5)
    yield "BAR"
    stamp3(em, 5)
    yield from chain(em, 3, 5, 2)
    stamp3(em, 6)
    def out_fn(em, ri, O):
        for c in range(5):
            em.last_p = em.lds(f"ds_write_b128 v{V_OUT}, v[{O+4*c}:{O+4*c+3}] offset:{ri*16*PITCH + 16*c}"); yield 3
    yield from softmax_rounds(em, [ri * 16 * PITCH for ri in range(2)], out_fn)
    em.wait(lds=em.last_p)
    stamp3(em, 7)
    x0, x1, x2 = V_CH, V_CH + 1, V_CH + 2
    em.e(f"""
    s_add_u32 s{S_TMP2}, s{S_H0}, s{S_WV}
    s_mul_i32 s{S_OB}, s{S_TMP2}, 3840
    s_add_u32 s{S_OB}, s{S_OB}, {KVP_OFF}
    s_mul_i32 s{S_TMP2}, s{S_WV}, 3360
    s_add_u32 s{S_TMP2}, s{S_TMP2}, {KS3}
    v_and_b32 v{x0}, 15, v1
    v_lshrrev_b32 v{x1}, 4, v1
    v_mul_u32_u24 v{x2}, 160, v{x0}
    v_lshl_add_u32 v{x2}, v{x1}, 4, v{x2}
    v_add_u32 v{KW}, s{S_TMP2}, v{x2}
    v_lshlrev_b32 v{KL}, 2, v1
    v_add_u32 v{KR}, s{S_TMP2}, v{KL}
    v_mov_b32 v{x2}, 0x80000000
    v_cmp_gt_u32 s[60:61], 8, v1
    v_cmp_gt_u32 s[62:63], 2, v{x1}
    v_cmp_gt_u32 s[90:91], 5, v{x0}
    v_cndmask_b32 v{KL2}, v{x2}, v{KL}, s[60:61]
    s_and_b64 s[88:89], s[62:63], s[90:91]
    s_lshl_b32 s{S_TMP2}, s{S_C}, 2
    v_mov_b32 v{V_CH}, 0
    """)
    pv = em.vm(f"buffer_load_dword v{V_CH+1}, v{V_CH}, s[{S_DBG}:{S_DBG+3}], s{S_TMP2} offen sc1")
    em.wait(lds=em.last_p)
    yield "BAR"
    stamp3(em, 11)
    KA = ACC0
    def issue(ks):
        b = V_SM + 20 * (ks % 2)
        for a in range(3):
            for hf in range(2):
                em.lds(f"ds_read_b64_tr_b16 v[{b+4*a+2*hf}:{b+4*a+2*hf+1}], v{V_PHT} offset:{(32*ks+4*hf)*PITCH + 32*a}")
        for bb in range(2):
            for hf in range(2):
                last = em.lds(f"ds_read_b64_tr_b16 v[{b+12+4*bb+2*hf}:{b+12+4*bb+2*hf+1}], v{V_VT} offset:{(32*ks+4*hf)*200 + 32*bb}")
        return last
    l0 = issue(0)
    for ks in range(4):
        if ks < 3: l1 = issue(ks + 1)
        em.wait(lds=l0)
        b = V_SM + 20 * (ks % 2)
        for a in range(3):
            for bb in range(2):
                r = KA + 8 * a + 4 * bb
                c = "0" if ks == 0 else f"v[{r}:{r+3}]"
                em.e(f"v_mfma_f32_16x16x32_bf16 v[{r}:{r+3}], v[{b+4*a}:{b+4*a+3}], v[{b+12+4*bb}:{b+12+4*bb+3}], {c}")
        l0 = l1
    for a in range(3):
        for bb in range(2):
            r = KA + 8 * a + 4 * bb
            msk = [[None, "s[90:91]"], [None, "s[90:91]"], ["s[62:63]", "s[88:89]"]][a][bb]
            if msk: em.e(f"s_mov_b64 exec, {msk}")
            lw = em.lds(f"ds_write_b128 v{KW}, v[{r}:{r+3}] offset:{bb*16*160 + a*64}")
            if msk: em.e("s_mov_b64 exec, -1")
    em.wait(lds=lw)
    stamp3(em, 12)
    rr = [em.lds(f"ds_read_b32 v{V_SM+i}, v{KR} offset:{i*256}") for i in range(14)]
    em.wait(vm=pv)
    em.e(f"""
    v_readfirstlane_b32 s{S_DUM}, v{V_CH+1}
    s_cmp_ge_u32 s{S_DUM}, 16
    s_cbranch_scc1 L3_kv_go
    """)
    em.label("L3_kv_poll")
    em.e(f"""
    s_sleep 8
    buffer_load_dword v{V_CH+1}, v{V_CH}, s[{S_DBG}:{S_DBG+3}], s{S_TMP2} offen sc1
    s_waitcnt vmcnt(0)
    v_readfirstlane_b32 s{S_DUM}, v{V_CH+1}
    s_cmp_lt_u32 s{S_DUM}, 16
    s_cbranch_scc1 L3_kv_poll
    """)
    em.label("L3_kv_go")
    for i in range(14):
        em.wait(lds=rr[i])
        em.vm(f"buffer_atomic_add_f32 v{V_SM+i}, v{KL if i < 13 else KL2}, s[{S_WS}:{S_WS+3}], s{S_OB} offen offset:{i*256}")
    yield 1

def gen_pureF(em, with_f2):
    S_FGB = 99
    rounds = [("F", S_FG), ("F", S_FGB)] + ([("MIX", None, 16384, 0)] if with_f2 else [])
    dests = [0, 8192, 0]
    setup3(em, rounds)
    lab = "C" if with_f2 else "D"
    st = {}; GR = 192
    em.e(f"s_cmp_ge_u32 s{S_W8}, 4\ns_cbranch_scc1 L3_{lab}_h1")
    save = (em.vm_n, em.vm_done, em.lds_n, em.lds_done)
    def pro0(em):
        setup3_reads(em); setup3_F(em)
    def bg0(em):
        r = Rec()
        st["g"] = gate_issue3(r, GR)
        yield from replay(em, r, st)
        yield from gate_bg(em, st["g"], GR, delay=30)
    engine3(em, rounds, dests, [f_tile(64 + 16 * t, 0, t) for t in range(4)], pro0, bgf=bg0)
    stamp3(em, 9)
    em.wait_lgkm0()
    em.e("s_barrier")
    st["f"] = frag_issue(em, FSC3, VT + 2)
    f_tail(em, [(64 + 16 * t, S_HB, t * 512) for t in range(4)])
    frag_finish(em, st["f"], FSC3, 160)
    stamp3(em, 10)
    em.e("s_endpgm")
    em.label(f"L3_{lab}_h1")
    em.vm_n, em.vm_done, em.lds_n, em.lds_done = save
    def pro1(em):
        setup3_reads(em); setup3_F(em)
    tiles = [f_tile(64 + 16 * t, 8192, t) for t in range(4)] + ([f_tile(128 + 16 * t, 16384, t, f2=True) for t in range(2)] if with_f2 else [])
    engine3(em, rounds, dests, tiles, pro1, gp=True)
    stamp3(em, 9)
    em.wait_lgkm0()
    em.e("s_barrier")
    f_tail(em, [(64 + 16 * t, S_HB, 2048 + t * 512) for t in range(4)] + ([(128 + 16 * t, S_HB2, t * 512) for t in range(2)] if with_f2 else []))
    stamp3(em, 10)
    em.e("s_endpgm")

def gen_k1():
    em = Em()
    em.raw(".text\n.globl k1_kernel\n.p2align 8\n.type k1_kernel,@function\nk1_kernel:")
    em.e("s_cmp_ge_u32 s2, 256\ns_cbranch_scc1 L_k1_done")
    T0 = S_T0
    em.e(f"""
    s_load_dwordx4 s[40:43], s[0:1], 0
    s_load_dwordx4 s[44:47], s[0:1], 16
    s_load_dwordx4 s[48:51], s[0:1], 40
    s_load_dwordx4 s[52:55], s[0:1], 56
    s_load_dwordx4 s[56:59], s[0:1], 80
    v_lshrrev_b32 v1, 6, v0
    v_and_b32 v0, 255, v0
    v_readfirstlane_b32 s{S_W8}, v1
    s_and_b32 s{T0}, s2, 1
    s_bfe_u32 s{T0+1}, s2, 0x20001
    s_lshr_b32 s{T0+2}, s2, 3
    s_lshl_b32 s{S_M}, s{T0}, 3
    s_and_b32 s{S_WV}, s{S_W8}, 3
    s_and_b32 s{T0+3}, s{T0+2}, 7
    s_add_u32 s{S_M}, s{S_M}, s{T0+3}
    s_lshr_b32 s{T0+2}, s{T0+2}, 3
    """)
    if OPT.get("codepf"):
        em.e(f"""
        s_getpc_b64 s[28:29]
        s_lshr_b32 s30, s2, 3
        s_mul_i32 s30, s30, ((L_text_end - k1_kernel) / 4096) * 128
        s_and_b32 s28, s28, 0xffffff00
        s_add_u32 s28, s28, s30
        s_addc_u32 s29, s29, 0
        v_and_b32 v2, 63, v0
        v_min_u32 v2, ((L_text_end - k1_kernel) / 4096) - 1, v2
        v_lshlrev_b32 v2, 7, v2
        s_cmp_lg_u32 s{S_W8}, 7
        s_cbranch_scc1 L_k1_nocp
        global_load_dword v250, v2, s[28:29]
        """)
        em.label("L_k1_nocp")
    em.wait_lgkm0()
    srd(em, S_X, 40, 2048 * 1280)
    srd(em, S_WS, 58, WS_BYTES)
    srd(em, S_DBG, 56, 256)
    srd(em, S_G, 48, 640 * 3456)
    srd(em, S_U, 50, 640 * 3456)
    srd(em, S_QKV, 42, 640 * 3840)
    srd(em, S_PHI, 44, 32 * 800)
    stamp3(em, 0)
    em.e(f"""
    s_cmp_eq_u32 s{T0+2}, 3
    s_cbranch_scc1 L_k1_F
    s_lshl_b32 s{T0+4}, s{T0+1}, 1
    s_add_u32 s{T0+4}, s{T0+4}, s{T0+2}
    s_sub_u32 s{S_C}, s{T0+4}, 1
    s_add_u32 s{T0+4}, s{T0+4}, 3
    s_cmp_eq_u32 s{T0+2}, 0
    s_cselect_b32 s{S_C}, s{T0+1}, s{S_C}
    s_cselect_b32 s{S_FG}, s{T0+1}, s{T0+4}
    s_lshr_b32 s{S_FG2}, s{S_FG}, 1
    s_add_u32 s{S_FG2}, s{S_FG2}, 20
    s_and_b32 s{S_TOFF}, s{S_FG}, 1
    s_lshl_b32 s{S_TOFF}, s{S_TOFF}, 1
    s_cmp_lg_u32 s{T0+2}, 0
    s_cbranch_scc1 L_k1_KV
    """)
    save = (em.vm_n, em.vm_done, em.lds_n, em.lds_done)
    def restore(): em.vm_n, em.vm_done, em.lds_n, em.lds_done = save
    gen_special(em, "Q")
    em.label("L_k1_KV"); restore()
    gen_special(em, "KV")
    em.label("L_k1_F"); restore()
    em.e(f"""
    s_lshl_b32 s{S_FG}, s{T0+1}, 1
    s_add_u32 s{S_FG}, s{S_FG}, 12
    s_add_u32 s99, s{S_FG}, 1
    s_mov_b32 s{S_FG2}, 26
    s_and_b32 s{S_TOFF}, s{T0+1}, 1
    s_lshl_b32 s{S_TOFF}, s{S_TOFF}, 1
    s_cmp_ge_u32 s{T0+1}, 2
    s_cbranch_scc1 L_k1_F2
    """)
    gen_pureF(em, True)
    em.label("L_k1_F2"); restore()
    gen_pureF(em, False)
    em.label("L_k1_done")
    em.e("s_endpgm")
    return em.finish(), em
```
